```python
import torch

def _softmax(x, axis=-1):
    return torch.softmax(x, dim=axis)

def _gelu(x):
    return torch.nn.functional.gelu(x, approximate='tanh')

def _silu(x):
    return torch.nn.functional.silu(x)

def _sigmoid(x):
    return torch.sigmoid(x)

def _layernorm(x, axis=-1, eps=1e-05):
    m = x.mean(dim=axis, keepdim=True)
    v = x.var(dim=axis, keepdim=True, unbiased=False)
    return (x - m) / torch.sqrt(v + eps)

def _scatter_add(tgt, idx, src, axis=0):
    return tgt.clone().index_add_(axis, idx, src)

def _segment_sum(src, seg, n):
    out = torch.zeros((n,) + src.shape[1:], dtype=src.dtype)
    return out.index_add_(0, seg, src)

def _pad(x, pw):
    flat = tuple((v for pair in reversed(pw) for v in pair))
    return torch.nn.functional.pad(x, flat)
kernel_name = 'adaLN_cond__mha_block_cached__moe_arch_mod__prompt'

def setup_inputs():

    _w = lambda a: (lambda t: t.to(torch.bfloat16) if t.is_floating_point() else t)(torch.as_tensor(a))

    def _A_setup():
        B, Sq, D = (1, 2048, 512)
        H, Sk, Dh = (32, 2048, 128)
        return {'x': _w((lambda *s: torch.randn(*s, dtype=torch.bfloat16) * 0.1)(B, Sq, D)), 'k_cache': _w((lambda *s: torch.randn(*s, dtype=torch.bfloat16) * 0.8)(B, H, Sk, Dh)), 'v_cache': _w((lambda *s: torch.randn(*s, dtype=torch.bfloat16) * 1.6)(B, H, Sk, Dh)), 'wq': _w((lambda *s: torch.randn(*s, dtype=torch.bfloat16) * 0.8)(D, H * Dh) * D ** (-0.5)), 'wo': _w((lambda *s: torch.randn(*s, dtype=torch.bfloat16) * 1.6)(H * Dh, D) * (H * Dh) ** (-0.5))}
    _A_in = _A_setup()

    def _B_setup():
        B, S, D, F, C = (1, 2048, 512, 1792, 8)
        return {'x': _w((lambda *s: torch.randn(*s, dtype=torch.bfloat16) * 0.1)(B, S, D)), 'w_r': _w((lambda *s: torch.randn(*s, dtype=torch.bfloat16) * 3.2)(D)), 'w_gate': _w((lambda *s: torch.randn(*s, dtype=torch.bfloat16) * 3.2)(D, F)), 'w_up': _w((lambda *s: torch.randn(*s, dtype=torch.bfloat16) * 3.2)(D, F)), 'w_down': _w((lambda *s: torch.randn(*s, dtype=torch.bfloat16) * 3.2)(F, D))}
    _B_in = _B_setup()
    return {'A_x': _A_in['x'], 'A_k_cache': _A_in['k_cache'], 'A_v_cache': _A_in['v_cache'], 'A_wq': _A_in['wq'], 'A_wo': _A_in['wo'], 'B_x': _B_in['x'], 'B_w_r': _B_in['w_r'], 'B_w_gate': _B_in['w_gate'], 'B_w_up': _B_in['w_up'], 'B_w_down': _B_in['w_down'], 'c': _w((lambda *s: torch.randn(*s, dtype=torch.bfloat16) * 0.2)(1, 512) * 8.0), 'w_mod': _w((lambda *s: torch.randn(*s, dtype=torch.bfloat16) * 0.2)(512, 6 * 512) * 512 ** (-0.5) * 8.0)}

def reference(A_x, A_k_cache, A_v_cache, A_wq, A_wo, B_x, B_w_r, B_w_gate, B_w_up, B_w_down, c, w_mod):

    def _A_ref(x, k_cache, v_cache, wq, wo):
        B, Sq, D = x.shape
        H, Dh = (32, 128)
        q = (lambda x, *d: x.permute(*d))((x @ wq).reshape(B, Sq, H, Dh), 0, 2, 1, 3)
        scores = torch.einsum('bhqd,bhkd->bhqk', q, k_cache) * Dh ** (-0.5)
        p = _softmax(scores, axis=-1)
        o = torch.einsum('bhqk,bhkd->bhqd', p, v_cache)
        return (lambda x, *d: x.permute(*d))(o, 0, 2, 1, 3).reshape(B, Sq, H * Dh) @ wo

    def _B_ref(x, w_r, w_gate, w_up, w_down):
        B, S, D = x.shape
        C = 8
        r = x @ w_r
        idx = torch.argsort(-r, axis=-1)[:, :C]
        idx_e = (lambda x, n, axis: torch.repeat_interleave(x, n, dim=axis))(idx.reshape(B, C, 1), D, axis=2)
        x_sel = (lambda x, i, axis: torch.take_along_dim(x, i, dim=axis))(x, idx_e, axis=1)
        g = _silu(x_sel @ w_gate)
        u = x_sel @ w_up
        y = g * u @ w_down
        r_sel = _sigmoid((lambda x, i, axis: torch.take_along_dim(x, i, dim=axis))(r, idx, axis=1))
        y = y * r_sel.reshape(B, C, 1)
        b_off = (torch.arange(B) * S).reshape(B, 1)
        flat_idx = (idx + b_off).reshape(B * C)
        zero = (x * 0.0).reshape(B * S, D)
        upd = _scatter_add(zero, flat_idx, y.reshape(B * C, D), axis=0)
        return x + upd.reshape(B, S, D)
    x = A_x
    mod = (_silu(c) @ w_mod).reshape(c.shape[0], 6, 1, -1)
    sa, ca, ga, sb, cb, gb = (mod[:, 0].clone(), mod[:, 1].clone(), mod[:, 2].clone(), mod[:, 3].clone(), mod[:, 4].clone(), mod[:, 5].clone())
    h = _layernorm(x, axis=-1) * (1 + ca) + sa
    x = x + ga * _A_ref(h, A_k_cache, A_v_cache, A_wq, A_wo)
    h = _layernorm(x, axis=-1) * (1 + cb) + sb
    x = x + gb * _B_ref(h, B_w_r, B_w_gate, B_w_up, B_w_down)
    return x
```

```python
class Asm:
    def __init__(self):
        self.lines = []

    def __call__(self, s):
        for ln in s.strip("\n").split("\n"):
            self.lines.append("    " + ln.strip())

    def label(self, name):
        self.lines.append(name + ":")

    def raw(self, s):
        self.lines.append(s)

    def comment(self, s):
        self.lines.append("    ; " + s)

    def text(self):
        return "\n".join(self.lines) + "\n"


def vr(a, n=None):
    if n is None or n == 1:
        return "v%d" % a
    return "v[%d:%d]" % (a, a + n - 1)


def sr(a, n=None):
    if n is None or n == 1:
        return "s%d" % a
    return "s[%d:%d]" % (a, a + n - 1)


KA = dict(x=0, k=8, v=16, wq=24, wo=32, bx=40, wr=48, wg=56, wu=64, wd=72, c=80, wmod=88,
          out=96, dbg=104, ws=112)

WS_MOD = 0x0
WS_R = 0x10000
WS_GU = 0x20000
WS_IDX = 0x30000
WS_FLAG = 0x40000
FLAG_O_OFF = 2048
FLAG_H_OFF = 3072
WS_H1 = 0x100000
WS_X1 = 0x300000
WS_H2 = 0x500000
WS_O = 0x800000
WS_PART = 0x1800000
WS_P6B = 0x2900000
WS_GP = 0x2A00000
WS_UP = 0x2C00000


def srd_from(a, d, base_s, off, nbytes):
    if off:
        a("s_add_u32 s%d, s%d, 0x%x" % (d, base_s, off))
        a("s_addc_u32 s%d, s%d, 0" % (d + 1, base_s + 1))
    else:
        a("s_mov_b32 s%d, s%d" % (d, base_s))
        a("s_mov_b32 s%d, s%d" % (d + 1, base_s + 1))
    a("s_mov_b32 s%d, 0x%x" % (d + 2, nbytes))
    a("s_mov_b32 s%d, 0x00020000" % (d + 3))


def kernel_header(a, name):
    a.raw(".globl %s" % name)
    a.raw(".p2align 8")
    a.raw(".type %s,@function" % name)
    a.label(name)


def kernel_desc(name, vgpr, sgpr=102):
    acc = (vgpr + 3) // 4 * 4
    return """.amdhsa_kernel %s
  .amdhsa_next_free_vgpr %d
  .amdhsa_next_free_sgpr %d
  .amdhsa_accum_offset %d
  .amdhsa_group_segment_fixed_size 0
  .amdhsa_kernarg_size 120
  .amdhsa_user_sgpr_count 2
  .amdhsa_user_sgpr_kernarg_segment_ptr 1
  .amdhsa_system_sgpr_workgroup_id_x 1
.end_amdhsa_kernel
""" % (name, vgpr, sgpr, acc)


def wave_allreduce(a, v, t, op="v_add_f32"):
    dpp = ["quad_perm:[1,0,3,2]", "quad_perm:[2,3,0,1]", "row_half_mirror", "row_mirror"]
    for d in dpp:
        a("s_nop 1")
        a("%s_dpp v%d, v%d, v%d %s row_mask:0xf bank_mask:0xf" % (op, t, v, v, d))
        a("v_mov_b32 v%d, v%d" % (v, t))
    a("ds_swizzle_b32 v%d, v%d offset:0x401F" % (t, v))
    a("s_waitcnt lgkmcnt(0)")
    a("%s v%d, v%d, v%d" % (op, v, v, t))
    a("v_mov_b32 v%d, v%d" % (t, v))
    a("s_nop 1")
    a("v_permlane32_swap_b32 v%d, v%d" % (v, t))
    a("s_nop 1")
    a("%s v%d, v%d, v%d" % (op, v, v, t))


def round_bf16(a, v, t=None):
    a("v_cvt_pk_bf16_f32 v%d, v%d, v%d" % (v, v, v))
    a("v_lshlrev_b32 v%d, 16, v%d" % (v, v))


def round_bf16_pair(a, v0, v1, t):
    a("v_cvt_pk_bf16_f32 v%d, v%d, v%d" % (t, v0, v1))
    a("v_lshlrev_b32 v%d, 16, v%d" % (v0, t))
    a("v_and_b32 v%d, 0xffff0000, v%d" % (v1, t))


def unpack_bf16(a, src, lo, hi):
    a("v_lshlrev_b32 v%d, 16, v%d" % (lo, src))
    a("v_and_b32 v%d, 0xffff0000, v%d" % (hi, src))
```

```python
from asmlib import *

OACC = 192
QF = 160
SB = [96, 128]
PB = 80
POOL = 32
NPOOL = 12
KAD = 16
VAD = 24
DK0, DK1, DV = 28, 29, 30
MRUN, L0, L1 = 1, 2, 3
T0 = 4

S_C = 34
S_L2E = 32
S_KOFF, S_VOFF = 35, 36
S_M0K = [37, 38]
S_M0V = [39, 40]
S_CNT = 41
S_WAVE = 33

KSLOT = [0, 16384]
VSLOT = [32768, 49152]
WQ_CHUNK_BASE = [16384, 49152] + [65536 + 16384 * i for i in range(6)]


class Stream:
    def __init__(self, a, pool, npool, look):
        self.a, self.pool, self.npool, self.look = a, pool, npool, look
        self.since_cvt = 99

    def emit(self, s):
        self.a(s)
        if s.startswith("v_cvt_pk") and ", 0, " not in s:
            self.since_cvt = 0
        else:
            self.since_cvt += 1

    def run(self, items, pre, gaps):
        n = len(items)
        issued = []
        def issue(i):
            fr = self.pool + 4 * (i % self.npool)
            for r in items[i][0](fr):
                self.emit(r)
                issued.append(i)
        for i in range(min(self.look, n)):
            issue(i)
        for s in pre:
            self.emit(s)
        for i in range(n):
            later = sum(1 for j in issued if j > i)
            self.emit("s_waitcnt lgkmcnt(%d)" % later)
            if items[i][2] and self.since_cvt < 3:
                self.emit("s_nop 1")
            fr = self.pool + 4 * (i % self.npool)
            self.emit(items[i][1](fr))
            if i + self.look < n:
                issue(i + self.look)
            for s in gaps[i] if i < len(gaps) else []:
                self.emit(s)


def qk_items(kslot, sdst):
    items = []
    for sub in range(2):
        for s in range(8):
            off = KSLOT[kslot] + sub * 8192
            d = sdst + 16 * sub
            def reads(fr, s=s, off=off):
                return ["ds_read_b128 v[%d:%d], v%d offset:%d" % (fr, fr + 3, KAD + s, off)]
            def mf(fr, s=s, d=d):
                c = "0" if s == 0 else "v[%d:%d]" % (d, d + 15)
                return "v_mfma_f32_32x32x16_bf16 v[%d:%d], v[%d:%d], v[%d:%d], %s" % (
                    d, d + 15, fr, fr + 3, QF + 4 * s, QF + 4 * s + 3, c)
            items.append((reads, mf, False))
    return items


def pv_items(vslot):
    items = []
    for ks in range(4):
        for dt in range(4):
            off = VSLOT[vslot] + ks * 4096
            def reads(fr, dt=dt, off=off):
                return ["ds_read_b64_tr_b16 v[%d:%d], v%d offset:%d" % (fr, fr + 1, VAD + dt, off),
                        "ds_read_b64_tr_b16 v[%d:%d], v%d offset:%d" % (fr + 2, fr + 3, VAD + dt, off + 2048)]
            def mf(fr, dt=dt, ks=ks):
                d = OACC + 16 * dt
                return "v_mfma_f32_32x32x16_bf16 v[%d:%d], v[%d:%d], v[%d:%d], v[%d:%d]" % (
                    d, d + 15, fr, fr + 3, PB + 4 * ks, PB + 4 * ks + 3, d, d + 15)
            items.append((reads, mf, True))
    return items


def exp_ops(S):
    ops = []
    for g in range(8):
        e = S + 4 * g
        for j in range(4):
            ops.append("v_cvt_pk_bf16_f32 v%d, 0, v%d" % (e + j, e + j))
        for j in range(4):
            ops.append("v_mul_f32 v%d, s%d, v%d" % (e + j, S_C, e + j))
        for j in range(4):
            ops.append("v_cvt_pk_bf16_f32 v%d, 0, v%d" % (e + j, e + j))
        for j in range(4):
            ops.append("v_fma_f32 v%d, v%d, s%d, -v%d" % (e + j, e + j, S_L2E, MRUN))
        for j in range(4):
            ops.append("v_exp_f32 v%d, v%d" % (e + j, e + j))
        for j in range(4):
            l = L0 if j % 2 == 0 else L1
            ops.append("v_add_f32 v%d, v%d, v%d" % (l, l, e + j))
        ops.append("v_cvt_pk_bf16_f32 v%d, v%d, v%d" % (PB + 2 * g, e, e + 1))
        ops.append("v_cvt_pk_bf16_f32 v%d, v%d, v%d" % (PB + 2 * g + 1, e + 2, e + 3))
    return ops


def max_ops(S):
    ta, tb, t2 = T0, T0 + 1, T0 + 2
    ops = []
    for c, (t, b) in enumerate(((ta, S), (tb, S + 16))):
        pass
    a_ops = ["v_max3_f32 v%d, v%d, v%d, v%d" % (ta, S, S + 1, S + 2)]
    b_ops = ["v_max3_f32 v%d, v%d, v%d, v%d" % (tb, S + 16, S + 17, S + 18)]
    for i in range(6):
        a_ops.append("v_max3_f32 v%d, v%d, v%d, v%d" % (ta, ta, S + 3 + 2 * i, S + 4 + 2 * i))
        b_ops.append("v_max3_f32 v%d, v%d, v%d, v%d" % (tb, tb, S + 19 + 2 * i, S + 20 + 2 * i))
    for x, y in zip(a_ops, b_ops):
        ops += [x, y]
    ops.append("v_max3_f32 v%d, v%d, v%d, v%d" % (ta, ta, tb, S + 15))
    ops.append("v_max_f32 v%d, v%d, v%d" % (ta, ta, S + 31))
    ops.append("v_mov_b32 v%d, v%d" % (t2, ta))
    ops.append("s_nop 1")
    ops.append("v_permlane32_swap_b32 v%d, v%d" % (ta, t2))
    ops.append("v_add_f32 v%d, 0x41000000, v%d" % (tb, MRUN))
    ops.append("v_max_f32 v%d, v%d, v%d" % (ta, ta, t2))
    ops.append("v_cvt_pk_bf16_f32 v%d, 0, v%d" % (ta, ta))
    ops.append("v_mul_f32 v%d, s%d, v%d" % (ta, S_C, ta))
    ops.append("v_cvt_pk_bf16_f32 v%d, 0, v%d" % (ta, ta))
    ops.append("v_mul_f32 v%d, s%d, v%d" % (ta, S_L2E, ta))
    return ops


_lbl = [0]


def rescale_check(a):
    _lbl[0] += 1
    lb = "L_k3_skip%d" % _lbl[0]
    a("v_cmp_gt_f32 vcc, v%d, v%d" % (T0, T0 + 1))
    a("s_nop 1")
    a("s_cbranch_vccz %s" % lb)
    a("s_nop 15")
    a("s_nop 7")
    a("v_max_f32 v%d, v%d, v%d" % (T0, T0, MRUN))
    a("v_sub_f32 v%d, v%d, v%d" % (T0 + 1, MRUN, T0))
    a("v_exp_f32 v%d, v%d" % (T0 + 1, T0 + 1))
    a("v_mov_b32 v%d, v%d" % (MRUN, T0))
    a("v_mul_f32 v%d, v%d, v%d" % (L0, L0, T0 + 1))
    a("v_mul_f32 v%d, v%d, v%d" % (L1, L1, T0 + 1))
    for i in range(64):
        a("v_mul_f32 v%d, v%d, v%d" % (OACC + i, OACC + i, T0 + 1))
    a("s_nop 1")
    a.label(lb)


def dma_k(slot):
    return ["s_mov_b32 m0, s%d" % S_M0K[slot],
            "s_nop 0",
            "buffer_load_dwordx4 v%d, s[8:11], s%d offen lds" % (DK0, S_KOFF),
            "buffer_load_dwordx4 v%d, s[8:11], s%d offen offset:1024 lds" % (DK1, S_KOFF),
            "s_add_u32 s%d, s%d, 16384" % (S_KOFF, S_KOFF)]


def dma_v(slot):
    return ["s_mov_b32 m0, s%d" % S_M0V[slot],
            "s_nop 0",
            "buffer_load_dwordx4 v%d, s[12:15], s%d offen lds" % (DV, S_VOFF),
            "buffer_load_dwordx4 v%d, s[12:15], s%d offen offset:1024 lds" % (DV, S_VOFF),
            "s_add_u32 s%d, s%d, 16384" % (S_VOFF, S_VOFF)]


def body(a, p, do_qk=True, do_dma_k=True, do_dma_v=True):
    a("s_waitcnt vmcnt(0)")
    a("s_barrier")
    st = Stream(a, POOL, NPOOL, 6)
    E = exp_ops(SB[p])
    if do_qk:
        items = qk_items(1 - p, SB[1 - p]) + pv_items(p)
        M = max_ops(SB[1 - p])
        pre = E[:12]
        gaps = [[] for _ in range(32)]
        k = 12
        for g in range(28):
            gaps[g] = E[k:k + 7]
            k += 7
        assert k == len(E), (k, len(E))
        k = 0
        for g in range(27, 32):
            gaps[g] = gaps[g] + M[k:k + 6]
            k += 6
        assert k >= len(M)
        if do_dma_k:
            gaps[1] = gaps[1] + dma_k(p)
        if do_dma_v:
            gaps[3] = gaps[3] + dma_v(1 - p)
        st.run(items, pre, gaps)
        rescale_check(a)
    else:
        items = pv_items(p)
        pre = E[:52]
        gaps = [[] for _ in range(16)]
        k = 52
        for g in range(12):
            gaps[g] = E[k:k + 13]
            k += 13
        assert k == len(E)
        st.run(items, pre, gaps)


def pack_swap(a, acc, dst):
    for half in range(2):
        r = acc + 8 * half
        d = dst + 4 * half
        for j in range(4):
            a("v_cvt_pk_bf16_f32 v%d, v%d, v%d" % (d + j, r + 2 * j, r + 2 * j + 1))
    a("s_nop 1")
    for half in range(2):
        d = dst + 4 * half
        a("v_permlane32_swap_b32 v%d, v%d" % (d, d + 2))
        a("v_permlane32_swap_b32 v%d, v%d" % (d + 1, d + 3))


def gen_attn(a):
    name = "k3_attn_kernel"
    kernel_header(a, name)
    a("s_cmp_ge_u32 s2, 256")
    a("s_cbranch_scc1 L_k3_done")
    a("s_load_dwordx4 s[4:7], s[0:1], %d" % KA["k"])
    a("s_load_dwordx2 s[28:29], s[0:1], %d" % KA["wq"])
    a("s_load_dwordx2 s[30:31], s[0:1], %d" % KA["ws"])
    a("s_and_b32 s42, s2, 31")
    a("s_lshr_b32 s43, s2, 5")
    a("v_lshrrev_b32 v4, 6, v0")
    a("v_and_b32 v5, 63, v0")
    a("v_readfirstlane_b32 s%d, v4" % S_WAVE)
    a("v_lshrrev_b32 v6, 5, v5")
    a("v_and_b32 v7, 31, v5")
    a("v_and_b32 v8, 15, v5")
    a("v_lshrrev_b32 v9, 4, v5")
    a("s_waitcnt lgkmcnt(0)")
    a("s_lshl_b32 s44, s42, 19")
    a("s_add_u32 s8, s4, s44")
    a("s_addc_u32 s9, s5, 0")
    a("s_mov_b32 s10, 524288")
    a("s_mov_b32 s11, 0x00020000")
    a("s_add_u32 s12, s6, s44")
    a("s_addc_u32 s13, s7, 0")
    a("s_mov_b32 s14, 524288")
    a("s_mov_b32 s15, 0x00020000")
    a("s_lshl_b32 s44, s42, 8")
    a("s_add_u32 s16, s28, s44")
    a("s_addc_u32 s17, s29, 0")
    a("s_sub_u32 s18, %d, s44" % (512 * 8192))
    a("s_mov_b32 s19, 0x00020000")
    a("s_lshl_b32 s45, s43, 18")
    a("s_add_u32 s45, s45, 0x%x" % WS_H1)
    a("s_add_u32 s20, s30, s45")
    a("s_addc_u32 s21, s31, 0")
    a("s_mov_b32 s22, 262144")
    a("s_mov_b32 s23, 0x00020000")
    a("s_lshl_b32 s45, s43, 21")
    a("s_add_u32 s45, s45, s44")
    a("s_add_u32 s45, s45, 0x%x" % WS_O)
    a("s_add_u32 s24, s30, s45")
    a("s_addc_u32 s25, s31, 0")
    a("s_sub_u32 s26, %d, s44" % (256 * 8192))
    a("s_mov_b32 s27, 0x00020000")
    a("s_mov_b32 s%d, 0x3db504f3" % S_C)
    a("s_mov_b32 s%d, 0x3fb8aa3b" % S_L2E)
    a("s_lshl_b32 s46, s%d, 11" % S_WAVE)
    for sl in range(2):
        a("s_add_u32 s%d, s46, %d" % (S_M0K[sl], KSLOT[sl]))
        a("s_add_u32 s%d, s46, %d" % (S_M0V[sl], VSLOT[sl]))
    a("s_mov_b32 s%d, 0" % S_KOFF)
    a("s_mov_b32 s%d, 0" % S_VOFF)
    a("v_xor_b32 v10, v6, v8")
    a("v_lshlrev_b32 v10, 4, v10")
    a("v_lshl_add_u32 v%d, v7, 8, v10" % KAD)
    for s in range(1, 8):
        a("v_xor_b32 v%d, %d, v%d" % (KAD + s, s << 5, KAD))
    a("v_lshrrev_b32 v10, 2, v8")
    a("v_lshl_add_u32 v11, v6, 2, v10")
    a("v_lshlrev_b32 v11, 8, v11")
    a("v_and_b32 v12, 1, v9")
    a("v_lshl_add_u32 v11, v12, 5, v11")
    a("v_and_b32 v12, 3, v8")
    a("v_lshl_add_u32 v11, v12, 3, v11")
    for dt in range(4):
        a("v_xor_b32 v12, %d, v10" % dt)
        a("v_lshl_add_u32 v%d, v12, 6, v11" % (VAD + dt))
    a("s_lshl_b32 s47, s%d, 3" % S_WAVE)
    a("v_add_u32 v10, s47, v9")
    a("v_and_b32 v11, 15, v10")
    a("v_xor_b32 v11, v11, v8")
    a("v_lshlrev_b32 v11, 4, v11")
    a("v_lshl_add_u32 v%d, v10, 8, v11" % DK0)
    a("v_add_u32 v12, 4, v10")
    a("v_and_b32 v11, 15, v12")
    a("v_xor_b32 v11, v11, v8")
    a("v_lshlrev_b32 v11, 4, v11")
    a("v_lshl_add_u32 v%d, v10, 8, v11" % DK1)
    a("v_lshlrev_b32 v11, 2, v9")
    a("v_xor_b32 v11, v11, v8")
    a("v_lshlrev_b32 v11, 4, v11")
    a("v_lshl_add_u32 v%d, v10, 8, v11" % DV)
    a("v_lshl_add_u32 v13, v10, 13, v11")
    a("v_add_u32 v14, %d, v13" % (32768 - 1024))
    a("s_lshl_b32 s47, s%d, 5" % S_WAVE)
    a("v_add_u32 v15, s47, v7")
    a("v_lshlrev_b32 v15, 10, v15")
    a("v_lshl_add_u32 v15, v6, 4, v15")
    a("v_add_u32 v0, s47, v7")
    a("v_lshlrev_b32 v0, 13, v0")
    a("v_lshl_add_u32 v0, v6, 4, v0")
    a("v_lshlrev_b32 v12, 10, v6")
    WA = 4
    for dt in range(4):
        a("v_add_u32 v%d, v12, v%d" % (WA + dt, VAD + dt))
    H1F = 32
    for c in range(8):
        a("s_add_u32 s48, s46, %d" % WQ_CHUNK_BASE[c])
        a("s_mov_b32 m0, s48")
        a("s_mov_b32 s49, %d" % (c * 64 * 8192))
        a("buffer_load_dwordx4 v13, s[16:19], s49 offen lds")
        a("buffer_load_dwordx4 v14, s[16:19], s49 offen offset:1024 lds")
        for s4 in range(4):
            ks = 4 * c + s4
            a("buffer_load_dwordx4 v[%d:%d], v15, s[20:23], 0 offen offset:%d" % (
                H1F + 4 * ks, H1F + 4 * ks + 3, 32 * ks))
    for s in dma_k(0) + dma_v(0):
        a(s)
    extra = 4
    cur_base = 0
    for c in range(8):
        a("s_waitcnt vmcnt(%d)" % (6 * (7 - c) + extra))
        a("s_barrier")
        if c == 1:
            for s in dma_k(1):
                a(s)
            extra += 2
        delta = WQ_CHUNK_BASE[c] - cur_base
        cur_base = WQ_CHUNK_BASE[c]
        for dt in range(4):
            a("v_add_u32 v%d, %d, v%d" % (WA + dt, delta, WA + dt))
        items = []
        for s4 in range(4):
            for dt in range(4):
                ks = 4 * c + s4
                def reads(fr, dt=dt, s4=s4):
                    return ["ds_read_b64_tr_b16 v[%d:%d], v%d offset:%d" % (fr, fr + 1, WA + dt, s4 * 4096),
                            "ds_read_b64_tr_b16 v[%d:%d], v%d offset:%d" % (fr + 2, fr + 3, WA + dt, s4 * 4096 + 1024)]
                def mf(fr, dt=dt, ks=ks):
                    d = OACC + 16 * dt
                    cc = "0" if ks == 0 else "v[%d:%d]" % (d, d + 15)
                    return "v_mfma_f32_32x32x16_bf16 v[%d:%d], v[%d:%d], v[%d:%d], %s" % (
                        d, d + 15, fr, fr + 3, H1F + 4 * ks, H1F + 4 * ks + 3, cc)
                items.append((reads, mf, False))
        st = Stream(a, QF, 8, 6)
        st.run(items, [], [])
    a("s_nop 15")
    a("s_nop 7")
    for dt in range(4):
        pack_swap(a, OACC + 16 * dt, QF + 8 * dt)
    for i in range(64):
        a("v_mov_b32 v%d, 0" % (OACC + i))
    a("v_mov_b32 v%d, 0xff800000" % MRUN)
    a("v_mov_b32 v%d, 0" % L0)
    a("v_mov_b32 v%d, 0" % L1)
    a("s_waitcnt vmcnt(2)")
    a("s_barrier")
    st = Stream(a, POOL, NPOOL, 6)
    st.run(qk_items(0, SB[0]), [], [])
    a("s_nop 15")
    a("s_nop 7")
    for s in max_ops(SB[0]):
        a(s)
    rescale_check(a)
    a("s_mov_b32 s%d, 15" % S_CNT)
    a.label("L_k3_loop")
    body(a, 0)
    body(a, 1)
    a("s_sub_u32 s%d, s%d, 1" % (S_CNT, S_CNT))
    a("s_cmp_lg_u32 s%d, 0" % S_CNT)
    a("s_cbranch_scc1 L_k3_loop")
    body(a, 0, do_dma_k=False)
    body(a, 1, do_qk=False)
    a("v_add_f32 v%d, v%d, v%d" % (L0, L0, L1))
    a("v_mov_b32 v%d, v%d" % (L1, L0))
    a("s_nop 1")
    a("v_permlane32_swap_b32 v%d, v%d" % (L0, L1))
    a("s_nop 1")
    a("v_add_f32 v%d, v%d, v%d" % (L0, L0, L1))
    a("v_rcp_f32 v%d, v%d" % (L0, L0))
    a("s_nop 15")
    a("s_nop 7")
    for dt in range(4):
        for i in range(16):
            a("v_mul_f32 v%d, v%d, v%d" % (OACC + 16 * dt + i, OACC + 16 * dt + i, L0))
        d = POOL + 8 * dt
        pack_swap(a, OACC + 16 * dt, d)
        a("buffer_store_dwordx4 v[%d:%d], v0, s[24:27], 0 offen offset:%d" % (d, d + 3, 64 * dt))
        a("buffer_store_dwordx4 v[%d:%d], v0, s[24:27], 0 offen offset:%d" % (d + 4, d + 7, 64 * dt + 32))
    a.label("L_k3_done")
    a("s_endpgm")
    return name, 256
```

```python
from asmlib import *

ACC = 64
NST = 3
STAGE = 32768


def gen_oproj(a):
    name = "k4_oproj_kernel"
    kernel_header(a, name)
    a("s_cmp_ge_u32 s2, 256")
    a("s_cbranch_scc1 L_k4_done")
    a("s_load_dwordx2 s[4:5], s[0:1], %d" % KA["wo"])
    a("s_load_dwordx2 s[6:7], s[0:1], %d" % KA["ws"])
    a("s_and_b32 s28, s2, 15")
    a("s_lshr_b32 s29, s2, 4")
    a("s_and_b32 s29, s29, 3")
    a("s_lshr_b32 s30, s2, 6")
    a("v_lshrrev_b32 v4, 6, v0")
    a("v_and_b32 v5, 63, v0")
    a("v_readfirstlane_b32 s31, v4")
    a("v_lshrrev_b32 v6, 5, v5")
    a("v_and_b32 v7, 31, v5")
    a("v_and_b32 v8, 15, v5")
    a("v_lshrrev_b32 v9, 4, v5")
    a("s_waitcnt lgkmcnt(0)")
    a("s_lshl_b32 s32, s28, 20")
    a("s_lshl_b32 s33, s30, 11")
    a("s_add_u32 s32, s32, s33")
    a("s_add_u32 s34, s32, 0x%x" % WS_O)
    a("s_add_u32 s8, s6, s34")
    a("s_addc_u32 s9, s7, 0")
    a("s_sub_u32 s10, %d, s33" % (128 * 8192))
    a("s_mov_b32 s11, 0x00020000")
    a("s_lshl_b32 s32, s30, 20")
    a("s_lshl_b32 s33, s29, 8")
    a("s_add_u32 s32, s32, s33")
    a("s_add_u32 s12, s4, s32")
    a("s_addc_u32 s13, s5, 0")
    a("s_sub_u32 s14, %d, s33" % (1024 * 1024))
    a("s_mov_b32 s15, 0x00020000")
    a("s_lshl_b32 s32, s30, 22")
    a("s_lshl_b32 s33, s28, 18")
    a("s_add_u32 s32, s32, s33")
    a("s_lshl_b32 s33, s29, 9")
    a("s_add_u32 s32, s32, s33")
    a("s_add_u32 s32, s32, 0x%x" % WS_PART)
    a("s_add_u32 s16, s6, s32")
    a("s_addc_u32 s17, s7, 0")
    a("s_sub_u32 s18, %d, s33" % (128 * 2048))
    a("s_mov_b32 s19, 0x00020000")
    a("s_and_b32 s35, s31, 1")
    a("s_lshr_b32 s36, s31, 1")
    a("v_lshrrev_b32 v10, 3, v5")
    a("s_lshl_b32 s37, s31, 5")
    a("v_add_u32 v10, s37, v10")
    a("v_and_b32 v11, 7, v5")
    for ii in range(4):
        a("v_add_u32 v12, %d, v10" % (8 * ii))
        a("v_lshrrev_b32 v13, 1, v12")
        a("v_and_b32 v13, 7, v13")
        a("v_xor_b32 v13, v13, v11")
        a("v_lshlrev_b32 v13, 4, v13")
        a("v_lshl_add_u32 v%d, v12, 13, v13" % (16 + ii))
    a("s_lshl_b32 s37, s31, 4")
    a("v_add_u32 v10, s37, v9")
    a("v_lshlrev_b32 v11, 2, v9")
    a("v_xor_b32 v11, v11, v8")
    a("v_lshlrev_b32 v11, 4, v11")
    a("v_lshl_add_u32 v20, v10, 10, v11")
    a("s_lshl_b32 s37, s35, 6")
    a("v_add_u32 v10, s37, v7")
    a("v_lshrrev_b32 v11, 1, v10")
    a("v_and_b32 v11, 7, v11")
    a("v_xor_b32 v11, v11, v6")
    a("v_lshlrev_b32 v11, 4, v11")
    a("v_lshl_add_u32 v24, v10, 7, v11")
    for s in range(1, 4):
        a("v_xor_b32 v%d, %d, v24" % (24 + s, s << 5))
    a("v_lshrrev_b32 v10, 2, v8")
    a("v_lshl_add_u32 v11, v6, 3, v10")
    a("v_lshlrev_b32 v11, 8, v11")
    a("v_and_b32 v12, 1, v9")
    a("v_lshl_add_u32 v11, v12, 5, v11")
    a("v_and_b32 v12, 3, v8")
    a("v_lshl_add_u32 v11, v12, 3, v11")
    a("s_lshl_b32 s37, s36, 1")
    for nt2 in range(2):
        a("v_add_u32 v12, %d, s37" % nt2)
        a("v_xor_b32 v12, v12, v10")
        a("v_lshl_add_u32 v%d, v12, 6, v11" % (28 + nt2))
        a("v_add_u32 v%d, 16384, v%d" % (28 + nt2, 28 + nt2))
    a("s_lshl_b32 s37, s35, 6")
    a("v_add_u32 v10, s37, v7")
    a("v_lshlrev_b32 v10, 11, v10")
    a("s_lshl_b32 s37, s36, 8")
    a("v_add_u32 v10, s37, v10")
    a("v_lshl_add_u32 v30, v6, 4, v10")
    a("v_add_u32 v31, %d, v30" % (32 * 2048))
    a("s_lshl_b32 s38, s31, 12")
    for s in range(4):
        a("v_add_u32 v%d, 0x10000, v%d" % (10 + s, 24 + s))
    for nt2 in range(2):
        a("v_add_u32 v%d, 0x10000, v%d" % (14 + nt2, 28 + nt2))

    def dma(stage_idx, kstep):
        sb = (stage_idx % NST) * STAGE
        a("s_mov_b32 s40, %d" % (kstep * 128))
        for ii in range(4):
            a("s_add_u32 s39, s38, %d" % (sb + ii * 1024))
            a("s_mov_b32 m0, s39")
            a("s_nop 0")
            a("buffer_load_dwordx4 v%d, s[8:11], s40 offen lds" % (16 + ii))
        for ii in range(4):
            a("s_add_u32 s39, s38, %d" % (sb + 16384 + ii * 1024))
            a("s_mov_b32 m0, s39")
            a("s_mov_b32 s41, %d" % (kstep * 64 * 1024 + ii * 4096))
            a("buffer_load_dwordx4 v20, s[12:15], s41 offen lds")

    dma(0, 0)
    dma(1, 1)
    FA = 32
    FB = 48
    for j in range(16):
        if j < 15:
            a("s_waitcnt vmcnt(8)")
        else:
            a("s_waitcnt vmcnt(0)")
        a("s_barrier")
        if j + 2 < 16:
            dma(j + 2, j + 2)
        sb = (j % NST) * STAGE
        aa, ba = 28, 24
        if sb >= 65536:
            sb -= 65536
            aa, ba = 14, 10
        def reads(s):
            st = s & 1
            for nt2 in range(2):
                fr = FA + 8 * st + 4 * nt2
                a("ds_read_b64_tr_b16 v[%d:%d], v%d offset:%d" % (fr, fr + 1, aa + nt2, sb + s * 4096))
                a("ds_read_b64_tr_b16 v[%d:%d], v%d offset:%d" % (fr + 2, fr + 3, aa + nt2, sb + s * 4096 + 1024))
            for mt2 in range(2):
                fr = FB + 8 * st + 4 * mt2
                a("ds_read_b128 v[%d:%d], v%d offset:%d" % (fr, fr + 3, ba + s, sb + mt2 * 4096))
        reads(0)
        for s in range(4):
            if s < 3:
                reads(s + 1)
                a("s_waitcnt lgkmcnt(6)")
            else:
                a("s_waitcnt lgkmcnt(0)")
            st = s & 1
            for nt2 in range(2):
                for mt2 in range(2):
                    d = ACC + 16 * (2 * nt2 + mt2)
                    fa = FA + 8 * st + 4 * nt2
                    fb = FB + 8 * st + 4 * mt2
                    c = "0" if (j == 0 and s == 0) else "v[%d:%d]" % (d, d + 15)
                    a("v_mfma_f32_32x32x16_bf16 v[%d:%d], v[%d:%d], v[%d:%d], %s" % (
                        d, d + 15, fa, fa + 3, fb, fb + 3, c))
    a("s_nop 15")
    a("s_nop 7")
    for nt2 in range(2):
        for mt2 in range(2):
            d = ACC + 16 * (2 * nt2 + mt2)
            for q in range(4):
                a("buffer_store_dwordx4 v[%d:%d], v%d, s[16:19], 0 offen offset:%d" % (
                    d + 4 * q, d + 4 * q + 3, 30 + mt2, nt2 * 128 + q * 32))
    a.label("L_k4_done")
    a("s_endpgm")
    return name, 128
```

```python
from asmlib import *

LOG2E = "0x3fb8aa3b"
NLOG2E = "0xbfb8aa3b"


def silu_reg(a, x, t):
    a("v_mul_f32 v%d, %s, v%d" % (t, NLOG2E, x))
    a("v_exp_f32 v%d, v%d" % (t, t))
    a("s_nop 0")
    a("v_add_f32 v%d, 1.0, v%d" % (t, t))
    a("v_rcp_f32 v%d, v%d" % (t, t))
    a("s_nop 0")
    a("v_mul_f32 v%d, v%d, v%d" % (x, x, t))


def gen_mod(a):
    name = "k1_mod_kernel"
    kernel_header(a, name)
    a("s_cmp_ge_u32 s2, 48")
    a("s_cbranch_scc1 L_k1_done")
    a("s_load_dwordx4 s[4:7], s[0:1], %d" % KA["c"])
    a("s_load_dwordx2 s[20:21], s[0:1], %d" % KA["ws"])
    a("v_and_b32 v1, 7, v0")
    a("v_lshrrev_b32 v2, 3, v0")
    a("s_waitcnt lgkmcnt(0)")
    srd_from(a, 8, 4, 0, 1024)
    srd_from(a, 12, 6, 0, 512 * 6144)
    srd_from(a, 16, 20, WS_MOD, 3072 * 4)
    a("v_lshlrev_b32 v3, 5, v2")
    a("buffer_load_dwordx4 v[8:11], v3, s[8:11], 0 offen")
    a("buffer_load_dwordx4 v[12:15], v3, s[8:11], 0 offen offset:16")
    a("s_mov_b32 s22, %d" % (16 * 6144))
    a("v_mul_lo_u32 v4, v2, s22")
    a("v_lshlrev_b32 v5, 4, v1")
    a("v_add_u32 v4, v4, v5")
    a("s_lshl_b32 s23, s2, 7")
    a("v_add_u32 v4, s23, v4")
    for i in range(16):
        a("s_mov_b32 s24, %d" % (i * 6144))
        a("buffer_load_dwordx4 v[%d:%d], v4, s[12:15], s24 offen" % (32 + 4 * i, 35 + 4 * i))
    a("s_waitcnt vmcnt(16)")
    for i in range(8):
        unpack_bf16(a, 8 + i, 16 + 2 * i, 17 + 2 * i)
    for i in range(16):
        silu_reg(a, 16 + i, 104)
        round_bf16(a, 16 + i)
    for j in range(8):
        a("v_mov_b32 v%d, 0" % (96 + j))
    for i in range(16):
        a("s_waitcnt vmcnt(%d)" % (15 - i))
        for d in range(4):
            unpack_bf16(a, 32 + 4 * i + d, 104, 105)
            a("v_fmac_f32 v%d, v%d, v104" % (96 + 2 * d, 16 + i))
            a("v_fmac_f32 v%d, v%d, v105" % (97 + 2 * d, 16 + i))
    a("v_lshlrev_b32 v6, 8, v2")
    a("v_lshlrev_b32 v7, 5, v1")
    a("v_add_u32 v6, v6, v7")
    a("ds_write_b128 v6, v[96:99]")
    a("ds_write_b128 v6, v[100:103] offset:16")
    a("s_waitcnt lgkmcnt(0)")
    a("s_barrier")
    a("v_cmp_gt_u32 vcc, 64, v0")
    a("s_and_saveexec_b64 s[26:27], vcc")
    a("s_cbranch_execz L_k1_done")
    a("v_lshlrev_b32 v6, 2, v0")
    for g in range(32):
        a("ds_read_b32 v%d, v6 offset:%d" % (32 + g, g * 256))
    a("s_waitcnt lgkmcnt(0)")
    for g in range(1, 32):
        a("v_add_f32 v32, v32, v%d" % (32 + g))
    round_bf16(a, 32)
    a("s_lshl_b32 s23, s2, 8")
    a("v_add_u32 v6, s23, v6")
    a("buffer_store_dword v32, v6, s[16:19], 0 offen")
    a.label("L_k1_done")
    a("s_endpgm")
    return name, 112


def layernorm8(a, X, T):
    s, t, mean, meanb, den, rc = T, T + 1, T + 2, T + 3, T + 4, T + 5
    D = T + 6
    a("v_add_f32 v%d, v%d, v%d" % (s, X, X + 1))
    for i in range(2, 8):
        a("v_add_f32 v%d, v%d, v%d" % (s, s, X + i))
    wave_allreduce(a, s, t)
    a("v_mul_f32 v%d, 0x3b000000, v%d" % (mean, s))
    a("v_mov_b32 v%d, v%d" % (meanb, mean))
    round_bf16(a, meanb)
    a("v_mov_b32 v%d, 0" % s)
    for i in range(8):
        a("v_sub_f32 v%d, v%d, v%d" % (D, X + i, mean))
        a("v_fmac_f32 v%d, v%d, v%d" % (s, D, D))
    wave_allreduce(a, s, t)
    a("v_mul_f32 v%d, 0x3b000000, v%d" % (den, s))
    round_bf16(a, den)
    a("v_add_f32 v%d, 0x3727c5ac, v%d" % (den, den))
    round_bf16(a, den)
    a("v_sqrt_f32 v%d, v%d" % (den, den))
    a("s_nop 0")
    round_bf16(a, den)
    a("v_rcp_f32 v%d, v%d" % (rc, den))
    a("s_nop 0")
    for i in range(0, 8, 2):
        a("v_sub_f32 v%d, v%d, v%d" % (X + i, X + i, meanb))
        a("v_sub_f32 v%d, v%d, v%d" % (X + i + 1, X + i + 1, meanb))
        round_bf16_pair(a, X + i, X + i + 1, t)
        for e in range(2):
            x = X + i + e
            a("v_mul_f32 v%d, v%d, v%d" % (D, x, rc))
            a("v_fma_f32 v%d, -v%d, v%d, v%d" % (D + 1, D, den, x))
            a("v_fma_f32 v%d, v%d, v%d, v%d" % (x, D + 1, rc, D))
        round_bf16_pair(a, X + i, X + i + 1, t)


def modulate8(a, X, SC, SH, t):
    for i in range(0, 8, 2):
        a("v_add_f32 v%d, 1.0, v%d" % (SC + i, SC + i))
        a("v_add_f32 v%d, 1.0, v%d" % (SC + i + 1, SC + i + 1))
        round_bf16_pair(a, SC + i, SC + i + 1, t)
        a("v_mul_f32 v%d, v%d, v%d" % (X + i, X + i, SC + i))
        a("v_mul_f32 v%d, v%d, v%d" % (X + i + 1, X + i + 1, SC + i + 1))
        round_bf16_pair(a, X + i, X + i + 1, t)
        a("v_add_f32 v%d, v%d, v%d" % (X + i, X + i, SH + i))
        a("v_add_f32 v%d, v%d, v%d" % (X + i + 1, X + i + 1, SH + i + 1))
        round_bf16_pair(a, X + i, X + i + 1, t)


def pack8(a, X, P):
    for i in range(4):
        a("v_cvt_pk_bf16_f32 v%d, v%d, v%d" % (P + i, X + 2 * i, X + 2 * i + 1))


def gen_ln1(a):
    name = "k2_ln1_kernel"
    kernel_header(a, name)
    a("s_cmp_ge_u32 s2, 512")
    a("s_cbranch_scc1 L_k2_done")
    a("s_load_dwordx2 s[4:5], s[0:1], %d" % KA["x"])
    a("s_load_dwordx2 s[20:21], s[0:1], %d" % KA["ws"])
    a("v_and_b32 v1, 63, v0")
    a("v_lshrrev_b32 v2, 6, v0")
    a("s_waitcnt lgkmcnt(0)")
    srd_from(a, 8, 4, 0, 2048 * 1024)
    srd_from(a, 12, 20, WS_MOD, 3072 * 4)
    srd_from(a, 16, 20, WS_H1, 2048 * 1024)
    a("s_lshl_b32 s22, s2, 12")
    a("v_lshlrev_b32 v3, 10, v2")
    a("v_lshlrev_b32 v4, 4, v1")
    a("v_add3_u32 v3, v3, v4, s22")
    a("buffer_load_dwordx4 v[8:11], v3, s[8:11], 0 offen")
    a("v_lshlrev_b32 v5, 5, v1")
    a("buffer_load_dwordx4 v[24:27], v5, s[12:15], 0 offen")
    a("buffer_load_dwordx4 v[28:31], v5, s[12:15], 0 offen offset:16")
    a("buffer_load_dwordx4 v[32:35], v5, s[12:15], 0 offen offset:2048")
    a("buffer_load_dwordx4 v[36:39], v5, s[12:15], 0 offen offset:2064")
    a("s_waitcnt vmcnt(4)")
    for i in range(4):
        unpack_bf16(a, 8 + i, 16 + 2 * i, 17 + 2 * i)
    layernorm8(a, 16, 40)
    a("s_waitcnt vmcnt(0)")
    modulate8(a, 16, 32, 24, 40)
    pack8(a, 16, 8)
    a("buffer_store_dwordx4 v[8:11], v3, s[16:19], 0 offen")
    a.label("L_k2_done")
    a("s_endpgm")
    return name, 56


def gen_fin(a, nsplit=4):
    name = "k5_fin_kernel"
    kernel_header(a, name)
    a("s_cmp_ge_u32 s2, 512")
    a("s_cbranch_scc1 L_k5_done")
    a("s_load_dwordx2 s[4:5], s[0:1], %d" % KA["x"])
    a("s_load_dwordx2 s[6:7], s[0:1], %d" % KA["wr"])
    a("s_load_dwordx2 s[40:41], s[0:1], %d" % KA["out"])
    a("s_load_dwordx2 s[20:21], s[0:1], %d" % KA["ws"])
    a("v_and_b32 v1, 63, v0")
    a("v_lshrrev_b32 v2, 6, v0")
    a("s_waitcnt lgkmcnt(0)")
    srd_from(a, 8, 4, 0, 2048 * 1024)
    srd_from(a, 12, 20, WS_MOD, 3072 * 4)
    srd_from(a, 16, 20, WS_PART, nsplit * 2048 * 2048)
    srd_from(a, 24, 6, 0, 1024)
    srd_from(a, 28, 40, 0, 2048 * 1024)
    srd_from(a, 32, 20, WS_X1, 2048 * 1024)
    srd_from(a, 36, 20, WS_H2, 2048 * 1024)
    srd_from(a, 44, 20, WS_R, 2048 * 4)
    a("s_lshl_b32 s22, s2, 12")
    a("v_lshlrev_b32 v3, 10, v2")
    a("v_lshlrev_b32 v4, 4, v1")
    a("v_add3_u32 v3, v3, v4, s22")
    a("v_lshlrev_b32 v6, 1, v3")
    a("buffer_load_dwordx4 v[8:11], v3, s[8:11], 0 offen")
    for p in range(nsplit):
        a("s_mov_b32 s23, 0x%x" % (p * 2048 * 2048))
        a("buffer_load_dwordx4 v[%d:%d], v6, s[16:19], s23 offen" % (64 + 8 * p, 67 + 8 * p))
        a("buffer_load_dwordx4 v[%d:%d], v6, s[16:19], s23 offen offset:16" % (68 + 8 * p, 71 + 8 * p))
    a("v_lshlrev_b32 v5, 5, v1")
    for j, base in ((2, 24), (3, 32), (4, 40), (5, 48)):
        a("s_mov_b32 s23, %d" % (j * 2048))
        a("buffer_load_dwordx4 v[%d:%d], v5, s[12:15], s23 offen" % (base, base + 3))
        a("buffer_load_dwordx4 v[%d:%d], v5, s[12:15], s23 offen offset:16" % (base + 4, base + 7))
    a("buffer_load_dwordx4 v[12:15], v4, s[24:27], 0 offen")
    a("s_waitcnt vmcnt(0)")
    for i in range(4):
        unpack_bf16(a, 8 + i, 16 + 2 * i, 17 + 2 * i)
    for p in range(1, nsplit):
        for i in range(8):
            a("v_add_f32 v%d, v%d, v%d" % (64 + i, 64 + i, 64 + 8 * p + i))
    T = 100
    for i in range(0, 8, 2):
        round_bf16_pair(a, 64 + i, 65 + i, T)
        a("v_mul_f32 v%d, v%d, v%d" % (64 + i, 64 + i, 24 + i))
        a("v_mul_f32 v%d, v%d, v%d" % (65 + i, 65 + i, 25 + i))
        round_bf16_pair(a, 64 + i, 65 + i, T)
        a("v_add_f32 v%d, v%d, v%d" % (16 + i, 16 + i, 64 + i))
        a("v_add_f32 v%d, v%d, v%d" % (17 + i, 17 + i, 65 + i))
        round_bf16_pair(a, 16 + i, 17 + i, T)
    for i in range(8):
        a("v_mov_b32 v%d, v%d" % (72 + i, 16 + i))
    pack8(a, 16, 8)
    a("buffer_store_dwordx4 v[8:11], v3, s[32:35], 0 offen")
    layernorm8(a, 16, T)
    modulate8(a, 16, 40, 32, T)
    pack8(a, 16, 84)
    a("buffer_store_dwordx4 v[84:87], v3, s[36:39], 0 offen")
    for i in range(4):
        unpack_bf16(a, 12 + i, 88 + 2 * i, 89 + 2 * i)
    a("v_mul_f32 v%d, v16, v88" % T)
    for i in range(1, 8):
        a("v_fmac_f32 v%d, v%d, v%d" % (T, 16 + i, 88 + i))
    wave_allreduce(a, T, T + 1)
    round_bf16(a, T)
    a("v_lshrrev_b32 v7, 8, v3")
    a("v_cmp_eq_u32 vcc, 0, v1")
    a("s_and_saveexec_b64 s[48:49], vcc")
    a("buffer_store_dword v%d, v7, s[44:47], 0 offen" % T)
    a("s_mov_b64 exec, s[48:49]")
    for i in range(0, 8, 2):
        a("v_mul_f32 v%d, v%d, v%d" % (16 + i, 16 + i, 48 + i))
        a("v_mul_f32 v%d, v%d, v%d" % (17 + i, 17 + i, 49 + i))
        round_bf16_pair(a, 16 + i, 17 + i, T)
        a("v_add_f32 v%d, v%d, v%d" % (16 + i, 16 + i, 72 + i))
        a("v_add_f32 v%d, v%d, v%d" % (17 + i, 17 + i, 73 + i))
    pack8(a, 16, 92)
    a("buffer_store_dwordx4 v[92:95], v3, s[28:31], 0 offen")
    a.label("L_k5_done")
    a("s_endpgm")
    return name, 112


def topk8(a, srd_r, lds_base, K, T, sidx):
    a("v_lshlrev_b32 v%d, 5, v0" % T)
    a("buffer_load_dwordx4 v[%d:%d], v%d, s[%d:%d], 0 offen" % (K, K + 3, T, srd_r, srd_r + 3))
    a("buffer_load_dwordx4 v[%d:%d], v%d, s[%d:%d], 0 offen offset:16" % (K + 4, K + 7, T, srd_r, srd_r + 3))
    a("v_lshlrev_b32 v%d, 3, v0" % (T + 1))
    a("v_sub_u32 v%d, 2047, v%d" % (T + 1, T + 1))
    a("v_lshrrev_b32 v%d, 6, v0" % (T + 4))
    a("v_lshlrev_b32 v%d, 2, v%d" % (T + 4, T + 4))
    return


def topk8_compute(a, lds_base, K, T, sidx):
    for j in range(8):
        k = K + j
        a("v_ashrrev_i32 v%d, 31, v%d" % (T + 2, k))
        a("v_or_b32 v%d, 0x80000000, v%d" % (T + 2, T + 2))
        a("v_xor_b32 v%d, v%d, v%d" % (k, k, T + 2))
        a("v_and_b32 v%d, 0xffff0000, v%d" % (k, k))
        a("v_subrev_u32 v%d, %d, v%d" % (T + 2, j, T + 1))
        a("v_or_b32 v%d, v%d, v%d" % (k, k, T + 2))
    for rnd in range(8):
        a("v_max_u32 v%d, v%d, v%d" % (T + 2, K, K + 1))
        for j in range(2, 8):
            a("v_max_u32 v%d, v%d, v%d" % (T + 2, T + 2, K + j))
        wave_allreduce(a, T + 2, T + 3, op="v_max_u32")
        a("ds_write_b32 v%d, v%d offset:%d" % (T + 4, T + 2, lds_base + rnd * 16))
        a("s_waitcnt lgkmcnt(0)")
        a("s_barrier")
        a("v_mov_b32 v%d, 0" % (T + 5))
        a("ds_read_b128 v[%d:%d], v%d offset:%d" % (T + 8, T + 11, T + 5, lds_base + rnd * 16))
        a("s_waitcnt lgkmcnt(0)")
        a("v_max_u32 v%d, v%d, v%d" % (T + 2, T + 8, T + 9))
        a("v_max_u32 v%d, v%d, v%d" % (T + 3, T + 10, T + 11))
        a("v_max_u32 v%d, v%d, v%d" % (T + 2, T + 2, T + 3))
        a("s_nop 0")
        a("v_readfirstlane_b32 s%d, v%d" % (sidx + rnd, T + 2))
        if rnd < 7:
            for j in range(8):
                a("v_cmp_eq_u32 vcc, v%d, v%d" % (K + j, T + 2))
                a("s_nop 1")
                a("v_cndmask_b32 v%d, v%d, 0, vcc" % (K + j, K + j))
    for rnd in range(8):
        a("s_and_b32 s%d, s%d, 0xffff" % (sidx + rnd, sidx + rnd))
        a("s_sub_u32 s%d, 2047, s%d" % (sidx + rnd, sidx + rnd))


def gen_gateup(a):
    name = "k6_gu_kernel"
    kernel_header(a, name)
    a("s_cmp_ge_u32 s2, 56")
    a("s_cbranch_scc1 L_k6_done")
    a("s_load_dwordx4 s[4:7], s[0:1], %d" % KA["wg"])
    a("s_load_dwordx2 s[20:21], s[0:1], %d" % KA["ws"])
    a("v_and_b32 v1, 15, v0")
    a("v_lshrrev_b32 v2, 4, v0")
    a("s_waitcnt lgkmcnt(0)")
    srd_from(a, 8, 4, 0, 512 * 3584)
    srd_from(a, 12, 6, 0, 512 * 3584)
    srd_from(a, 16, 20, WS_R, 2048 * 4)
    srd_from(a, 24, 20, WS_H2, 2048 * 1024)
    srd_from(a, 28, 20, WS_GU, 8 * 1792 * 4)
    srd_from(a, 32, 20, WS_IDX, 32)
    K, T = 8, 16
    topk8(a, 16, 0, K, T, 40)
    a("s_mov_b32 s22, %d" % (32 * 3584))
    a("v_mul_lo_u32 v3, v2, s22")
    a("v_lshlrev_b32 v4, 2, v1")
    a("s_lshl_b32 s23, s2, 6")
    a("v_add3_u32 v3, v3, v4, s23")
    for i in range(32):
        a("s_mov_b32 s22, %d" % (i * 3584))
        a("buffer_load_dword v%d, v3, s[8:11], s22 offen" % (64 + i))
    for i in range(24):
        a("s_mov_b32 s22, %d" % (i * 3584))
        a("buffer_load_dword v%d, v3, s[12:15], s22 offen" % (96 + i))
    a("s_waitcnt vmcnt(56)")
    topk8_compute(a, 0, K, T, 40)
    for i in range(24, 32):
        a("s_mov_b32 s22, %d" % (i * 3584))
        a("buffer_load_dword v%d, v3, s[12:15], s22 offen" % (96 + i))
    a("s_cmp_lg_u32 s2, 0")
    a("s_cbranch_scc1 L_k6_noidx")
    for j in range(8):
        a("v_mov_b32 v%d, s%d" % (16 + j, 40 + j))
    a("v_mov_b32 v24, 0")
    a("v_cmp_eq_u32 vcc, 0, v0")
    a("s_and_saveexec_b64 s[48:49], vcc")
    a("buffer_store_dwordx4 v[16:19], v24, s[32:35], 0 offen")
    a("buffer_store_dwordx4 v[20:23], v24, s[32:35], 0 offen offset:16")
    a("s_mov_b64 exec, s[48:49]")
    a.label("L_k6_noidx")
    XB = 1024
    a("v_lshlrev_b32 v5, 2, v0")
    for j in range(8):
        a("s_lshl_b32 s22, s%d, 10" % (40 + j))
        a("buffer_load_dword v%d, v5, s[24:27], s22 offen" % (28 + j))
    a("v_lshlrev_b32 v6, 6, v0")
    a("s_waitcnt vmcnt(0)")
    for j in range(8):
        unpack_bf16(a, 28 + j, 40 + j, 48 + j)
    a("ds_write_b128 v6, v[40:43] offset:%d" % XB)
    a("ds_write_b128 v6, v[44:47] offset:%d" % (XB + 16))
    a("ds_write_b128 v6, v[48:51] offset:%d" % (XB + 32))
    a("ds_write_b128 v6, v[52:55] offset:%d" % (XB + 48))
    a("s_waitcnt lgkmcnt(0)")
    a("s_barrier")
    for i in range(32):
        a("v_mov_b32 v%d, 0" % (128 + i))
    a("v_lshlrev_b32 v6, 10, v2")
    for i in range(32):
        xb = 28 + 8 * (i & 1)
        a("ds_read_b128 v[%d:%d], v6 offset:%d" % (xb, xb + 3, XB + i * 32))
        a("ds_read_b128 v[%d:%d], v6 offset:%d" % (xb + 4, xb + 7, XB + i * 32 + 16))
        unpack_bf16(a, 64 + i, 44, 45)
        unpack_bf16(a, 96 + i, 46, 47)
        a("s_waitcnt lgkmcnt(0)")
        for j in range(8):
            a("v_fmac_f32 v%d, v%d, v44" % (128 + 2 * j, xb + j))
            a("v_fmac_f32 v%d, v%d, v45" % (129 + 2 * j, xb + j))
            a("v_fmac_f32 v%d, v%d, v46" % (144 + 2 * j, xb + j))
            a("v_fmac_f32 v%d, v%d, v47" % (145 + 2 * j, xb + j))
    for i in range(32):
        a("ds_swizzle_b32 v%d, v%d offset:0x401F" % (64 + i, 128 + i))
    a("s_waitcnt lgkmcnt(0)")
    for i in range(32):
        a("v_add_f32 v%d, v%d, v%d" % (128 + i, 128 + i, 64 + i))
    for i in range(32):
        a("v_mov_b32 v%d, v%d" % (64 + i, 128 + i))
    a("s_nop 1")
    for i in range(32):
        a("v_permlane32_swap_b32 v%d, v%d" % (128 + i, 64 + i))
    a("s_nop 1")
    for i in range(32):
        a("v_add_f32 v%d, v%d, v%d" % (128 + i, 128 + i, 64 + i))
    RB = 20480
    a("v_lshrrev_b32 v7, 6, v0")
    a("v_lshlrev_b32 v7, 11, v7")
    a("v_lshlrev_b32 v8, 7, v1")
    a("v_add_u32 v7, v7, v8")
    a("v_and_b32 v9, 63, v0")
    a("v_cmp_gt_u32 vcc, 16, v9")
    a("s_and_saveexec_b64 s[48:49], vcc")
    for q in range(8):
        a("ds_write_b128 v7, v[%d:%d] offset:%d" % (128 + 4 * q, 131 + 4 * q, RB + 16 * q))
    a("s_mov_b64 exec, s[48:49]")
    a("s_waitcnt lgkmcnt(0)")
    a("s_barrier")
    a("v_lshrrev_b32 v10, 5, v0")
    a("v_and_b32 v11, 31, v0")
    a("v_lshrrev_b32 v12, 1, v11")
    a("v_and_b32 v13, 1, v11")
    a("v_lshlrev_b32 v12, 7, v12")
    a("v_lshl_add_u32 v13, v10, 1, v13")
    a("v_lshl_add_u32 v12, v13, 2, v12")
    for w in range(4):
        a("ds_read_b32 v%d, v12 offset:%d" % (16 + w, RB + w * 2048))
        a("ds_read_b32 v%d, v12 offset:%d" % (20 + w, RB + w * 2048 + 64))
    a("s_waitcnt lgkmcnt(0)")
    a("v_add_f32 v16, v16, v17")
    a("v_add_f32 v18, v18, v19")
    a("v_add_f32 v16, v16, v18")
    a("v_add_f32 v20, v20, v21")
    a("v_add_f32 v22, v22, v23")
    a("v_add_f32 v20, v20, v22")
    round_bf16_pair(a, 16, 20, 24)
    silu_reg(a, 16, 24)
    round_bf16(a, 16)
    a("v_mul_f32 v16, v16, v20")
    round_bf16(a, 16)
    a("s_mov_b32 s22, %d" % (1792 * 4))
    a("v_mul_lo_u32 v10, v10, s22")
    a("v_lshl_add_u32 v10, v11, 2, v10")
    a("s_lshl_b32 s23, s2, 7")
    a("v_add_u32 v10, s23, v10")
    a("buffer_store_dword v16, v10, s[28:31], 0 offen")
    a.label("L_k6_done")
    a("s_endpgm")
    return name, 160


def gen_down(a):
    name = "k7_down_kernel"
    kernel_header(a, name)
    a("s_cmp_ge_u32 s2, 32")
    a("s_cbranch_scc1 L_k7_done")
    a("s_load_dwordx2 s[4:5], s[0:1], %d" % KA["wd"])
    a("s_load_dwordx2 s[6:7], s[0:1], %d" % KA["out"])
    a("s_load_dwordx2 s[20:21], s[0:1], %d" % KA["ws"])
    a("v_and_b32 v1, 7, v0")
    a("v_lshrrev_b32 v2, 3, v0")
    a("s_waitcnt lgkmcnt(0)")
    a("s_add_u32 s50, s20, 0x%x" % WS_IDX)
    a("s_addc_u32 s51, s21, 0")
    a("s_load_dwordx8 s[40:47], s[50:51], 0")
    srd_from(a, 8, 4, 0, 1792 * 1024)
    srd_from(a, 12, 6, 0, 2048 * 1024)
    srd_from(a, 16, 20, WS_GU, 8 * 1792 * 4)
    srd_from(a, 24, 20, WS_H2, 2048 * 1024)
    srd_from(a, 28, 20, WS_X1, 2048 * 1024)
    srd_from(a, 32, 20, WS_R, 2048 * 4)
    srd_from(a, 36, 20, WS_MOD, 3072 * 4)
    a("s_mov_b32 s22, %d" % (56 * 1024))
    a("v_mul_lo_u32 v3, v2, s22")
    a("v_lshlrev_b32 v4, 2, v1")
    a("s_lshl_b32 s23, s2, 5")
    a("v_add3_u32 v3, v3, v4, s23")
    a("v_lshlrev_b32 v5, 2, v0")
    for i in range(7):
        for j in range(8):
            a("s_mov_b32 s22, %d" % (j * 1792 * 4 + i * 1024))
            a("buffer_load_dword v%d, v5, s[16:19], s22 offen" % (128 + 8 * i + j))
    a("v_lshlrev_b32 v6, 5, v0")
    a("s_waitcnt vmcnt(0)")
    for i in range(56):
        a("s_mov_b32 s22, %d" % (i * 1024))
        a("buffer_load_dword v%d, v3, s[8:11], s22 offen" % (64 + i))
    for i in range(7):
        a("ds_write_b128 v6, v[%d:%d] offset:%d" % (128 + 8 * i, 131 + 8 * i, i * 8192))
        a("ds_write_b128 v6, v[%d:%d] offset:%d" % (132 + 8 * i, 135 + 8 * i, i * 8192 + 16))
    a("s_waitcnt lgkmcnt(0)")
    a("s_barrier")
    for i in range(16):
        a("v_mov_b32 v%d, 0" % (32 + i))
    a("s_mov_b32 s22, %d" % (56 * 32))
    a("v_mul_lo_u32 v6, v2, s22")
    for i in range(56):
        xb = 16 + 8 * (i & 1)
        a("ds_read_b128 v[%d:%d], v6 offset:%d" % (xb, xb + 3, i * 32))
        a("ds_read_b128 v[%d:%d], v6 offset:%d" % (xb + 4, xb + 7, i * 32 + 16))
        a("s_waitcnt vmcnt(%d)" % (55 - i))
        unpack_bf16(a, 64 + i, 8, 9)
        a("s_waitcnt lgkmcnt(0)")
        for j in range(8):
            a("v_fmac_f32 v%d, v%d, v8" % (32 + 2 * j, xb + j))
            a("v_fmac_f32 v%d, v%d, v9" % (33 + 2 * j, xb + j))
    for off in ("0x201F", "0x401F"):
        for i in range(16):
            a("ds_swizzle_b32 v%d, v%d offset:%s" % (48 + i, 32 + i, off))
        a("s_waitcnt lgkmcnt(0)")
        for i in range(16):
            a("v_add_f32 v%d, v%d, v%d" % (32 + i, 32 + i, 48 + i))
    for i in range(16):
        a("v_mov_b32 v%d, v%d" % (48 + i, 32 + i))
    a("s_nop 1")
    for i in range(16):
        a("v_permlane32_swap_b32 v%d, v%d" % (32 + i, 48 + i))
    a("s_nop 1")
    for i in range(16):
        a("v_add_f32 v%d, v%d, v%d" % (32 + i, 32 + i, 48 + i))
    a("s_barrier")
    a("v_lshrrev_b32 v7, 6, v0")
    a("v_lshlrev_b32 v7, 9, v7")
    a("v_lshlrev_b32 v8, 6, v1")
    a("v_add_u32 v7, v7, v8")
    a("v_and_b32 v9, 63, v0")
    a("v_cmp_gt_u32 vcc, 8, v9")
    a("s_and_saveexec_b64 s[48:49], vcc")
    for q in range(4):
        a("ds_write_b128 v7, v[%d:%d] offset:%d" % (32 + 4 * q, 35 + 4 * q, 16 * q))
    a("s_mov_b64 exec, s[48:49]")
    a("s_waitcnt lgkmcnt(0)")
    a("s_barrier")
    a("v_cmp_gt_u32 vcc, 128, v0")
    a("s_and_saveexec_b64 s[48:49], vcc")
    a("s_cbranch_execz L_k7_done")
    a("v_lshrrev_b32 v10, 4, v0")
    a("v_and_b32 v11, 15, v0")
    a("v_lshrrev_b32 v12, 1, v11")
    a("v_and_b32 v13, 1, v11")
    a("v_lshlrev_b32 v12, 6, v12")
    a("v_lshl_add_u32 v13, v10, 1, v13")
    a("v_lshl_add_u32 v12, v13, 2, v12")
    for w in range(4):
        a("ds_read_b32 v%d, v12 offset:%d" % (16 + w, w * 512))
    a("v_mov_b32 v14, s40")
    for j in range(1, 8):
        a("v_mov_b32 v15, s%d" % (40 + j))
        a("v_cmp_eq_u32 vcc, %d, v10" % j)
        a("s_nop 1")
        a("v_cndmask_b32 v14, v14, v15, vcc")
    a("s_lshl_b32 s23, s2, 4")
    a("v_add_u32 v11, s23, v11")
    a("v_lshlrev_b32 v24, 10, v14")
    a("v_lshl_add_u32 v24, v11, 1, v24")
    a("v_lshlrev_b32 v25, 2, v14")
    a("v_lshlrev_b32 v26, 2, v11")
    a("buffer_load_ushort v27, v24, s[24:27], 0 offen")
    a("buffer_load_ushort v28, v24, s[28:31], 0 offen")
    a("buffer_load_dword v29, v25, s[32:35], 0 offen")
    a("s_mov_b32 s22, %d" % (5 * 2048))
    a("buffer_load_dword v30, v26, s[36:39], s22 offen")
    a("s_waitcnt lgkmcnt(0)")
    a("v_add_f32 v16, v16, v17")
    a("v_add_f32 v18, v18, v19")
    a("v_add_f32 v16, v16, v18")
    round_bf16(a, 16)
    a("s_waitcnt vmcnt(0)")
    a("v_lshlrev_b32 v27, 16, v27")
    a("v_lshlrev_b32 v28, 16, v28")
    a("v_mul_f32 v31, %s, v29" % NLOG2E)
    a("v_exp_f32 v31, v31")
    a("s_nop 0")
    a("v_add_f32 v31, 1.0, v31")
    a("v_rcp_f32 v31, v31")
    a("s_nop 0")
    round_bf16(a, 31)
    a("v_mul_f32 v16, v16, v31")
    round_bf16(a, 16)
    a("v_add_f32 v16, v16, v27")
    round_bf16(a, 16)
    a("v_mul_f32 v16, v16, v30")
    round_bf16(a, 16)
    a("v_add_f32 v16, v16, v28")
    a("v_cvt_pk_bf16_f32 v16, v16, v16")
    a("buffer_store_short v16, v24, s[12:15], 0 offen")
    a.label("L_k7_done")
    a("s_endpgm")
    return name, 192
```

```python
import sys, os
sys.path.insert(0, os.path.dirname(os.path.abspath(__file__)))
from asmlib import *
import small, attn, oproj

HEADER = open(os.path.join(os.path.dirname(os.path.abspath(__file__)), "..", "cdna_kernels",
              "adaLN_cond__mha_block_cached__moe_arch_mod__prompt.s.ref")).read().split("; Override launch")[0]

def build():
    a = Asm()
    kernels = []
    launches = []
    def add(gen, grid, block, lds):
        name, nv = gen(a)
        kernels.append((name, nv))
        launches.append("; @launch kernel=%s grid=(%d,1,1) block=(%d,1,1) lds=%d" % (name, grid, block, lds))
    add(small.gen_mod, 48, 256, 8192)
    add(small.gen_ln1, 512, 256, 0)
    add(attn.gen_attn, 256, 512, 163840)
    add(oproj.gen_oproj, 256, 256, 98304)
    add(small.gen_fin, 512, 256, 0)
    add(small.gen_gateup, 56, 256, 32768)
    add(small.gen_down, 32, 256, 57344)
    out = HEADER + "\n".join(launches) + "\n"
    out += '.amdgcn_target "amdgcn-amd-amdhsa--gfx950"\n.text\n'
    out += a.text()
    out += '.section .rodata,"a"\n'
    for name, nv in kernels:
        out += ".p2align 6\n" + kernel_desc(name, nv)
    return out

if __name__ == "__main__":
    dst = os.path.join(os.path.dirname(os.path.abspath(__file__)), "..", "cdna_kernels",
                       "adaLN_cond__mha_block_cached__moe_arch_mod__prompt.s")
    if len(sys.argv) > 1:
        dst = sys.argv[1]
    open(dst, "w").write(build())
    print("wrote", dst)
```

```python
from asmlib import *
import os
DIAG = os.environ.get("DIAG", "0") == "1"
WS_DIAG = 0x3000000
ROWSUM = os.environ.get("ROWSUM", "mfma")
MIMIC = os.environ.get("MIMIC", "1") == "1"
PRIO = os.environ.get("PRIO", "0") == "1"
XNODMA = os.environ.get("XNODMA", "0") == "1"
XNOBAR = os.environ.get("XNOBAR", "0") == "1"
XNOLDS = os.environ.get("XNOLDS", "0") == "1"
_stamp = [0]

OACC = 192
QF = 160
SB = [96, 128]
PB = 80
POOL = 48
NPOOL = 8
LOOK = 6
LSUM = 32
ONES = 12
KAD = 16
VAD = 24
DK0, DK1, DV = 28, 29, 30
MRUN, L0 = 1, 2
T0 = 4

S_L2E = 32
S_WAVE = 33
S_C = 34
S_KOFF, S_VOFF = 35, 36
S_M0K = [37, 38, 39]
S_M0V = [40, 41, 42]
S_CNT = 43

NSLOT = 3
KSLOT = [0, 16384, 32768]
VBASE = 49152
VSLOT = [0, 16384, 32768]
WQ_BASE = 98304


def stamp(a):
    if not DIAG:
        return
    i = _stamp[0]
    _stamp[0] += 1
    a("s_memtime s[%d:%d]" % (60 + 2 * i, 61 + 2 * i))


def rstamp(a, reg):
    if DIAG:
        a("s_memrealtime s[%d:%d]" % (reg, reg + 1))


def stamp_flush(a):
    if not DIAG:
        return
    rstamp(a, 92)
    a("s_waitcnt lgkmcnt(0) vmcnt(0)")
    a("s_add_u32 s56, s30, 0x%x" % WS_DIAG)
    a("s_addc_u32 s57, s31, 0")
    a("s_mov_b32 s58, 0x100000")
    a("s_mov_b32 s59, 0x00020000")
    a("s_lshl_b32 s54, s2, 3")
    a("s_add_u32 s54, s54, s%d" % S_WAVE)
    a("s_lshl_b32 s54, s54, 6")
    a("v_mov_b32 v4, s54")
    for i in range(_stamp[0]):
        a("v_mov_b32 v5, s%d" % (60 + 2 * i))
        a("buffer_store_dword v5, v4, s[56:59], 0 offen offset:%d" % (4 * i))
    for i, r in enumerate((90, 92)):
        a("v_mov_b32 v5, s%d" % r)
        a("buffer_store_dword v5, v4, s[56:59], 0 offen offset:%d" % (48 + 4 * i))


class Item:
    def __init__(self, reads, mfma, guard=False, before=None, after=None):
        self.reads = reads
        self.mfma = mfma
        self.guard = guard
        self.before = before or []
        self.after = after or []


class Stream:
    def __init__(self, a, pool, npool, look):
        self.a, self.pool, self.npool, self.look = a, pool, npool, look
        self.since_cvt = 99
        self.issued = []

    def emit(self, s):
        if s.endswith(":"):
            self.a.label(s[:-1])
            return
        self.a(s)
        if s.startswith("v_cvt_pk") and ", 0, " not in s:
            self.since_cvt = 0
        else:
            self.since_cvt += 1

    def issue(self, it, idx):
        fr = self.pool + 4 * (idx % self.npool)
        for r in it.reads(fr):
            self.emit(r)
            self.issued.append(idx)

    def run(self, items, preissued, nxt=None):
        n = len(items)
        seq = items + (nxt[:self.look] if nxt else [])
        self.issued = []
        if preissued:
            for i in range(min(self.look, n)):
                fr = self.pool + 4 * (i % self.npool)
                self.issued += [i] * len(items[i].reads(fr))
        else:
            for i in range(min(self.look, len(seq))):
                self.issue(seq[i], i)
        for i in range(n):
            it = items[i]
            for s in it.before:
                self.emit(s)
            fr = self.pool + 4 * (i % self.npool)
            if it.reads(fr):
                later = sum(1 for j in self.issued if j > i)
                self.emit("s_waitcnt lgkmcnt(%d)" % later)
            if it.guard and self.since_cvt < 2:
                self.emit("s_nop %d" % (1 - self.since_cvt))
            self.emit(it.mfma(fr))
            if i + self.look < len(seq):
                self.issue(seq[i + self.look], i + self.look)
            for s in it.after:
                self.emit(s)


def qk_items(kslot, sdst):
    items = []
    for sub in range(2):
        for s in range(8):
            off = KSLOT[kslot] + sub * 8192
            d = sdst + 16 * sub
            def reads(fr, s=s, off=off):
                return ["ds_read_b128 v[%d:%d], v%d offset:%d" % (fr, fr + 3, KAD + s, off)]
            def mf(fr, s=s, d=d):
                c = "0" if s == 0 else "v[%d:%d]" % (d, d + 15)
                return "v_mfma_f32_32x32x16_bf16 v[%d:%d], v[%d:%d], v[%d:%d], %s" % (
                    d, d + 15, fr, fr + 3, QF + 4 * s, QF + 4 * s + 3, c)
            items.append(Item(reads, mf))
    return items


def pv_items(vslot):
    items = []
    for ks in range(4):
        for dt in range(4):
            off = VSLOT[vslot] + ks * 4096
            def reads(fr, dt=dt, off=off):
                return ["ds_read_b64_tr_b16 v[%d:%d], v%d offset:%d" % (fr, fr + 1, VAD + dt, off),
                        "ds_read_b64_tr_b16 v[%d:%d], v%d offset:%d" % (fr + 2, fr + 3, VAD + dt, off + 2048)]
            def mf(fr, dt=dt, ks=ks):
                d = OACC + 16 * dt
                return "v_mfma_f32_32x32x16_bf16 v[%d:%d], v[%d:%d], v[%d:%d], v[%d:%d]" % (
                    d, d + 15, fr, fr + 3, PB + 4 * ks, PB + 4 * ks + 3, d, d + 15)
            items.append(Item(reads, mf, True))
        def mfs(fr, ks=ks):
            if ROWSUM != "mfma":
                return "s_nop 0"
            return "v_mfma_f32_32x32x16_bf16 v[%d:%d], v[%d:%d], v[%d:%d], v[%d:%d]" % (
                LSUM, LSUM + 15, ONES, ONES + 3, PB + 4 * ks, PB + 4 * ks + 3, LSUM, LSUM + 15)
        items.append(Item(lambda fr: [], mfs, True))
    return items


def exp_ops(S):
    ops = []
    for g in range(8):
        e = S + 4 * g
        if MIMIC:
            for j in range(4):
                ops.append("v_cvt_pk_bf16_f32 v%d, 0, v%d" % (e + j, e + j))
        for j in range(4):
            ops.append("v_mul_f32 v%d, s%d, v%d" % (e + j, S_C, e + j))
        if MIMIC:
            for j in range(4):
                ops.append("v_cvt_pk_bf16_f32 v%d, 0, v%d" % (e + j, e + j))
        for j in range(4):
            ops.append("v_fma_f32 v%d, v%d, s%d, -v%d" % (e + j, e + j, S_L2E, MRUN))
        for j in range(4):
            ops.append("v_exp_f32 v%d, v%d" % (e + j, e + j))
        if ROWSUM != "mfma":
            for j in range(4):
                ops.append("v_add_f32 v%d, v%d, v%d" % (LSUM + (j & 1), LSUM + (j & 1), e + j))
        ops.append("v_cvt_pk_bf16_f32 v%d, v%d, v%d" % (PB + 2 * g, e, e + 1))
        ops.append("v_cvt_pk_bf16_f32 v%d, v%d, v%d" % (PB + 2 * g + 1, e + 2, e + 3))
    return ops


def max_ops(S):
    ta, tb, t2 = T0, T0 + 1, T0 + 2
    ops = []
    a_ops = ["v_max3_f32 v%d, v%d, v%d, v%d" % (ta, S, S + 1, S + 2)]
    b_ops = ["v_max3_f32 v%d, v%d, v%d, v%d" % (tb, S + 16, S + 17, S + 18)]
    for i in range(6):
        a_ops.append("v_max3_f32 v%d, v%d, v%d, v%d" % (ta, ta, S + 3 + 2 * i, S + 4 + 2 * i))
        b_ops.append("v_max3_f32 v%d, v%d, v%d, v%d" % (tb, tb, S + 19 + 2 * i, S + 20 + 2 * i))
    for x, y in zip(a_ops, b_ops):
        ops += [x, y]
    ops.append("v_max3_f32 v%d, v%d, v%d, v%d" % (ta, ta, tb, S + 15))
    ops.append("v_max_f32 v%d, v%d, v%d" % (ta, ta, S + 31))
    ops.append("v_mov_b32 v%d, v%d" % (t2, ta))
    ops.append("v_add_f32 v%d, 0x41000000, v%d" % (tb, MRUN))
    ops.append("s_nop 0")
    ops.append("v_permlane32_swap_b32 v%d, v%d" % (ta, t2))
    ops.append("v_max_f32 v%d, v%d, v%d" % (ta, ta, t2))
    ops.append("v_cvt_pk_bf16_f32 v%d, 0, v%d" % (ta, ta))
    ops.append("v_mul_f32 v%d, s%d, v%d" % (ta, S_C, ta))
    ops.append("v_cvt_pk_bf16_f32 v%d, 0, v%d" % (ta, ta))
    ops.append("v_mul_f32 v%d, s%d, v%d" % (ta, S_L2E, ta))
    return ops


_lbl = [0]


def rescale_check():
    _lbl[0] += 1
    lb = "L_k3_skip%d" % _lbl[0]
    o = []
    o.append("v_cmp_gt_f32 vcc, v%d, v%d" % (T0, T0 + 1))
    o.append("s_nop 1")
    o.append("s_cbranch_vccz %s" % lb)
    o.append("s_nop 15")
    o.append("s_nop 7")
    o.append("v_max_f32 v%d, v%d, v%d" % (T0, T0, MRUN))
    o.append("v_sub_f32 v%d, v%d, v%d" % (T0 + 1, MRUN, T0))
    o.append("v_exp_f32 v%d, v%d" % (T0 + 1, T0 + 1))
    o.append("v_mov_b32 v%d, v%d" % (MRUN, T0))
    o.append("s_nop 0")
    o.append("v_mul_f32 v%d, v%d, v%d" % (LSUM, LSUM, T0 + 1))
    o.append("v_mul_f32 v%d, v%d, v%d" % (LSUM + 1, LSUM + 1, T0 + 1))
    for i in range(64):
        o.append("v_mul_f32 v%d, v%d, v%d" % (OACC + i, OACC + i, T0 + 1))
    o.append("s_nop 1")
    o.append(lb + ":")
    return o


def dma_k(slot):
    return ["s_mov_b32 m0, s%d" % S_M0K[slot],
            "s_nop 0",
            "buffer_load_dwordx4 v%d, s[8:11], s%d offen lds" % (DK0, S_KOFF),
            "buffer_load_dwordx4 v%d, s[8:11], s%d offen offset:1024 lds" % (DK1, S_KOFF),
            "s_add_u32 s%d, s%d, 16384" % (S_KOFF, S_KOFF)]


def dma_v(slot):
    return ["s_mov_b32 m0, s%d" % S_M0V[slot],
            "s_nop 0",
            "buffer_load_dwordx4 v%d, s[12:15], s%d offen lds" % (DV, S_VOFF),
            "buffer_load_dwordx4 v%d, s[12:15], s%d offen offset:1024 lds" % (DV, S_VOFF),
            "s_add_u32 s%d, s%d, 16384" % (S_VOFF, S_VOFF)]


def iter_items(t, do_qk=True, do_dma_k=True, do_dma_v=True):
    p = t & 1
    E = exp_ops(SB[p])
    if do_qk:
        items = qk_items((t + 1) % NSLOT, SB[1 - p]) + pv_items(t % NSLOT)
        M = max_ops(SB[1 - p])
        items[0].before = ["s_waitcnt vmcnt(0)", "s_barrier"] if not XNOBAR else []
        if XNODMA:
            do_dma_k = do_dma_v = False
        if XNOLDS:
            for it in items:
                it.reads = lambda fr: []
        k = 0
        for g in range(31):
            k2 = (len(E) * (g + 1) + 30) // 31
            items[g].after = E[k:k2]
            k = k2
        assert k == len(E), (k, len(E))
        k = 0
        for g in range(30, 36):
            items[g].after = items[g].after + M[k:k + 5]
            k += 5
        assert k >= len(M)
        items[35].after = items[35].after + rescale_check()
        if do_dma_k:
            items[1].after = items[1].after + dma_k(t % NSLOT)
        if do_dma_v:
            items[3].after = items[3].after + dma_v((t + 2) % NSLOT)
    else:
        items = pv_items(t % NSLOT)
        q4 = len(E) // 4
        items[0].before = E[:q4]
        k = q4
        for g in range(15):
            k2 = q4 + (3 * q4 * (g + 1) + 14) // 15
            items[g].after = E[k:k2]
            k = k2
        assert k == len(E), (k, len(E))
    return items


def pack_swap(a, acc, dst):
    for half in range(2):
        r = acc + 8 * half
        d = dst + 4 * half
        for j in range(4):
            a("v_cvt_pk_bf16_f32 v%d, v%d, v%d" % (d + j, r + 2 * j, r + 2 * j + 1))
    a("s_nop 1")
    for half in range(2):
        d = dst + 4 * half
        a("v_permlane32_swap_b32 v%d, v%d" % (d, d + 2))
        a("v_permlane32_swap_b32 v%d, v%d" % (d + 1, d + 3))


class VmTrack:
    def __init__(self):
        self.ops = []

    def add(self, tag, n=1):
        self.ops += [tag] * n

    def wait_for(self, tags):
        last = max(i for i, t in enumerate(self.ops) if t in tags)
        return len(self.ops) - 1 - last


def gen_attn(a):
    name = "k3_attn_kernel"
    kernel_header(a, name)
    a("s_cmp_ge_u32 s2, 256")
    a("s_cbranch_scc1 L_k3_done")
    stamp(a)
    rstamp(a, 90)
    a("s_load_dwordx4 s[4:7], s[0:1], %d" % KA["k"])
    a("s_load_dwordx2 s[28:29], s[0:1], %d" % KA["wq"])
    a("s_load_dwordx2 s[30:31], s[0:1], %d" % KA["ws"])
    a("s_and_b32 s52, s2, 31")
    a("s_lshr_b32 s53, s2, 5")
    a("v_lshrrev_b32 v4, 6, v0")
    a("v_and_b32 v5, 63, v0")
    a("v_readfirstlane_b32 s%d, v4" % S_WAVE)
    a("v_lshrrev_b32 v6, 5, v5")
    a("v_and_b32 v7, 31, v5")
    a("v_and_b32 v8, 15, v5")
    a("v_lshrrev_b32 v9, 4, v5")
    a("s_waitcnt lgkmcnt(0)")
    a("s_lshl_b32 s44, s52, 19")
    a("s_add_u32 s8, s4, s44")
    a("s_addc_u32 s9, s5, 0")
    a("s_mov_b32 s10, 524288")
    a("s_mov_b32 s11, 0x00020000")
    a("s_add_u32 s12, s6, s44")
    a("s_addc_u32 s13, s7, 0")
    a("s_mov_b32 s14, 524288")
    a("s_mov_b32 s15, 0x00020000")
    a("s_lshl_b32 s44, s52, 8")
    a("s_add_u32 s16, s28, s44")
    a("s_addc_u32 s17, s29, 0")
    a("s_sub_u32 s18, %d, s44" % (512 * 8192))
    a("s_mov_b32 s19, 0x00020000")
    a("s_lshl_b32 s45, s53, 18")
    a("s_add_u32 s45, s45, 0x%x" % WS_H1)
    a("s_add_u32 s20, s30, s45")
    a("s_addc_u32 s21, s31, 0")
    a("s_mov_b32 s22, 262144")
    a("s_mov_b32 s23, 0x00020000")
    a("s_lshl_b32 s45, s53, 21")
    a("s_add_u32 s45, s45, s44")
    a("s_add_u32 s45, s45, 0x%x" % WS_O)
    a("s_add_u32 s24, s30, s45")
    a("s_addc_u32 s25, s31, 0")
    a("s_sub_u32 s26, %d, s44" % (256 * 8192))
    a("s_mov_b32 s27, 0x00020000")
    a("s_mov_b32 s%d, 0x3db504f3" % S_C)
    a("s_mov_b32 s%d, 0x3fb8aa3b" % S_L2E)
    a("s_lshl_b32 s46, s%d, 11" % S_WAVE)
    for sl in range(NSLOT):
        a("s_add_u32 s%d, s46, %d" % (S_M0K[sl], KSLOT[sl]))
        a("s_add_u32 s%d, s46, %d" % (S_M0V[sl], VBASE + VSLOT[sl]))
    a("s_mov_b32 s%d, 0" % S_KOFF)
    a("s_mov_b32 s%d, 0" % S_VOFF)
    a("v_xor_b32 v10, v6, v8")
    a("v_lshlrev_b32 v10, 4, v10")
    a("v_lshl_add_u32 v%d, v7, 8, v10" % KAD)
    for s in range(1, 8):
        a("v_xor_b32 v%d, %d, v%d" % (KAD + s, s << 5, KAD))
    a("v_lshrrev_b32 v10, 2, v8")
    a("v_lshl_add_u32 v11, v6, 2, v10")
    a("v_lshlrev_b32 v11, 8, v11")
    a("v_and_b32 v12, 1, v9")
    a("v_lshl_add_u32 v11, v12, 5, v11")
    a("v_and_b32 v12, 3, v8")
    a("v_lshl_add_u32 v11, v12, 3, v11")
    for dt in range(4):
        a("v_xor_b32 v12, %d, v10" % dt)
        a("v_lshl_add_u32 v%d, v12, 6, v11" % (VAD + dt))
    a("s_lshl_b32 s47, s%d, 3" % S_WAVE)
    a("v_add_u32 v10, s47, v9")
    a("v_and_b32 v11, 15, v10")
    a("v_xor_b32 v11, v11, v8")
    a("v_lshlrev_b32 v11, 4, v11")
    a("v_lshl_add_u32 v%d, v10, 8, v11" % DK0)
    a("v_add_u32 v12, 4, v10")
    a("v_and_b32 v11, 15, v12")
    a("v_xor_b32 v11, v11, v8")
    a("v_lshlrev_b32 v11, 4, v11")
    a("v_lshl_add_u32 v%d, v10, 8, v11" % DK1)
    a("v_lshlrev_b32 v11, 2, v9")
    a("v_xor_b32 v11, v11, v8")
    a("v_lshlrev_b32 v11, 4, v11")
    a("v_lshl_add_u32 v%d, v10, 8, v11" % DV)
    a("v_lshl_add_u32 v13, v10, 13, v11")
    a("v_add_u32 v14, %d, v13" % (32768 - 1024))
    a("s_lshl_b32 s50, s%d, 15" % S_WAVE)
    a("v_lshlrev_b32 v15, 4, v5")
    a("v_add_u32 v15, s50, v15")
    a("s_lshl_b32 s47, s%d, 5" % S_WAVE)
    a("v_add_u32 v0, s47, v7")
    a("v_lshlrev_b32 v0, 13, v0")
    a("v_lshl_add_u32 v0, v6, 4, v0")
    a("v_lshlrev_b32 v12, 10, v6")
    a("v_add_u32 v12, %d, v12" % WQ_BASE)
    WA = 4
    for dt in range(4):
        a("v_add_u32 v%d, v12, v%d" % (WA + dt, VAD + dt))
        a("v_add_u32 v%d, %d, v%d" % (VAD + dt, VBASE, VAD + dt))
    H1F = 32
    vm = VmTrack()

    def wq_dma(c):
        a("s_add_u32 s48, s46, %d" % (WQ_BASE + (c & 3) * 16384))
        a("s_mov_b32 m0, s48")
        a("s_mov_b32 s49, %d" % (c * 64 * 8192))
        a("buffer_load_dwordx4 v13, s[16:19], s49 offen lds")
        a("buffer_load_dwordx4 v14, s[16:19], s49 offen offset:1024 lds")
        vm.add("W%d" % c, 2)

    def h1_loads(c):
        a("s_mov_b32 s51, %d" % (c * 4096))
        for s4 in range(4):
            ks = 4 * c + s4
            a("buffer_load_dwordx4 v[%d:%d], v15, s[20:23], s51 offen offset:%d" % (
                H1F + 4 * ks, H1F + 4 * ks + 3, 1024 * s4))
        vm.add("H%d" % c, 4)

    for c in range(2):
        wq_dma(c)
        h1_loads(c)
    stamp(a)
    for c in range(8):
        a("s_waitcnt vmcnt(%d)" % vm.wait_for(["W%d" % c, "H%d" % c]))
        a("s_barrier")
        if c in (0, 1, 4):
            stamp(a)
        if c + 2 < 8:
            wq_dma(c + 2)
            h1_loads(c + 2)
        if c == 5:
            for s in dma_k(0) + dma_k(1) + dma_v(0):
                a(s)
            vm.add("KV", 6)
        if c == 6:
            for s in dma_k(2) + dma_v(1):
                a(s)
            vm.add("KV", 4)
        cb = (c & 3) * 16384
        items = []
        for s4 in range(4):
            for dt in range(4):
                ks = 4 * c + s4
                def reads(fr, dt=dt, s4=s4, cb=cb):
                    return ["ds_read_b64_tr_b16 v[%d:%d], v%d offset:%d" % (fr, fr + 1, WA + dt, cb + s4 * 4096),
                            "ds_read_b64_tr_b16 v[%d:%d], v%d offset:%d" % (fr + 2, fr + 3, WA + dt, cb + s4 * 4096 + 1024)]
                def mf(fr, dt=dt, ks=ks):
                    d = OACC + 16 * dt
                    cc = "0" if ks == 0 else "v[%d:%d]" % (d, d + 15)
                    return "v_mfma_f32_32x32x16_bf16 v[%d:%d], v[%d:%d], v[%d:%d], %s" % (
                        d, d + 15, fr, fr + 3, H1F + 4 * ks, H1F + 4 * ks + 3, cc)
                items.append(Item(reads, mf))
        st = Stream(a, QF, 8, 6)
        st.run(items, False)
    a("s_nop 15")
    a("s_nop 7")
    for dt in range(4):
        pack_swap(a, OACC + 16 * dt, QF + 8 * dt)
    for i in range(64):
        a("v_mov_b32 v%d, 0" % (OACC + i))
    a("v_mov_b32 v%d, 0xff800000" % MRUN)
    for i in range(16):
        a("v_mov_b32 v%d, 0" % (LSUM + i))
    for i in range(4):
        a("v_mov_b32 v%d, 0x3f803f80" % (ONES + i))
    stamp(a)
    a("s_waitcnt vmcnt(0)")
    a("s_barrier")
    body = []
    for t in range(6):
        body += iter_items(t)
    assert len(body) % NPOOL == 0
    st = Stream(a, POOL, NPOOL, LOOK)
    q0 = qk_items(0, SB[0])
    assert len(q0) % NPOOL == 0
    st.run(q0, False, body)
    a("s_nop 15")
    a("s_nop 7")
    for s in max_ops(SB[0]) + rescale_check():
        st.emit(s)
    stamp(a)
    if PRIO:
        a("s_cmp_ge_u32 s%d, 4" % S_WAVE)
        a("s_cbranch_scc0 L_k3_noprio")
        a("s_setprio 1")
        a.label("L_k3_noprio")
    a("s_mov_b32 s%d, 5" % S_CNT)
    a.label("L_k3_loop")
    st.run(body, True, body)
    a("s_sub_u32 s%d, s%d, 1" % (S_CNT, S_CNT))
    a("s_cmp_lg_u32 s%d, 0" % S_CNT)
    a("s_cbranch_scc1 L_k3_loop")
    tail = iter_items(30, do_dma_k=False, do_dma_v=False) + iter_items(31, do_qk=False)
    st.run(tail, True)
    stamp(a)
    a("s_nop 15")
    a("s_nop 7")
    if ROWSUM != "mfma":
        a("v_add_f32 v%d, v%d, v%d" % (LSUM, LSUM, LSUM + 1))
        a("v_mov_b32 v%d, v%d" % (LSUM + 1, LSUM))
        a("s_nop 1")
        a("v_permlane32_swap_b32 v%d, v%d" % (LSUM, LSUM + 1))
        a("s_nop 1")
        a("v_add_f32 v%d, v%d, v%d" % (LSUM, LSUM, LSUM + 1))
    a("v_rcp_f32 v%d, v%d" % (L0, LSUM))
    a("s_nop 0")
    for dt in range(4):
        for i in range(16):
            a("v_mul_f32 v%d, v%d, v%d" % (OACC + 16 * dt + i, OACC + 16 * dt + i, L0))
        d = POOL + 8 * dt
        pack_swap(a, OACC + 16 * dt, d)
        a("buffer_store_dwordx4 v[%d:%d], v0, s[24:27], 0 offen offset:%d" % (d, d + 3, 64 * dt))
        a("buffer_store_dwordx4 v[%d:%d], v0, s[24:27], 0 offen offset:%d" % (d + 4, d + 7, 64 * dt + 32))
    stamp(a)
    stamp_flush(a)
    a.label("L_k3_done")
    a("s_endpgm")
    return name, 256
```

```python
from asmlib import *
import os
DIAG = os.environ.get("DIAG", "0") == "1"
WS_DIAG = 0x3000000
PRIO = int(os.environ.get("PRIO", "3"))
_stamp = [0]

OACC = 192
QF = 160
SB = [96, 128]
PB = 80
POOL = 48
NPOOL = 8
LOOK = 6
LSUM = 32
ONES = 12
KAD = 16
VAD = 20
DK0, DK1, DV0, DV1 = 28, 29, 30, 31
MP, M0, M1 = 1, 2, 3
T0 = 4

S_L2E = 32
S_WAVE = 33
S_C = 34
S_KOFF, S_VOFF = 35, 36
S_M0K = [37, 38, 39]
S_M0V = [40, 41, 42]
S_CNT = 43

NSLOT = 3
KSLOT = [0, 16384, 32768]
VBASE = 49152
VSLOT = [0, 16384, 32768]
WQ_BASE = 98304


def stamp(a):
    if not DIAG:
        return
    i = _stamp[0]
    _stamp[0] += 1
    a("s_memtime s[%d:%d]" % (60 + 2 * i, 61 + 2 * i))


def rstamp(a, reg):
    if DIAG:
        a("s_memrealtime s[%d:%d]" % (reg, reg + 1))


def stamp_flush(a):
    if not DIAG:
        return
    rstamp(a, 92)
    a("s_waitcnt lgkmcnt(0) vmcnt(0)")
    a("s_add_u32 s56, s30, 0x%x" % WS_DIAG)
    a("s_addc_u32 s57, s31, 0")
    a("s_mov_b32 s58, 0x100000")
    a("s_mov_b32 s59, 0x00020000")
    a("s_lshl_b32 s54, s2, 3")
    a("s_add_u32 s54, s54, s%d" % S_WAVE)
    a("s_lshl_b32 s54, s54, 6")
    a("v_mov_b32 v4, s54")
    for i in range(_stamp[0]):
        a("v_mov_b32 v5, s%d" % (60 + 2 * i))
        a("buffer_store_dword v5, v4, s[56:59], 0 offen offset:%d" % (4 * i))
    for i, r in enumerate((90, 92)):
        a("v_mov_b32 v5, s%d" % r)
        a("buffer_store_dword v5, v4, s[56:59], 0 offen offset:%d" % (48 + 4 * i))


def mfma(d, fa, fb, c):
    cs = "0" if c is None else "v[%d:%d]" % (c, c + 3)
    return "v_mfma_f32_16x16x32_bf16 v[%d:%d], v[%d:%d], v[%d:%d], %s" % (d, d + 3, fa, fa + 3, fb, fb + 3, cs)


class Item:
    def __init__(self, reads, mf, guard=False):
        self.reads = reads
        self.mf = mf
        self.guard = guard
        self.before = []
        self.after = [[] for _ in mf]


class Stream:
    def __init__(self, a, pool, npool, look):
        self.a, self.pool, self.npool, self.look = a, pool, npool, look
        self.since_cvt = 99

    def emit(self, s):
        if s.endswith(":"):
            self.a.label(s[:-1])
            return
        self.a(s)
        if s.startswith("v_cvt_pk") and ", 0, " not in s:
            self.since_cvt = 0
        else:
            self.since_cvt += 1

    def run(self, items, preissued, nxt=None):
        rd = [it for it in items if it.reads]
        nrd = len(rd)
        assert nrd % self.npool == 0 or nxt is None
        seq = rd + ([it for it in nxt if it.reads][:self.look] if nxt else [])
        issued = []

        def fr_of(k):
            return self.pool + 4 * (k % self.npool)

        def issue(k):
            for r in seq[k].reads(fr_of(k)):
                self.emit(r)
                issued.append(k)
        if preissued:
            for k in range(min(self.look, nrd)):
                issued += [k] * len(seq[k].reads(fr_of(k)))
        else:
            for k in range(min(self.look, len(seq))):
                issue(k)
        k = 0
        for it in items:
            for s in it.before:
                self.emit(s)
            fr = None
            if it.reads:
                fr = fr_of(k)
                later = sum(1 for j in issued if j > k)
                self.emit("s_waitcnt lgkmcnt(%d)" % later)
            for m, (f, aft) in enumerate(zip(it.mf, it.after)):
                if it.guard and self.since_cvt < 2:
                    self.emit("s_nop %d" % (1 - self.since_cvt))
                self.emit(f(fr))
                if m == len(it.mf) - 1 and it.reads:
                    if k + self.look < len(seq):
                        issue(k + self.look)
                    k += 1
                for s in aft:
                    self.emit(s)


def qk_items(kslot, S):
    items = []
    for kt in range(4):
        for s in range(4):
            off = KSLOT[kslot] + kt * 4096
            def reads(fr, s=s, off=off):
                return ["ds_read_b128 v[%d:%d], v%d offset:%d" % (fr, fr + 3, KAD + s, off)]
            mfs = []
            for qt in range(2):
                d = S + 8 * kt + 4 * qt
                mfs.append(lambda fr, d=d, s=s, qt=qt: mfma(d, fr, QF + 16 * qt + 4 * s, None if s == 0 else d))
            items.append(Item(reads, mfs))
    return items


def pv_items(vslot):
    items = []
    for ks in range(2):
        for dt in range(8):
            off = VSLOT[vslot] + ks * 8192
            def reads(fr, dt=dt, off=off):
                return ["ds_read_b64_tr_b16 v[%d:%d], v%d offset:%d" % (fr, fr + 1, VAD + dt, off),
                        "ds_read_b64_tr_b16 v[%d:%d], v%d offset:%d" % (fr + 2, fr + 3, VAD + dt, off + 4096)]
            mfs = []
            for qt in range(2):
                d = OACC + 8 * dt + 4 * qt
                mfs.append(lambda fr, d=d, ks=ks, qt=qt: mfma(d, fr, PB + 8 * ks + 4 * qt, d))
            items.append(Item(reads, mfs, True))
        mfs = []
        for qt in range(2):
            d = LSUM + 4 * qt
            mfs.append(lambda fr, d=d, ks=ks, qt=qt: mfma(d, ONES, PB + 8 * ks + 4 * qt, d))
        items.append(Item(None, mfs, True))
    return items


def exp_ops(S):
    ops = []
    for kt in range(4):
        for qt in range(2):
            e = S + 8 * kt + 4 * qt
            m = M0 if qt == 0 else M1
            for j in range(4):
                ops.append("v_cvt_pk_bf16_f32 v%d, 0, v%d" % (e + j, e + j))
            for j in range(4):
                ops.append("v_mul_f32 v%d, s%d, v%d" % (e + j, S_C, e + j))
            for j in range(4):
                ops.append("v_cvt_pk_bf16_f32 v%d, 0, v%d" % (e + j, e + j))
            for j in range(4):
                ops.append("v_fma_f32 v%d, v%d, s%d, -v%d" % (e + j, e + j, S_L2E, m))
            for j in range(4):
                ops.append("v_exp_f32 v%d, v%d" % (e + j, e + j))
            p = PB + 8 * (kt >> 1) + 4 * qt + 2 * (kt & 1)
            ops.append("v_cvt_pk_bf16_f32 v%d, v%d, v%d" % (p, e, e + 1))
            ops.append("v_cvt_pk_bf16_f32 v%d, v%d, v%d" % (p + 1, e + 2, e + 3))
    return ops


def max_ops(S):
    ta, tb, t2 = T0, T0 + 1, T0 + 2
    chains = []
    for qt, t in ((0, ta), (1, tb)):
        v = [S + 8 * kt + 4 * qt + r for kt in range(4) for r in range(4)]
        c = ["v_max3_f32 v%d, v%d, v%d, v%d" % (t, v[0], v[1], v[2])]
        for i in range(6):
            c.append("v_max3_f32 v%d, v%d, v%d, v%d" % (t, t, v[3 + 2 * i], v[4 + 2 * i]))
        c.append("v_max_f32 v%d, v%d, v%d" % (t, t, v[15]))
        chains.append(c)
    ops = []
    for x, y in zip(*chains):
        ops += [x, y]
    ops.append("s_nop 1")
    ops.append("v_permlane32_swap_b32 v%d, v%d" % (ta, tb))
    ops.append("v_max_f32 v%d, v%d, v%d" % (ta, ta, tb))
    ops.append("v_mov_b32 v%d, v%d" % (t2, ta))
    ops.append("v_add_f32 v%d, 0x41000000, v%d" % (tb, MP))
    ops.append("s_nop 0")
    ops.append("v_permlane16_swap_b32 v%d, v%d" % (ta, t2))
    ops.append("v_max_f32 v%d, v%d, v%d" % (ta, ta, t2))
    ops.append("v_cvt_pk_bf16_f32 v%d, 0, v%d" % (ta, ta))
    ops.append("v_mul_f32 v%d, s%d, v%d" % (ta, S_C, ta))
    ops.append("v_cvt_pk_bf16_f32 v%d, 0, v%d" % (ta, ta))
    ops.append("v_mul_f32 v%d, s%d, v%d" % (ta, S_L2E, ta))
    return ops


_lbl = [0]


def rescale_check():
    _lbl[0] += 1
    lb = "L_k3_skip%d" % _lbl[0]
    f0, f1 = T0 + 1, T0 + 2
    o = []
    o.append("v_cmp_gt_f32 vcc, v%d, v%d" % (T0, T0 + 1))
    o.append("s_nop 1")
    o.append("s_cbranch_vccz %s" % lb)
    o.append("s_nop 15")
    o.append("v_max_f32 v%d, v%d, v%d" % (T0, T0, MP))
    o.append("v_sub_f32 v%d, v%d, v%d" % (f0, MP, T0))
    o.append("v_exp_f32 v%d, v%d" % (f0, f0))
    o.append("v_mov_b32 v%d, v%d" % (MP, T0))
    o.append("v_mov_b32 v%d, v%d" % (M0, T0))
    o.append("v_mov_b32 v%d, v%d" % (M1, T0))
    o.append("v_mov_b32 v%d, v%d" % (f1, f0))
    o.append("s_nop 1")
    o.append("v_permlane32_swap_b32 v%d, v%d" % (M0, M1))
    o.append("v_permlane32_swap_b32 v%d, v%d" % (f0, f1))
    o.append("s_nop 1")
    o.append("v_mul_f32 v%d, v%d, v%d" % (LSUM, LSUM, f0))
    o.append("v_mul_f32 v%d, v%d, v%d" % (LSUM + 4, LSUM + 4, f1))
    for dt in range(8):
        for qt in range(2):
            for r in range(4):
                x = OACC + 8 * dt + 4 * qt + r
                o.append("v_mul_f32 v%d, v%d, v%d" % (x, x, f0 if qt == 0 else f1))
    o.append("s_nop 1")
    o.append(lb + ":")
    return o


def dma_k(slot):
    return ["s_mov_b32 m0, s%d" % S_M0K[slot],
            "s_nop 0",
            "buffer_load_dwordx4 v%d, s[8:11], s%d offen lds" % (DK0, S_KOFF),
            "buffer_load_dwordx4 v%d, s[8:11], s%d offen offset:1024 lds" % (DK1, S_KOFF),
            "s_add_u32 s%d, s%d, 16384" % (S_KOFF, S_KOFF)]


def dma_v(slot):
    return ["s_mov_b32 m0, s%d" % S_M0V[slot],
            "s_nop 0",
            "buffer_load_dwordx4 v%d, s[12:15], s%d offen lds" % (DV0, S_VOFF),
            "buffer_load_dwordx4 v%d, s[12:15], s%d offen offset:1024 lds" % (DV1, S_VOFF),
            "s_add_u32 s%d, s%d, 16384" % (S_VOFF, S_VOFF)]


def slots_of(items):
    return [(it, m) for it in items for m in range(len(it.mf))]


def spread(slots, lo, hi, ops):
    n = hi - lo
    k = 0
    for g in range(n):
        k2 = (len(ops) * (g + 1) + n - 1) // n
        it, m = slots[lo + g]
        it.after[m] = it.after[m] + ops[k:k2]
        k = k2
    assert k == len(ops)


def iter_items(t, do_qk=True, do_dma_k=True, do_dma_v=True, safe=True):
    p = t & 1
    E = exp_ops(SB[p])
    if do_qk:
        items = qk_items((t + 1) % NSLOT, SB[1 - p]) + pv_items(t % NSLOT)
        sl = slots_of(items)
        assert len(sl) == 68
        items[0].before = ["s_waitcnt vmcnt(0)", "s_barrier"]
        spread(sl, 0, 49, E)
        if safe:
            spread(sl, 52, 68, max_ops(SB[1 - p]))
            it, m = sl[67]
            it.after[m] = it.after[m] + rescale_check()
        if PRIO == 3:
            for pr, sidx in ((3, 0), (2, 17), (1, 34), (0, 51)):
                it, m = sl[sidx]
                it.after[m] = ["s_setprio %d" % pr] + it.after[m]
        if PRIO == 2:
            for pr, sidx in ((1, 0), (0, 34)):
                it, m = sl[sidx]
                it.after[m] = ["s_setprio %d" % pr] + it.after[m]
        if do_dma_k:
            it, m = sl[2]
            it.after[m] = it.after[m] + dma_k(t % NSLOT)
        if do_dma_v:
            it, m = sl[6]
            it.after[m] = it.after[m] + dma_v((t + 2) % NSLOT)
    else:
        items = pv_items(t % NSLOT)
        sl = slots_of(items)
        items[0].before = E[:88]
        spread(sl, 0, 17, E[88:])
    return items


class VmTrack:
    def __init__(self):
        self.ops = []

    def add(self, tag, n=1):
        self.ops += [tag] * n

    def wait_for(self, tags):
        last = max(i for i, t in enumerate(self.ops) if t in tags)
        return len(self.ops) - 1 - last


def lds_tile_write(a, wreg, scale=None):
    for dt in range(8):
        a("v_xor_b32 v%d, %d, v%d" % (T0 + 4, dt << 5, wreg))
        for qt in range(2):
            x = OACC + 8 * dt + 4 * qt
            if scale is not None:
                for r in range(4):
                    a("v_mul_f32 v%d, v%d, v%d" % (x + r, x + r, scale[qt]))
            t = POOL + 4 * dt + 2 * qt
            a("v_cvt_pk_bf16_f32 v%d, v%d, v%d" % (t, x, x + 1))
            a("v_cvt_pk_bf16_f32 v%d, v%d, v%d" % (t + 1, x + 2, x + 3))
            a("ds_write_b64 v%d, v[%d:%d] offset:%d" % (T0 + 4, t, t + 1, qt * 4096))


def gen_attn(a):
    name = "k3_attn_kernel"
    kernel_header(a, name)
    a("s_cmp_ge_u32 s2, 256")
    a("s_cbranch_scc1 L_k3_done")
    stamp(a)
    rstamp(a, 90)
    a("s_load_dwordx4 s[4:7], s[0:1], %d" % KA["k"])
    a("s_load_dwordx2 s[28:29], s[0:1], %d" % KA["wq"])
    a("s_load_dwordx2 s[30:31], s[0:1], %d" % KA["ws"])
    a("s_and_b32 s52, s2, 31")
    a("s_lshr_b32 s53, s2, 5")
    a("v_lshrrev_b32 v4, 6, v0")
    a("v_and_b32 v5, 63, v0")
    a("v_readfirstlane_b32 s%d, v4" % S_WAVE)
    a("v_and_b32 v8, 15, v5")
    a("v_lshrrev_b32 v9, 4, v5")
    a("s_waitcnt lgkmcnt(0)")
    a("s_lshl_b32 s44, s52, 19")
    a("s_add_u32 s8, s4, s44")
    a("s_addc_u32 s9, s5, 0")
    a("s_mov_b32 s10, 524288")
    a("s_mov_b32 s11, 0x00020000")
    a("s_add_u32 s12, s6, s44")
    a("s_addc_u32 s13, s7, 0")
    a("s_mov_b32 s14, 524288")
    a("s_mov_b32 s15, 0x00020000")
    a("s_lshl_b32 s44, s52, 8")
    a("s_add_u32 s16, s28, s44")
    a("s_addc_u32 s17, s29, 0")
    a("s_sub_u32 s18, %d, s44" % (512 * 8192))
    a("s_mov_b32 s19, 0x00020000")
    a("s_lshl_b32 s45, s53, 18")
    a("s_add_u32 s45, s45, 0x%x" % WS_H1)
    a("s_add_u32 s20, s30, s45")
    a("s_addc_u32 s21, s31, 0")
    a("s_mov_b32 s22, 262144")
    a("s_mov_b32 s23, 0x00020000")
    a("s_lshl_b32 s45, s53, 21")
    a("s_add_u32 s45, s45, s44")
    a("s_add_u32 s45, s45, 0x%x" % WS_O)
    a("s_add_u32 s24, s30, s45")
    a("s_addc_u32 s25, s31, 0")
    a("s_sub_u32 s26, %d, s44" % (256 * 8192))
    a("s_mov_b32 s27, 0x00020000")
    a("s_mov_b32 s%d, 0x3db504f3" % S_C)
    a("s_mov_b32 s%d, 0x3fb8aa3b" % S_L2E)
    a("s_lshl_b32 s46, s%d, 11" % S_WAVE)
    for sl in range(NSLOT):
        a("s_add_u32 s%d, s46, %d" % (S_M0K[sl], KSLOT[sl]))
        a("s_add_u32 s%d, s46, %d" % (S_M0V[sl], VBASE + VSLOT[sl]))
    a("s_mov_b32 s%d, 0" % S_KOFF)
    a("s_mov_b32 s%d, 0" % S_VOFF)
    a("v_xor_b32 v10, v9, v8")
    a("v_lshlrev_b32 v10, 4, v10")
    a("v_lshl_add_u32 v%d, v8, 8, v10" % KAD)
    for s in range(1, 4):
        a("v_xor_b32 v%d, %d, v%d" % (KAD + s, s << 6, KAD))
    a("v_lshrrev_b32 v10, 2, v8")
    a("v_lshl_add_u32 v11, v9, 2, v10")
    a("v_and_b32 v12, 7, v11")
    a("v_lshlrev_b32 v11, 8, v11")
    a("v_lshl_add_u32 v11, v12, 5, v11")
    a("v_and_b32 v12, 3, v8")
    a("v_lshl_add_u32 v%d, v12, 3, v11" % VAD)
    for dt in range(1, 8):
        a("v_xor_b32 v%d, %d, v%d" % (VAD + dt, dt << 5, VAD))
    a("s_lshl_b32 s47, s%d, 3" % S_WAVE)
    a("v_add_u32 v10, s47, v9")
    a("v_and_b32 v11, 15, v10")
    a("v_xor_b32 v11, v11, v8")
    a("v_lshlrev_b32 v11, 4, v11")
    a("v_lshl_add_u32 v%d, v10, 8, v11" % DK0)
    a("v_add_u32 v12, 4, v10")
    a("v_and_b32 v11, 15, v12")
    a("v_xor_b32 v11, v11, v8")
    a("v_lshlrev_b32 v11, 4, v11")
    a("v_lshl_add_u32 v%d, v10, 8, v11" % DK1)
    a("v_lshlrev_b32 v11, 1, v9")
    a("v_xor_b32 v11, v11, v8")
    a("v_lshlrev_b32 v11, 4, v11")
    a("v_xor_b32 v12, 0x80, v11")
    a("v_lshl_add_u32 v%d, v10, 8, v11" % DV0)
    a("v_lshl_add_u32 v%d, v10, 8, v12" % DV1)
    a("v_lshl_add_u32 v13, v10, 13, v11")
    a("v_lshl_add_u32 v14, v10, 13, v12")
    a("v_add_u32 v14, %d, v14" % (32768 - 1024))
    a("s_lshl_b32 s50, s%d, 15" % S_WAVE)
    a("v_lshlrev_b32 v15, 4, v5")
    a("v_add_u32 v15, s50, v15")
    a("v_lshrrev_b32 v10, 1, v9")
    a("v_xor_b32 v10, v10, v8")
    a("v_lshlrev_b32 v10, 4, v10")
    a("v_lshl_add_u32 v10, v8, 8, v10")
    a("v_and_b32 v11, 1, v9")
    a("v_lshl_add_u32 v10, v11, 3, v10")
    a("s_lshl_b32 s55, s%d, 13" % S_WAVE)
    a("s_add_u32 s55, s55, %d" % WQ_BASE)
    a("v_add_u32 v6, s55, v10")
    a("s_lshl_b32 s47, s%d, 5" % S_WAVE)
    a("v_add_u32 v0, s47, v9")
    a("v_lshlrev_b32 v0, 13, v0")
    a("v_lshl_add_u32 v0, v8, 4, v0")
    a("v_mov_b32 v7, v9")
    a("v_mov_b32 v5, v8")
    WA = 40
    H1F = 32
    WA = 4
    vm = VmTrack()

    def wq_dma(c):
        a("s_add_u32 s48, s46, %d" % (WQ_BASE + (c & 3) * 16384))
        a("s_mov_b32 m0, s48")
        a("s_mov_b32 s49, %d" % (c * 64 * 8192))
        a("buffer_load_dwordx4 v13, s[16:19], s49 offen lds")
        a("buffer_load_dwordx4 v14, s[16:19], s49 offen offset:1024 lds")
        vm.add("W%d" % c, 2)

    def h1_loads(c):
        a("s_mov_b32 s51, %d" % (c * 4096))
        for i in range(4):
            f = H1F + 16 * c + 4 * i
            a("buffer_load_dwordx4 v[%d:%d], v15, s[20:23], s51 offen offset:%d" % (f, f + 3, 1024 * i))
        vm.add("H%d" % c, 4)

    for dt in range(8):
        a("v_add_u32 v%d, %d, v%d" % (VAD + dt, WQ_BASE, VAD + dt))
    for c in range(2):
        wq_dma(c)
        h1_loads(c)
    stamp(a)
    for c in range(8):
        a("s_waitcnt vmcnt(%d)" % vm.wait_for(["W%d" % c, "H%d" % c]))
        a("s_barrier")
        if c in (0, 1, 4):
            stamp(a)
        if c + 2 < 8:
            wq_dma(c + 2)
            h1_loads(c + 2)
        if c == 5:
            for s in dma_k(0) + dma_k(1) + dma_v(0):
                a(s)
            vm.add("KV", 6)
        if c == 6:
            for s in dma_k(2) + dma_v(1):
                a(s)
            vm.add("KV", 4)
        cb = (c & 3) * 16384
        items = []
        for s2 in range(2):
            for dt in range(8):
                s = 2 * c + s2
                def reads(fr, dt=dt, s2=s2, cb=cb):
                    return ["ds_read_b64_tr_b16 v[%d:%d], v%d offset:%d" % (fr, fr + 1, VAD + dt, cb + s2 * 8192),
                            "ds_read_b64_tr_b16 v[%d:%d], v%d offset:%d" % (fr + 2, fr + 3, VAD + dt, cb + s2 * 8192 + 4096)]
                mfs = []
                for qt in range(2):
                    d = OACC + 8 * dt + 4 * qt
                    mfs.append(lambda fr, d=d, s=s, qt=qt: mfma(d, fr, H1F + 8 * s + 4 * qt, None if s == 0 else d))
                items.append(Item(reads, mfs))
        st = Stream(a, QF, 8, 6)
        st.run(items, False)
    a("s_nop 15")
    a("s_barrier")
    for dt in range(8):
        a("v_add_u32 v%d, %d, v%d" % (VAD + dt, VBASE - WQ_BASE, VAD + dt))
    a("v_mov_b32 v40, v6")
    a("v_mov_b32 v41, v7")
    a("v_mov_b32 v42, v5")
    lds_tile_write(a, 6)
    for s in range(4):
        a("v_add_u32 v%d, s55, v%d" % (T0 + 4 + s, KAD + s))
    a("s_waitcnt lgkmcnt(0)")
    for qt in range(2):
        for s in range(4):
            f = QF + 16 * qt + 4 * s
            a("ds_read_b128 v[%d:%d], v%d offset:%d" % (f, f + 3, T0 + 4 + s, qt * 4096))
    for i in range(4):
        a("v_mov_b32 v%d, 0x3f803f80" % (ONES + i))

    def main_part(safe, tag):
        for i in range(64):
            a("v_mov_b32 v%d, 0" % (OACC + i))
        for r in (MP, M0, M1):
            a("v_mov_b32 v%d, 0xff800000" % r)
        for i in range(8):
            a("v_mov_b32 v%d, 0" % (LSUM + i))
        if not safe:
            stamp(a)
        a("s_waitcnt vmcnt(0) lgkmcnt(0)")
        a("s_barrier")
        body = []
        for t in range(6):
            body += iter_items(t, safe=safe)
        st = Stream(a, POOL, NPOOL, LOOK)
        q0 = qk_items(0, SB[0])
        st.run(q0, False, body)
        a("s_nop 15")
        for s in max_ops(SB[0]) + rescale_check():
            st.emit(s)
        if not safe:
            stamp(a)
        a("s_mov_b32 s%d, 5" % S_CNT)
        a.label("L_k3_loop" + tag)
        st.run(body, True, body)
        a("s_sub_u32 s%d, s%d, 1" % (S_CNT, S_CNT))
        a("s_cmp_lg_u32 s%d, 0" % S_CNT)
        a("s_cbranch_scc1 L_k3_loop" + tag)
        tail = iter_items(30, do_dma_k=False, do_dma_v=False, safe=safe) + iter_items(31, do_qk=False)
        st.run(tail, True)
        a("s_setprio 0")

    main_part(False, "f")
    a("s_nop 15")
    a("v_max_f32 v%d, v%d, v%d" % (T0, LSUM, LSUM + 4))
    a("v_mov_b32 v%d, 0x5f800000" % (T0 + 1))
    a("v_cmp_nlt_f32 vcc, v%d, v%d" % (LSUM, T0 + 1))
    a("v_cmp_nlt_f32 s[48:49], v%d, v%d" % (LSUM + 4, T0 + 1))
    a("s_nop 1")
    a("s_or_b64 s[48:49], s[48:49], vcc")
    a("s_cmp_lg_u64 s[48:49], 0")
    a("s_cselect_b32 s47, 1, 0")
    a("v_mov_b32 v%d, s47" % T0)
    a("s_lshl_b32 s47, s%d, 2" % S_WAVE)
    a("v_mov_b32 v%d, s47" % (T0 + 1))
    a("ds_write_b32 v%d, v%d offset:%d" % (T0 + 1, T0, KSLOT[2]))
    a("s_waitcnt lgkmcnt(0)")
    a("s_barrier")
    a("v_mov_b32 v%d, 0" % (T0 + 1))
    a("ds_read_b128 v[%d:%d], v%d offset:%d" % (POOL, POOL + 3, T0 + 1, KSLOT[2]))
    a("ds_read_b128 v[%d:%d], v%d offset:%d" % (POOL + 4, POOL + 7, T0 + 1, KSLOT[2] + 16))
    a("s_waitcnt lgkmcnt(0)")
    for i in range(1, 8):
        a("v_or_b32 v%d, v%d, v%d" % (POOL, POOL, POOL + i))
    a("s_nop 0")
    a("v_readfirstlane_b32 s47, v%d" % POOL)
    a("s_cmp_eq_u32 s47, 0")
    a("s_cbranch_scc1 L_k3_epi")
    a("s_barrier")
    a("s_mov_b32 s%d, 0" % S_KOFF)
    a("s_mov_b32 s%d, 0" % S_VOFF)
    for s in dma_k(0) + dma_k(1) + dma_v(0) + dma_k(2) + dma_v(1):
        a(s)
    main_part(True, "s")
    a.label("L_k3_epi")
    stamp(a)
    a("s_nop 15")
    a("v_rcp_f32 v%d, v%d" % (M0, LSUM))
    a("v_rcp_f32 v%d, v%d" % (M1, LSUM + 4))
    a("s_nop 0")
    lds_tile_write(a, 40, scale=(M0, M1))
    for i in range(4):
        a("v_add_u32 v%d, %d, v41" % (T0 + 4, 4 * i))
        a("v_xor_b32 v%d, v%d, v42" % (T0 + 5, T0 + 4))
        a("v_lshlrev_b32 v%d, 4, v%d" % (T0 + 5, T0 + 5))
        a("v_lshl_add_u32 v%d, v%d, 8, v%d" % (T0 + 5, T0 + 4, T0 + 5))
        a("v_add_u32 v%d, s55, v%d" % (KAD + i, T0 + 5))
    a("s_waitcnt lgkmcnt(0)")
    for i in range(8):
        f = SB[0] + 4 * i
        a("ds_read_b128 v[%d:%d], v%d offset:%d" % (f, f + 3, KAD + (i & 3), (i >> 2) * 4096))
    for i in range(8):
        f = SB[0] + 4 * i
        a("s_waitcnt lgkmcnt(%d)" % (7 - i))
        a("s_mov_b32 s47, %d" % (i * 4 * 8192))
        a("buffer_store_dwordx4 v[%d:%d], v0, s[24:27], s47 offen" % (f, f + 3))
    stamp(a)
    stamp_flush(a)
    a.label("L_k3_done")
    a("s_endpgm")
    return name, 256
```

```python
from asmlib import *
from small import *


def signal(a, srd_dbg, off, tmpv):
    a("s_waitcnt vmcnt(0) lgkmcnt(0)")
    a("s_barrier")
    a("v_mov_b32 v%d, 1" % tmpv)
    a("v_mov_b32 v%d, 0" % (tmpv + 1))
    a("v_cmp_eq_u32 vcc, 0, v0")
    a("s_and_saveexec_b64 s[48:49], vcc")
    a("buffer_atomic_add v%d, v%d, s[%d:%d], 0 offen offset:%d" % (tmpv, tmpv + 1, srd_dbg, srd_dbg + 3, off))
    a("s_mov_b64 exec, s[48:49]")


_wl = [0]


def wait_counter(a, srd_dbg, off, target, swave, tmpv):
    _wl[0] += 1
    lp, dn = "L_poll%d" % _wl[0], "L_polldone%d" % _wl[0]
    a("s_cmp_lg_u32 s%d, 0" % swave)
    a("s_cbranch_scc1 %s" % dn)
    a("v_mov_b32 v%d, 0" % (tmpv + 1))
    a.label(lp)
    a("buffer_load_dword v%d, v%d, s[%d:%d], 0 offen offset:%d sc1" % (tmpv, tmpv + 1, srd_dbg, srd_dbg + 3, off))
    a("s_waitcnt vmcnt(0)")
    a("v_readfirstlane_b32 s58, v%d" % tmpv)
    a("s_cmp_ge_u32 s58, %d" % target)
    a("s_cbranch_scc1 %s" % dn)
    a("s_sleep 2")
    a("s_branch %s" % lp)
    a.label(dn)
    a("s_barrier")


def gen_k12(a):
    name = "k1_modln_kernel"
    kernel_header(a, name)
    a("s_cmp_ge_u32 s2, 256")
    a("s_cbranch_scc1 L_k12_done")
    a("s_load_dwordx2 s[50:51], s[0:1], %d" % KA["x"])
    a("s_load_dwordx4 s[4:7], s[0:1], %d" % KA["c"])
    a("s_load_dwordx4 s[20:23], s[0:1], %d" % KA["dbg"])
    a("v_and_b32 v1, 63, v0")
    a("v_lshrrev_b32 v2, 6, v0")
    a("s_nop 0")
    a("v_readfirstlane_b32 s52, v2")
    a("s_waitcnt lgkmcnt(0)")
    srd_from(a, 8, 4, 0, 1024)
    srd_from(a, 12, 6, 0, 512 * 6144)
    srd_from(a, 16, 22, WS_MOD, 3072 * 4)
    srd_from(a, 24, 50, 0, 2048 * 1024)
    srd_from(a, 28, 22, WS_H1, 2048 * 1024)
    srd_from(a, 32, 20, 0, 256)
    a("s_lshl_b32 s53, s2, 13")
    a("v_lshlrev_b32 v3, 10, v2")
    a("v_lshlrev_b32 v4, 4, v1")
    a("v_add3_u32 v3, v3, v4, s53")
    a("buffer_load_dwordx4 v[108:111], v3, s[24:27], 0 offen")
    a("s_cmp_ge_u32 s2, 48")
    a("s_cbranch_scc1 L_k12_ln")
    a("s_cmp_ge_u32 s52, 4")
    a("s_cbranch_scc1 L_k12_gskip")
    a("v_and_b32 v5, 7, v0")
    a("v_lshrrev_b32 v6, 3, v0")
    a("v_lshlrev_b32 v7, 5, v6")
    a("buffer_load_dwordx4 v[8:11], v7, s[8:11], 0 offen")
    a("buffer_load_dwordx4 v[12:15], v7, s[8:11], 0 offen offset:16")
    a("s_mov_b32 s53, %d" % (16 * 6144))
    a("v_mul_lo_u32 v7, v6, s53")
    a("v_lshl_add_u32 v7, v5, 4, v7")
    a("s_lshl_b32 s53, s2, 7")
    a("v_add_u32 v7, s53, v7")
    for i in range(16):
        a("s_mov_b32 s54, %d" % (i * 6144))
        a("buffer_load_dwordx4 v[%d:%d], v7, s[12:15], s54 offen" % (32 + 4 * i, 35 + 4 * i))
    a("s_waitcnt vmcnt(16)")
    for i in range(8):
        unpack_bf16(a, 8 + i, 16 + 2 * i, 17 + 2 * i)
    for i in range(16):
        silu_reg(a, 16 + i, 104)
        round_bf16(a, 16 + i)
    for j in range(8):
        a("v_mov_b32 v%d, 0" % (96 + j))
    for i in range(16):
        a("s_waitcnt vmcnt(%d)" % (15 - i))
        for d in range(4):
            unpack_bf16(a, 32 + 4 * i + d, 104, 105)
            a("v_fmac_f32 v%d, v%d, v104" % (96 + 2 * d, 16 + i))
            a("v_fmac_f32 v%d, v%d, v105" % (97 + 2 * d, 16 + i))
    a("v_lshlrev_b32 v7, 8, v6")
    a("v_lshl_add_u32 v7, v5, 5, v7")
    a("ds_write_b128 v7, v[96:99]")
    a("ds_write_b128 v7, v[100:103] offset:16")
    a("s_waitcnt lgkmcnt(0)")
    a.label("L_k12_gskip")
    a("s_barrier")
    a("s_cmp_lg_u32 s52, 0")
    a("s_cbranch_scc1 L_k12_rskip")
    a("v_lshlrev_b32 v7, 2, v0")
    for g in range(32):
        a("ds_read_b32 v%d, v7 offset:%d" % (32 + g, g * 256))
    a("s_waitcnt lgkmcnt(0)")
    for g in range(1, 32):
        a("v_add_f32 v32, v32, v%d" % (32 + g))
    round_bf16(a, 32)
    a("s_lshl_b32 s53, s2, 8")
    a("v_add_u32 v7, s53, v7")
    a("buffer_store_dword v32, v7, s[16:19], 0 offen sc1")
    a.label("L_k12_rskip")
    signal(a, 32, 0, 5)
    a.label("L_k12_ln")
    a("s_waitcnt vmcnt(0)")
    for i in range(4):
        unpack_bf16(a, 108 + i, 16 + 2 * i, 17 + 2 * i)
    layernorm8(a, 16, 40)
    wait_counter(a, 32, 0, 48, 52, 5)
    a("v_lshlrev_b32 v5, 5, v1")
    a("buffer_load_dwordx4 v[24:27], v5, s[16:19], 0 offen sc1")
    a("buffer_load_dwordx4 v[28:31], v5, s[16:19], 0 offen offset:16 sc1")
    a("buffer_load_dwordx4 v[32:35], v5, s[16:19], 0 offen offset:2048 sc1")
    a("buffer_load_dwordx4 v[36:39], v5, s[16:19], 0 offen offset:2064 sc1")
    a("s_lshl_b32 s53, s2, 3")
    a("v_add_u32 v40, s53, v2")
    a("v_lshrrev_b32 v41, 5, v40")
    a("v_lshlrev_b32 v41, 15, v41")
    a("v_lshrrev_b32 v42, 1, v1")
    a("v_lshl_add_u32 v41, v42, 10, v41")
    a("v_and_b32 v42, 1, v1")
    a("v_lshl_add_u32 v41, v42, 9, v41")
    a("v_and_b32 v42, 31, v40")
    a("v_lshl_add_u32 v41, v42, 4, v41")
    a("s_waitcnt vmcnt(0)")
    modulate8(a, 16, 32, 24, 44)
    pack8(a, 16, 8)
    a("buffer_store_dwordx4 v[8:11], v41, s[28:31], 0 offen")
    a.label("L_k12_done")
    a("s_endpgm")
    return name, 112


def gen_tail(a, nsplit=4):
    name = "k5_tail_kernel"
    kernel_header(a, name)
    GB, UB, DB, XB = 8192, 40960, 73728, 0
    TK = XB + 4096
    GUB = XB + 6144
    a("s_cmp_ge_u32 s2, 256")
    a("s_cbranch_scc1 L_k5_done")
    a("s_load_dwordx2 s[4:5], s[0:1], %d" % KA["x"])
    a("s_load_dwordx4 s[60:63], s[0:1], %d" % KA["wr"])
    a("s_load_dwordx4 s[64:67], s[0:1], %d" % KA["wu"])
    a("s_load_dwordx2 s[68:69], s[0:1], %d" % KA["out"])
    a("s_load_dwordx4 s[20:23], s[0:1], %d" % KA["dbg"])
    a("v_and_b32 v1, 63, v0")
    a("v_lshrrev_b32 v2, 6, v0")
    a("s_nop 0")
    a("v_readfirstlane_b32 s52, v2")
    a("s_waitcnt lgkmcnt(0)")
    srd_from(a, 8, 4, 0, 2048 * 1024)
    srd_from(a, 12, 22, WS_MOD, 3072 * 4)
    srd_from(a, 16, 22, WS_PART, nsplit * 2048 * 2048)
    srd_from(a, 24, 60, 0, 1024)
    srd_from(a, 28, 68, 0, 2048 * 1024)
    srd_from(a, 32, 22, WS_X1, 2048 * 1024)
    srd_from(a, 36, 22, WS_H2, 2048 * 1024)
    srd_from(a, 72, 22, WS_R, 2048 * 4)
    srd_from(a, 76, 20, 0, 256)
    srd_from(a, 80, 62, 0, 512 * 3584)
    srd_from(a, 84, 64, 0, 512 * 3584)
    srd_from(a, 88, 66, 0, 1792 * 1024)
    srd_from(a, 92, 22, WS_P6B, 56 * 8 * 512 * 4)
    a("s_lshl_b32 s53, s2, 13")
    a("v_lshlrev_b32 v3, 10, v2")
    a("v_lshlrev_b32 v4, 4, v1")
    a("v_add3_u32 v3, v3, v4, s53")
    a("v_lshlrev_b32 v6, 1, v3")
    a("buffer_load_dwordx4 v[8:11], v3, s[8:11], 0 offen")
    for p in range(nsplit):
        a("s_mov_b32 s53, 0x%x" % (p * 2048 * 2048))
        a("buffer_load_dwordx4 v[%d:%d], v6, s[16:19], s53 offen" % (64 + 8 * p, 67 + 8 * p))
        a("buffer_load_dwordx4 v[%d:%d], v6, s[16:19], s53 offen offset:16" % (68 + 8 * p, 71 + 8 * p))
    a("v_lshlrev_b32 v5, 5, v1")
    for j, base in ((2, 24), (3, 32), (4, 40), (5, 48)):
        a("s_mov_b32 s53, %d" % (j * 2048))
        a("buffer_load_dwordx4 v[%d:%d], v5, s[12:15], s53 offen" % (base, base + 3))
        a("buffer_load_dwordx4 v[%d:%d], v5, s[12:15], s53 offen offset:16" % (base + 4, base + 7))
    a("buffer_load_dwordx4 v[12:15], v4, s[24:27], 0 offen")
    a("s_cmp_ge_u32 s2, 56")
    a("s_cbranch_scc1 L_k5_nodma")
    a("s_cmp_ge_u32 s52, 4")
    a("s_cbranch_scc1 L_k5_nodma")
    a("v_lshrrev_b32 v112, 2, v1")
    a("s_lshl_b32 s53, s52, 7")
    a("v_add_u32 v112, s53, v112")
    a("s_mov_b32 s53, 3584")
    a("v_mul_lo_u32 v112, v112, s53")
    a("v_and_b32 v113, 3, v1")
    a("v_lshl_add_u32 v112, v113, 4, v112")
    a("s_lshl_b32 s53, s2, 6")
    a("v_add_u32 v112, s53, v112")
    a("s_lshl_b32 s56, s52, 13")
    for mat, base in ((80, GB), (84, UB)):
        for i in range(8):
            a("s_add_u32 s54, s56, %d" % (base + i * 1024))
            a("s_mov_b32 m0, s54")
            a("s_mov_b32 s55, %d" % (i * 16 * 3584))
            a("buffer_load_dwordx4 v112, s[%d:%d], s55 offen lds" % (mat, mat + 3))
    a("v_lshlrev_b32 v113, 4, v1")
    a("s_lshl_b32 s53, s2, 15")
    a("s_add_u32 s53, s53, s56")
    a("s_mul_i32 s57, s52, %d" % (8 * 1056))
    for i in range(8):
        a("s_add_u32 s54, s57, %d" % (DB + i * 1056))
        a("s_mov_b32 m0, s54")
        a("s_add_u32 s55, s53, %d" % (i * 1024))
        a("buffer_load_dwordx4 v113, s[88:91], s55 offen lds")
    a("s_waitcnt vmcnt(24)")
    a("s_branch L_k5_p1")
    a.label("L_k5_nodma")
    a("s_waitcnt vmcnt(0)")
    a.label("L_k5_p1")
    for i in range(4):
        unpack_bf16(a, 8 + i, 16 + 2 * i, 17 + 2 * i)
    for p in range(1, nsplit):
        for i in range(8):
            a("v_add_f32 v%d, v%d, v%d" % (64 + i, 64 + i, 64 + 8 * p + i))
    T = 100
    for i in range(0, 8, 2):
        round_bf16_pair(a, 64 + i, 65 + i, T)
        a("v_mul_f32 v%d, v%d, v%d" % (64 + i, 64 + i, 24 + i))
        a("v_mul_f32 v%d, v%d, v%d" % (65 + i, 65 + i, 25 + i))
        round_bf16_pair(a, 64 + i, 65 + i, T)
        a("v_add_f32 v%d, v%d, v%d" % (16 + i, 16 + i, 64 + i))
        a("v_add_f32 v%d, v%d, v%d" % (17 + i, 17 + i, 65 + i))
        round_bf16_pair(a, 16 + i, 17 + i, T)
    for i in range(8):
        a("v_mov_b32 v%d, v%d" % (72 + i, 16 + i))
    pack8(a, 16, 8)
    a("buffer_store_dwordx4 v[8:11], v3, s[32:35], 0 offen sc1")
    layernorm8(a, 16, T)
    modulate8(a, 16, 40, 32, T)
    pack8(a, 16, 84)
    a("buffer_store_dwordx4 v[84:87], v3, s[36:39], 0 offen sc1")
    for i in range(4):
        unpack_bf16(a, 12 + i, 88 + 2 * i, 89 + 2 * i)
    a("v_mul_f32 v%d, v16, v88" % T)
    for i in range(1, 8):
        a("v_fmac_f32 v%d, v%d, v%d" % (T, 16 + i, 88 + i))
    wave_allreduce(a, T, T + 1)
    round_bf16(a, T)
    a("v_lshrrev_b32 v7, 8, v3")
    a("v_cmp_eq_u32 vcc, 0, v1")
    a("s_and_saveexec_b64 s[48:49], vcc")
    a("buffer_store_dword v%d, v7, s[72:75], 0 offen sc1" % T)
    a("s_mov_b64 exec, s[48:49]")
    for i in range(0, 8, 2):
        a("v_mul_f32 v%d, v%d, v%d" % (16 + i, 16 + i, 48 + i))
        a("v_mul_f32 v%d, v%d, v%d" % (17 + i, 17 + i, 49 + i))
        round_bf16_pair(a, 16 + i, 17 + i, T)
        a("v_add_f32 v%d, v%d, v%d" % (16 + i, 16 + i, 72 + i))
        a("v_add_f32 v%d, v%d, v%d" % (17 + i, 17 + i, 73 + i))
    pack8(a, 16, 92)
    a("buffer_store_dwordx4 v[92:95], v3, s[28:31], 0 offen sc1")
    signal(a, 76, 0, 5)
    a("s_cmp_ge_u32 s2, 56")
    a("s_cbranch_scc1 L_k5_done")
    a("s_cmp_ge_u32 s52, 4")
    a("s_cbranch_scc1 L_k5_done")
    a("v_mov_b32 v5, v1")
    a("v_and_b32 v6, 15, v5")
    a("v_lshrrev_b32 v7, 4, v5")
    wait_counter(a, 76, 0, 256, 52, 28)
    K, T = 8, 16
    a("v_lshlrev_b32 v%d, 5, v0" % T)
    a("buffer_load_dwordx4 v[%d:%d], v%d, s[72:75], 0 offen sc1" % (K, K + 3, T))
    a("buffer_load_dwordx4 v[%d:%d], v%d, s[72:75], 0 offen offset:16 sc1" % (K + 4, K + 7, T))
    a("v_lshlrev_b32 v%d, 3, v0" % (T + 1))
    a("v_sub_u32 v%d, 2047, v%d" % (T + 1, T + 1))
    a("v_lshrrev_b32 v%d, 6, v0" % (T + 4))
    a("v_lshlrev_b32 v%d, 2, v%d" % (T + 4, T + 4))
    a("s_waitcnt vmcnt(0)")
    topk8_compute(a, TK, K, T, 40)
    a("v_and_b32 v16, 7, v6")
    a("v_mov_b32 v17, s40")
    for j in range(1, 8):
        a("v_mov_b32 v18, s%d" % (40 + j))
        a("v_cmp_eq_u32 vcc, %d, v16" % j)
        a("s_nop 1")
        a("v_cndmask_b32 v17, v17, v18, vcc")
    a("v_lshlrev_b32 v17, 10, v17")
    a("v_lshl_add_u32 v17, v7, 4, v17")
    XF = 64
    for st in range(16):
        a("buffer_load_dwordx4 v[%d:%d], v17, s[36:39], 0 offen offset:%d sc1" % (XF + 4 * st, XF + 4 * st + 3, 64 * st))
    a("v_lshrrev_b32 v18, 2, v6")
    a("v_lshl_add_u32 v18, v7, 3, v18")
    a("v_lshlrev_b32 v19, 6, v18")
    a("v_and_b32 v20, 3, v6")
    a("v_lshl_add_u32 v19, v20, 3, v19")
    a("s_and_b32 s54, s52, 1")
    a("s_lshl_b32 s54, s54, 5")
    a("s_lshr_b32 s55, s52, 1")
    a("s_lshl_b32 s55, s55, 15")
    a("s_add_u32 s54, s54, s55")
    a("v_add_u32 v19, s54, v19")
    AF = 32
    for st in range(16):
        f = AF + 4 * (st & 7)
        a("ds_read_b64_tr_b16 v[%d:%d], v19 offset:%d" % (f, f + 1, GB + st * 2048))
        a("ds_read_b64_tr_b16 v[%d:%d], v19 offset:%d" % (f + 2, f + 3, GB + st * 2048 + 256))
        if (st & 3) == 3:
            a("s_waitcnt lgkmcnt(0) vmcnt(%d)" % (15 - st))
            for s2 in range(st - 3, st + 1):
                f2 = AF + 4 * (s2 & 7)
                c = "0" if s2 == 0 else "v[28:31]"
                a("v_mfma_f32_16x16x32_bf16 v[28:31], v[%d:%d], v[%d:%d], %s" % (
                    f2, f2 + 3, XF + 4 * s2, XF + 4 * s2 + 3, c))
    a("s_nop 15")
    a("v_lshlrev_b32 v20, 7, v6")
    a("v_lshl_add_u32 v20, v7, 4, v20")
    a("s_and_b32 s54, s52, 1")
    a("s_lshl_b32 s54, s54, 6")
    a("s_lshr_b32 s55, s52, 1")
    a("s_lshl_b32 s55, s55, 11")
    a("s_add_u32 s54, s54, s55")
    a("v_add_u32 v20, s54, v20")
    a("ds_write_b128 v20, v[28:31] offset:%d" % XB)
    a("s_waitcnt lgkmcnt(0)")
    a("s_barrier")
    a("v_lshlrev_b32 v20, 2, v0")
    a("ds_read_b32 v21, v20 offset:%d" % XB)
    a("ds_read_b32 v22, v20 offset:%d" % (XB + 2048))
    a("s_waitcnt lgkmcnt(0)")
    round_bf16_pair(a, 21, 22, 24)
    silu_reg(a, 21, 24)
    round_bf16(a, 21)
    a("v_mul_f32 v21, v21, v22")
    a("v_cvt_pk_bf16_f32 v21, v21, v21")
    a("v_lshlrev_b32 v20, 1, v0")
    a("ds_write_b16 v20, v21 offset:%d" % GUB)
    a("s_waitcnt lgkmcnt(0)")
    a("s_barrier")
    a("v_lshlrev_b32 v20, 6, v16")
    a("v_lshl_add_u32 v20, v7, 4, v20")
    a("ds_read_b128 v[24:27], v20 offset:%d" % GUB)
    a("s_mov_b32 s53, 1056")
    a("v_mul_lo_u32 v21, v18, s53")
    a("v_and_b32 v22, 3, v6")
    a("v_lshl_add_u32 v21, v22, 3, v21")
    a("s_lshl_b32 s54, s52, 8")
    a("s_add_u32 s54, s54, %d" % DB)
    a("v_add_u32 v21, s54, v21")
    for tl in range(8):
        f = AF + 4 * tl
        a("ds_read_b64_tr_b16 v[%d:%d], v21 offset:%d" % (f, f + 1, tl * 32))
        a("ds_read_b64_tr_b16 v[%d:%d], v21 offset:%d" % (f + 2, f + 3, tl * 32 + 4 * 1056))
        if tl == 3:
            a("s_waitcnt lgkmcnt(0)")
    a("s_waitcnt lgkmcnt(0)")
    for tl in range(8):
        f = AF + 4 * tl
        d = XF + 4 * tl
        a("v_mfma_f32_16x16x32_bf16 v[%d:%d], v[%d:%d], v[24:27], 0" % (d, d + 3, f, f + 3))
    a("v_lshlrev_b32 v20, 11, v6")
    a("v_lshl_add_u32 v20, v7, 4, v20")
    a("s_lshl_b32 s54, s2, 14")
    a("s_lshl_b32 s55, s52, 9")
    a("s_add_u32 s54, s54, s55")
    a("v_add_u32 v20, s54, v20")
    a("v_cmp_gt_u32 vcc, 8, v6")
    a("s_nop 7")
    a("s_and_saveexec_b64 s[48:49], vcc")
    for tl in range(8):
        d = XF + 4 * tl
        a("buffer_store_dwordx4 v[%d:%d], v20, s[92:95], 0 offen offset:%d sc1" % (d, d + 3, tl * 64))
    a("s_mov_b64 exec, s[48:49]")
    signal(a, 76, 4, 5)
    a("s_cmp_ge_u32 s2, 16")
    a("s_cbranch_scc1 L_k5_done")
    a("s_lshr_b32 s53, s2, 1")
    a("s_mov_b32 s54, s40")
    for j in range(1, 8):
        a("s_cmp_eq_u32 s53, %d" % j)
        a("s_cselect_b32 s54, s%d, s54" % (40 + j))
    a("s_lshl_b32 s53, s2, 8")
    a("v_add_u32 v1, s53, v0")
    a("v_lshlrev_b32 v2, 2, v1")
    a("v_and_b32 v3, 511, v1")
    a("s_lshl_b32 s55, s54, 10")
    a("v_lshl_add_u32 v4, v3, 1, s55")
    a("s_lshl_b32 s55, s54, 2")
    a("v_mov_b32 v5, s55")
    a("v_lshlrev_b32 v6, 2, v3")
    a("buffer_load_ushort v67, v4, s[36:39], 0 offen sc1")
    a("buffer_load_ushort v68, v4, s[32:35], 0 offen sc1")
    a("buffer_load_dword v69, v5, s[72:75], 0 offen sc1")
    a("s_mov_b32 s53, %d" % (5 * 2048))
    a("buffer_load_dword v70, v6, s[12:15], s53 offen")
    wait_counter(a, 76, 4, 56, 52, 72)
    for b in range(56):
        a("s_mov_b32 s53, %d" % (b * 16384))
        a("buffer_load_dword v%d, v2, s[92:95], s53 offen sc1" % (8 + b))
    a("s_waitcnt vmcnt(56)")
    a("v_lshlrev_b32 v67, 16, v67")
    a("v_lshlrev_b32 v68, 16, v68")
    a("v_mul_f32 v71, %s, v69" % NLOG2E)
    a("v_exp_f32 v71, v71")
    a("s_nop 0")
    a("v_add_f32 v71, 1.0, v71")
    a("v_rcp_f32 v71, v71")
    a("s_nop 0")
    round_bf16(a, 71)
    a("s_waitcnt vmcnt(0)")
    regs = list(range(8, 64))
    while len(regs) > 1:
        nxt = []
        for i in range(0, len(regs) - 1, 2):
            a("v_add_f32 v%d, v%d, v%d" % (regs[i], regs[i], regs[i + 1]))
            nxt.append(regs[i])
        if len(regs) & 1:
            nxt.append(regs[-1])
        regs = nxt
    y = regs[0]
    round_bf16(a, y)
    a("v_mul_f32 v%d, v%d, v71" % (y, y))
    round_bf16(a, y)
    a("v_add_f32 v%d, v%d, v67" % (y, y))
    round_bf16(a, y)
    a("v_mul_f32 v%d, v%d, v70" % (y, y))
    round_bf16(a, y)
    a("v_add_f32 v%d, v%d, v68" % (y, y))
    a("v_cvt_pk_bf16_f32 v%d, v%d, v%d" % (y, y, y))
    a("buffer_store_short v%d, v4, s[28:31], 0 offen sc1" % y)
    a.label("L_k5_done")
    a("s_endpgm")
    return name, 128
```

```python
from asmlib import *
import os
DIAG = os.environ.get("DIAG4", "0") == "1"
_n = [0]


def stamp(a):
    if DIAG:
        a("s_memrealtime s[%d:%d]" % (60 + 2 * _n[0], 61 + 2 * _n[0]))
        _n[0] += 1


def flush(a):
    if not DIAG:
        return
    a("s_waitcnt lgkmcnt(0) vmcnt(0)")
    stamp(a)
    a("s_waitcnt lgkmcnt(0)")
    a("s_add_u32 s56, s6, 0x3000000")
    a("s_addc_u32 s57, s7, 0")
    a("s_mov_b32 s58, 0x100000")
    a("s_mov_b32 s59, 0x00020000")
    a("s_lshl_b32 s54, s2, 3")
    a("s_add_u32 s54, s54, s31")
    a("s_lshl_b32 s54, s54, 6")
    a("v_mov_b32 v4, s54")
    for i in range(_n[0]):
        a("v_mov_b32 v5, s%d" % (60 + 2 * i))
        a("buffer_store_dword v5, v4, s[56:59], 0 offen offset:%d" % (4 * i))

ACC = 64
NST = 5
STAGE = 32768
FR = 32
NSET = 2


def gen_oproj(a):
    name = "k4_oproj_kernel"
    kernel_header(a, name)
    a("s_cmp_ge_u32 s2, 256")
    a("s_cbranch_scc1 L_k4_done")
    stamp(a)
    a("s_load_dwordx2 s[4:5], s[0:1], %d" % KA["wo"])
    a("s_load_dwordx2 s[6:7], s[0:1], %d" % KA["ws"])
    a("s_and_b32 s30, s2, 3")
    a("s_lshr_b32 s28, s2, 2")
    a("s_and_b32 s28, s28, 1")
    a("s_lshl_b32 s28, s28, 3")
    a("s_lshr_b32 s29, s2, 3")
    a("s_and_b32 s29, s29, 7")
    a("s_add_u32 s28, s28, s29")
    a("s_lshr_b32 s29, s2, 6")
    a("v_lshrrev_b32 v4, 6, v0")
    a("v_and_b32 v5, 63, v0")
    a("v_readfirstlane_b32 s31, v4")
    a("v_lshrrev_b32 v6, 5, v5")
    a("v_and_b32 v7, 31, v5")
    a("v_and_b32 v8, 15, v5")
    a("v_lshrrev_b32 v9, 4, v5")
    a("s_waitcnt lgkmcnt(0)")
    a("s_lshl_b32 s32, s28, 20")
    a("s_lshl_b32 s33, s30, 11")
    a("s_add_u32 s32, s32, s33")
    a("s_add_u32 s34, s32, 0x%x" % WS_O)
    a("s_add_u32 s8, s6, s34")
    a("s_addc_u32 s9, s7, 0")
    a("s_sub_u32 s10, %d, s33" % (128 * 8192))
    a("s_mov_b32 s11, 0x00020000")
    a("s_lshl_b32 s32, s30, 20")
    a("s_lshl_b32 s33, s29, 8")
    a("s_add_u32 s32, s32, s33")
    a("s_add_u32 s12, s4, s32")
    a("s_addc_u32 s13, s5, 0")
    a("s_sub_u32 s14, %d, s33" % (1024 * 1024))
    a("s_mov_b32 s15, 0x00020000")
    a("s_lshl_b32 s32, s30, 22")
    a("s_lshl_b32 s33, s28, 18")
    a("s_add_u32 s32, s32, s33")
    a("s_lshl_b32 s33, s29, 9")
    a("s_add_u32 s32, s32, s33")
    a("s_add_u32 s32, s32, 0x%x" % WS_PART)
    a("s_add_u32 s16, s6, s32")
    a("s_addc_u32 s17, s7, 0")
    a("s_sub_u32 s18, %d, s33" % (128 * 2048))
    a("s_mov_b32 s19, 0x00020000")
    a("s_and_b32 s35, s31, 1")
    a("s_lshr_b32 s36, s31, 1")
    a("v_lshrrev_b32 v10, 3, v5")
    a("s_lshl_b32 s37, s31, 4")
    a("v_add_u32 v10, s37, v10")
    a("v_and_b32 v11, 7, v5")
    for ii in range(2):
        a("v_add_u32 v12, %d, v10" % (8 * ii))
        a("v_lshrrev_b32 v13, 1, v12")
        a("v_and_b32 v13, 7, v13")
        a("v_xor_b32 v13, v13, v11")
        a("v_lshlrev_b32 v13, 4, v13")
        a("v_lshl_add_u32 v%d, v12, 13, v13" % (16 + ii))
    a("v_subrev_u32 v17, 1024, v17")
    a("s_lshl_b32 s37, s31, 3")
    a("v_add_u32 v10, s37, v9")
    a("v_lshlrev_b32 v11, 2, v9")
    a("v_xor_b32 v11, v11, v8")
    a("v_lshlrev_b32 v11, 4, v11")
    a("v_lshl_add_u32 v18, v10, 10, v11")
    a("v_add_u32 v19, %d, v18" % (4096 - 1024))
    a("s_lshl_b32 s37, s35, 6")
    a("v_add_u32 v10, s37, v7")
    a("v_lshrrev_b32 v11, 1, v10")
    a("v_and_b32 v11, 7, v11")
    a("v_xor_b32 v11, v11, v6")
    a("v_lshlrev_b32 v11, 4, v11")
    a("v_lshl_add_u32 v20, v10, 7, v11")
    for s in range(1, 4):
        a("v_xor_b32 v%d, %d, v20" % (20 + s, s << 5))
    a("v_lshrrev_b32 v10, 2, v8")
    a("v_lshl_add_u32 v11, v6, 3, v10")
    a("v_lshlrev_b32 v11, 8, v11")
    a("v_and_b32 v12, 1, v9")
    a("v_lshl_add_u32 v11, v12, 5, v11")
    a("v_and_b32 v12, 3, v8")
    a("v_lshl_add_u32 v11, v12, 3, v11")
    a("v_xor_b32 v12, s36, v10")
    a("v_lshl_add_u32 v24, v12, 6, v11")
    a("v_add_u32 v24, 16384, v24")
    for s in range(5):
        a("v_add_u32 v%d, 0x10000, v%d" % (25 + s, 20 + s))
        a("v_add_u32 v%d, 0x20000, v%d" % (104 + s, 20 + s))
    a("s_lshl_b32 s37, s35, 6")
    a("v_add_u32 v10, s37, v7")
    a("v_lshlrev_b32 v10, 11, v10")
    a("s_lshl_b32 s37, s36, 7")
    a("v_add_u32 v10, s37, v10")
    a("v_lshl_add_u32 v30, v6, 4, v10")
    a("v_add_u32 v31, %d, v30" % (32 * 2048))
    a("s_lshl_b32 s38, s31, 11")

    def dma(kstep):
        sb = (kstep % NST) * STAGE
        return ["s_add_u32 s39, s38, %d" % sb,
                "s_mov_b32 m0, s39",
                "s_mov_b32 s40, %d" % (kstep * 128),
                "buffer_load_dwordx4 v16, s[8:11], s40 offen lds",
                "buffer_load_dwordx4 v17, s[8:11], s40 offen offset:1024 lds",
                "s_add_u32 s39, s38, %d" % (sb + 16384),
                "s_mov_b32 m0, s39",
                "s_mov_b32 s41, %d" % (kstep * 65536),
                "buffer_load_dwordx4 v18, s[12:15], s41 offen lds",
                "buffer_load_dwordx4 v19, s[12:15], s41 offen offset:1024 lds"]

    for k in range(4):
        for s in dma(k):
            a(s)
    NS = 3
    FS = 32
    ACCR = 72

    def reads(u):
        j, s = u >> 2, u & 3
        sb = (j % NST) * STAGE
        ba, aa = 20, 24
        if sb >= 131072:
            sb -= 131072
            ba, aa = 104, 108
        elif sb >= 65536:
            sb -= 65536
            ba, aa = 25, 29
        f = FS + 12 * (u % NS)
        return ["ds_read_b64_tr_b16 v[%d:%d], v%d offset:%d" % (f, f + 1, aa, sb + s * 4096),
                "ds_read_b64_tr_b16 v[%d:%d], v%d offset:%d" % (f + 2, f + 3, aa, sb + s * 4096 + 1024),
                "ds_read_b128 v[%d:%d], v%d offset:%d" % (f + 4, f + 7, ba + s, sb),
                "ds_read_b128 v[%d:%d], v%d offset:%d" % (f + 8, f + 11, ba + s, sb + 4096)]

    stamp(a)
    a("s_waitcnt vmcnt(8)")
    a("s_barrier")
    stamp(a)
    for r in reads(0) + reads(1):
        a(r)
    for u in range(64):
        j, s = u >> 2, u & 3
        if s == 0 and j > 0:
            a("s_waitcnt vmcnt(%d)" % (4 * max(0, min(15, j + 3) - (j + 1))))
            a("s_barrier")
            if j in (4, 8, 12):
                stamp(a)
        if u + 2 < 64:
            for r in reads(u + 2):
                a(r)
            a("s_waitcnt lgkmcnt(8)")
        elif u + 1 < 64:
            a("s_waitcnt lgkmcnt(4)")
        else:
            a("s_waitcnt lgkmcnt(0)")
        f = FS + 12 * (u % NS)
        for mt2 in range(2):
            d = ACCR + 16 * mt2
            c = "0" if u == 0 else "v[%d:%d]" % (d, d + 15)
            a("v_mfma_f32_32x32x16_bf16 v[%d:%d], v[%d:%d], v[%d:%d], %s" % (
                d, d + 15, f, f + 3, f + 4 + 4 * mt2, f + 7 + 4 * mt2, c))
            if s == 0 and mt2 == 0 and j + 4 < 16:
                for x in dma(j + 4):
                    a(x)
    a("s_nop 15")
    a("s_nop 7")
    stamp(a)
    for mt2 in range(2):
        d = ACCR + 16 * mt2
        for q in range(4):
            a("buffer_store_dwordx4 v[%d:%d], v%d, s[16:19], 0 offen offset:%d %s" % (
                d + 4 * q, d + 4 * q + 3, 30 + mt2, q * 32, os.environ.get("K4ST", "")))
    flush(a)
    a.label("L_k4_done")
    a("s_endpgm")
    return name, 112
```

```python
from asmlib import *

LOG2E = "0x3fb8aa3b"
NLOG2E = "0xbfb8aa3b"


def silu_reg(a, x, t):
    a("v_mul_f32 v%d, %s, v%d" % (t, NLOG2E, x))
    a("v_exp_f32 v%d, v%d" % (t, t))
    a("s_nop 0")
    a("v_add_f32 v%d, 1.0, v%d" % (t, t))
    a("v_rcp_f32 v%d, v%d" % (t, t))
    a("s_nop 0")
    a("v_mul_f32 v%d, v%d, v%d" % (x, x, t))


def gen_mod(a):
    name = "k1_mod_kernel"
    kernel_header(a, name)
    a("s_cmp_ge_u32 s2, 48")
    a("s_cbranch_scc1 L_k1_done")
    a("s_load_dwordx4 s[4:7], s[0:1], %d" % KA["c"])
    a("s_load_dwordx2 s[20:21], s[0:1], %d" % KA["ws"])
    a("v_and_b32 v1, 7, v0")
    a("v_lshrrev_b32 v2, 3, v0")
    a("s_waitcnt lgkmcnt(0)")
    srd_from(a, 8, 4, 0, 1024)
    srd_from(a, 12, 6, 0, 512 * 6144)
    srd_from(a, 16, 20, WS_MOD, 3072 * 4)
    a("v_lshlrev_b32 v3, 5, v2")
    a("buffer_load_dwordx4 v[8:11], v3, s[8:11], 0 offen")
    a("buffer_load_dwordx4 v[12:15], v3, s[8:11], 0 offen offset:16")
    a("s_mov_b32 s22, %d" % (16 * 6144))
    a("v_mul_lo_u32 v4, v2, s22")
    a("v_lshlrev_b32 v5, 4, v1")
    a("v_add_u32 v4, v4, v5")
    a("s_lshl_b32 s23, s2, 7")
    a("v_add_u32 v4, s23, v4")
    for i in range(16):
        a("s_mov_b32 s24, %d" % (i * 6144))
        a("buffer_load_dwordx4 v[%d:%d], v4, s[12:15], s24 offen" % (32 + 4 * i, 35 + 4 * i))
    a("s_waitcnt vmcnt(16)")
    for i in range(8):
        unpack_bf16(a, 8 + i, 16 + 2 * i, 17 + 2 * i)
    for i in range(16):
        silu_reg(a, 16 + i, 104)
        round_bf16(a, 16 + i)
    for j in range(8):
        a("v_mov_b32 v%d, 0" % (96 + j))
    for i in range(16):
        a("s_waitcnt vmcnt(%d)" % (15 - i))
        for d in range(4):
            unpack_bf16(a, 32 + 4 * i + d, 104, 105)
            a("v_fmac_f32 v%d, v%d, v104" % (96 + 2 * d, 16 + i))
            a("v_fmac_f32 v%d, v%d, v105" % (97 + 2 * d, 16 + i))
    a("v_lshlrev_b32 v6, 8, v2")
    a("v_lshlrev_b32 v7, 5, v1")
    a("v_add_u32 v6, v6, v7")
    a("ds_write_b128 v6, v[96:99]")
    a("ds_write_b128 v6, v[100:103] offset:16")
    a("s_waitcnt lgkmcnt(0)")
    a("s_barrier")
    a("v_cmp_gt_u32 vcc, 64, v0")
    a("s_and_saveexec_b64 s[26:27], vcc")
    a("s_cbranch_execz L_k1_done")
    a("v_lshlrev_b32 v6, 2, v0")
    for g in range(32):
        a("ds_read_b32 v%d, v6 offset:%d" % (32 + g, g * 256))
    a("s_waitcnt lgkmcnt(0)")
    for g in range(1, 32):
        a("v_add_f32 v32, v32, v%d" % (32 + g))
    round_bf16(a, 32)
    a("s_lshl_b32 s23, s2, 8")
    a("v_add_u32 v6, s23, v6")
    a("buffer_store_dword v32, v6, s[16:19], 0 offen")
    a.label("L_k1_done")
    a("s_endpgm")
    return name, 112


def layernorm8(a, X, T):
    s, t, mean, meanb, den, rc = T, T + 1, T + 2, T + 3, T + 4, T + 5
    D = T + 6
    a("v_add_f32 v%d, v%d, v%d" % (s, X, X + 1))
    for i in range(2, 8):
        a("v_add_f32 v%d, v%d, v%d" % (s, s, X + i))
    wave_allreduce(a, s, t)
    a("v_mul_f32 v%d, 0x3b000000, v%d" % (mean, s))
    a("v_mov_b32 v%d, v%d" % (meanb, mean))
    round_bf16(a, meanb)
    a("v_mov_b32 v%d, 0" % s)
    for i in range(8):
        a("v_sub_f32 v%d, v%d, v%d" % (D, X + i, mean))
        a("v_fmac_f32 v%d, v%d, v%d" % (s, D, D))
    wave_allreduce(a, s, t)
    a("v_mul_f32 v%d, 0x3b000000, v%d" % (den, s))
    round_bf16(a, den)
    a("v_add_f32 v%d, 0x3727c5ac, v%d" % (den, den))
    round_bf16(a, den)
    a("v_sqrt_f32 v%d, v%d" % (den, den))
    a("s_nop 0")
    round_bf16(a, den)
    a("v_rcp_f32 v%d, v%d" % (rc, den))
    a("s_nop 0")
    for i in range(0, 8, 2):
        a("v_sub_f32 v%d, v%d, v%d" % (X + i, X + i, meanb))
        a("v_sub_f32 v%d, v%d, v%d" % (X + i + 1, X + i + 1, meanb))
        round_bf16_pair(a, X + i, X + i + 1, t)
        for e in range(2):
            x = X + i + e
            a("v_mul_f32 v%d, v%d, v%d" % (D, x, rc))
            a("v_fma_f32 v%d, -v%d, v%d, v%d" % (D + 1, D, den, x))
            a("v_fma_f32 v%d, v%d, v%d, v%d" % (x, D + 1, rc, D))
        round_bf16_pair(a, X + i, X + i + 1, t)


def modulate8(a, X, SC, SH, t):
    for i in range(0, 8, 2):
        a("v_add_f32 v%d, 1.0, v%d" % (SC + i, SC + i))
        a("v_add_f32 v%d, 1.0, v%d" % (SC + i + 1, SC + i + 1))
        round_bf16_pair(a, SC + i, SC + i + 1, t)
        a("v_mul_f32 v%d, v%d, v%d" % (X + i, X + i, SC + i))
        a("v_mul_f32 v%d, v%d, v%d" % (X + i + 1, X + i + 1, SC + i + 1))
        round_bf16_pair(a, X + i, X + i + 1, t)
        a("v_add_f32 v%d, v%d, v%d" % (X + i, X + i, SH + i))
        a("v_add_f32 v%d, v%d, v%d" % (X + i + 1, X + i + 1, SH + i + 1))
        round_bf16_pair(a, X + i, X + i + 1, t)


def pack8(a, X, P):
    for i in range(4):
        a("v_cvt_pk_bf16_f32 v%d, v%d, v%d" % (P + i, X + 2 * i, X + 2 * i + 1))


def gen_ln1(a):
    name = "k2_ln1_kernel"
    kernel_header(a, name)
    a("s_cmp_ge_u32 s2, 256")
    a("s_cbranch_scc1 L_k2_done")
    a("s_load_dwordx2 s[4:5], s[0:1], %d" % KA["x"])
    a("s_load_dwordx2 s[20:21], s[0:1], %d" % KA["ws"])
    a("v_and_b32 v1, 63, v0")
    a("v_lshrrev_b32 v2, 6, v0")
    a("s_waitcnt lgkmcnt(0)")
    srd_from(a, 8, 4, 0, 2048 * 1024)
    srd_from(a, 12, 20, WS_MOD, 3072 * 4)
    srd_from(a, 16, 20, WS_H1, 2048 * 1024)
    a("s_lshl_b32 s22, s2, 13")
    a("v_lshlrev_b32 v3, 10, v2")
    a("v_lshlrev_b32 v4, 4, v1")
    a("v_add3_u32 v3, v3, v4, s22")
    a("buffer_load_dwordx4 v[8:11], v3, s[8:11], 0 offen")
    a("v_lshlrev_b32 v5, 5, v1")
    a("buffer_load_dwordx4 v[24:27], v5, s[12:15], 0 offen")
    a("buffer_load_dwordx4 v[28:31], v5, s[12:15], 0 offen offset:16")
    a("buffer_load_dwordx4 v[32:35], v5, s[12:15], 0 offen offset:2048")
    a("buffer_load_dwordx4 v[36:39], v5, s[12:15], 0 offen offset:2064")
    a("s_waitcnt vmcnt(4)")
    for i in range(4):
        unpack_bf16(a, 8 + i, 16 + 2 * i, 17 + 2 * i)
    layernorm8(a, 16, 40)
    a("s_waitcnt vmcnt(0)")
    modulate8(a, 16, 32, 24, 40)
    pack8(a, 16, 8)
    a("s_lshl_b32 s22, s2, 3")
    a("v_add_u32 v40, s22, v2")
    a("v_lshrrev_b32 v41, 5, v40")
    a("v_lshlrev_b32 v41, 15, v41")
    a("v_lshrrev_b32 v42, 2, v1")
    a("v_lshl_add_u32 v41, v42, 11, v41")
    a("v_bfe_u32 v42, v40, 4, 1")
    a("v_lshl_add_u32 v41, v42, 10, v41")
    a("v_and_b32 v42, 1, v1")
    a("v_lshl_add_u32 v41, v42, 9, v41")
    a("v_and_b32 v42, 15, v40")
    a("v_lshl_add_u32 v41, v42, 4, v41")
    a("v_bfe_u32 v42, v1, 1, 1")
    a("v_lshl_add_u32 v41, v42, 3, v41")
    a("buffer_store_dwordx2 v[8:9], v41, s[16:19], 0 offen")
    a("buffer_store_dwordx2 v[10:11], v41, s[16:19], 0 offen offset:256")
    a.label("L_k2_done")
    a("s_endpgm")
    return name, 56


def gen_fin(a, nsplit=4):
    name = "k5_fin_kernel"
    kernel_header(a, name)
    a("s_cmp_ge_u32 s2, 256")
    a("s_cbranch_scc1 L_k5_done")
    a("s_load_dwordx2 s[4:5], s[0:1], %d" % KA["x"])
    a("s_load_dwordx2 s[6:7], s[0:1], %d" % KA["wr"])
    a("s_load_dwordx2 s[40:41], s[0:1], %d" % KA["out"])
    a("s_load_dwordx2 s[20:21], s[0:1], %d" % KA["ws"])
    a("v_and_b32 v1, 63, v0")
    a("v_lshrrev_b32 v2, 6, v0")
    a("s_waitcnt lgkmcnt(0)")
    srd_from(a, 8, 4, 0, 2048 * 1024)
    srd_from(a, 12, 20, WS_MOD, 3072 * 4)
    srd_from(a, 16, 20, WS_PART, nsplit * 2048 * 2048)
    srd_from(a, 24, 6, 0, 1024)
    srd_from(a, 28, 40, 0, 2048 * 1024)
    srd_from(a, 32, 20, WS_X1, 2048 * 1024)
    srd_from(a, 36, 20, WS_H2, 2048 * 1024)
    srd_from(a, 44, 20, WS_R, 2048 * 4)
    a("s_lshl_b32 s22, s2, 13")
    a("v_lshlrev_b32 v3, 10, v2")
    a("v_lshlrev_b32 v4, 4, v1")
    a("v_add3_u32 v3, v3, v4, s22")
    a("v_lshlrev_b32 v6, 1, v3")
    a("buffer_load_dwordx4 v[8:11], v3, s[8:11], 0 offen")
    for p in range(nsplit):
        a("s_mov_b32 s23, 0x%x" % (p * 2048 * 2048))
        a("buffer_load_dwordx4 v[%d:%d], v6, s[16:19], s23 offen" % (64 + 8 * p, 67 + 8 * p))
        a("buffer_load_dwordx4 v[%d:%d], v6, s[16:19], s23 offen offset:16" % (68 + 8 * p, 71 + 8 * p))
    a("v_lshlrev_b32 v5, 5, v1")
    for j, base in ((2, 24), (3, 32), (4, 40), (5, 48)):
        a("s_mov_b32 s23, %d" % (j * 2048))
        a("buffer_load_dwordx4 v[%d:%d], v5, s[12:15], s23 offen" % (base, base + 3))
        a("buffer_load_dwordx4 v[%d:%d], v5, s[12:15], s23 offen offset:16" % (base + 4, base + 7))
    a("buffer_load_dwordx4 v[12:15], v4, s[24:27], 0 offen")
    a("s_waitcnt vmcnt(0)")
    for i in range(4):
        unpack_bf16(a, 8 + i, 16 + 2 * i, 17 + 2 * i)
    for p in range(1, nsplit):
        for i in range(8):
            a("v_add_f32 v%d, v%d, v%d" % (64 + i, 64 + i, 64 + 8 * p + i))
    T = 100
    for i in range(0, 8, 2):
        round_bf16_pair(a, 64 + i, 65 + i, T)
        a("v_mul_f32 v%d, v%d, v%d" % (64 + i, 64 + i, 24 + i))
        a("v_mul_f32 v%d, v%d, v%d" % (65 + i, 65 + i, 25 + i))
        round_bf16_pair(a, 64 + i, 65 + i, T)
        a("v_add_f32 v%d, v%d, v%d" % (16 + i, 16 + i, 64 + i))
        a("v_add_f32 v%d, v%d, v%d" % (17 + i, 17 + i, 65 + i))
        round_bf16_pair(a, 16 + i, 17 + i, T)
    for i in range(8):
        a("v_mov_b32 v%d, v%d" % (72 + i, 16 + i))
    pack8(a, 16, 8)
    a("buffer_store_dwordx4 v[8:11], v3, s[32:35], 0 offen")
    layernorm8(a, 16, T)
    modulate8(a, 16, 40, 32, T)
    pack8(a, 16, 84)
    a("buffer_store_dwordx4 v[84:87], v3, s[36:39], 0 offen")
    for i in range(4):
        unpack_bf16(a, 12 + i, 88 + 2 * i, 89 + 2 * i)
    a("v_mul_f32 v%d, v16, v88" % T)
    for i in range(1, 8):
        a("v_fmac_f32 v%d, v%d, v%d" % (T, 16 + i, 88 + i))
    wave_allreduce(a, T, T + 1)
    round_bf16(a, T)
    a("v_lshrrev_b32 v7, 8, v3")
    a("v_cmp_eq_u32 vcc, 0, v1")
    a("s_and_saveexec_b64 s[48:49], vcc")
    a("buffer_store_dword v%d, v7, s[44:47], 0 offen" % T)
    a("s_mov_b64 exec, s[48:49]")
    for i in range(0, 8, 2):
        a("v_mul_f32 v%d, v%d, v%d" % (16 + i, 16 + i, 48 + i))
        a("v_mul_f32 v%d, v%d, v%d" % (17 + i, 17 + i, 49 + i))
        round_bf16_pair(a, 16 + i, 17 + i, T)
        a("v_add_f32 v%d, v%d, v%d" % (16 + i, 16 + i, 72 + i))
        a("v_add_f32 v%d, v%d, v%d" % (17 + i, 17 + i, 73 + i))
    pack8(a, 16, 92)
    a("buffer_store_dwordx4 v[92:95], v3, s[28:31], 0 offen")
    a.label("L_k5_done")
    a("s_endpgm")
    return name, 112


def topk8(a, srd_r, lds_base, K, T, sidx):
    a("v_lshlrev_b32 v%d, 5, v0" % T)
    a("buffer_load_dwordx4 v[%d:%d], v%d, s[%d:%d], 0 offen" % (K, K + 3, T, srd_r, srd_r + 3))
    a("buffer_load_dwordx4 v[%d:%d], v%d, s[%d:%d], 0 offen offset:16" % (K + 4, K + 7, T, srd_r, srd_r + 3))
    a("v_lshlrev_b32 v%d, 3, v0" % (T + 1))
    a("v_sub_u32 v%d, 2047, v%d" % (T + 1, T + 1))
    a("v_lshrrev_b32 v%d, 6, v0" % (T + 4))
    a("v_lshlrev_b32 v%d, 2, v%d" % (T + 4, T + 4))
    return


def topk8_compute(a, lds_base, K, T, sidx):
    for j in range(8):
        k = K + j
        a("v_ashrrev_i32 v%d, 31, v%d" % (T + 2, k))
        a("v_or_b32 v%d, 0x80000000, v%d" % (T + 2, T + 2))
        a("v_xor_b32 v%d, v%d, v%d" % (k, k, T + 2))
        a("v_and_b32 v%d, 0xffff0000, v%d" % (k, k))
        a("v_subrev_u32 v%d, %d, v%d" % (T + 2, j, T + 1))
        a("v_or_b32 v%d, v%d, v%d" % (k, k, T + 2))
    for rnd in range(8):
        a("v_max_u32 v%d, v%d, v%d" % (T + 2, K, K + 1))
        for j in range(2, 8):
            a("v_max_u32 v%d, v%d, v%d" % (T + 2, T + 2, K + j))
        wave_allreduce(a, T + 2, T + 3, op="v_max_u32")
        a("ds_write_b32 v%d, v%d offset:%d" % (T + 4, T + 2, lds_base + rnd * 16))
        a("s_waitcnt lgkmcnt(0)")
        a("s_barrier")
        a("v_mov_b32 v%d, 0" % (T + 5))
        a("ds_read_b128 v[%d:%d], v%d offset:%d" % (T + 8, T + 11, T + 5, lds_base + rnd * 16))
        a("s_waitcnt lgkmcnt(0)")
        a("v_max_u32 v%d, v%d, v%d" % (T + 2, T + 8, T + 9))
        a("v_max_u32 v%d, v%d, v%d" % (T + 3, T + 10, T + 11))
        a("v_max_u32 v%d, v%d, v%d" % (T + 2, T + 2, T + 3))
        a("s_nop 0")
        a("v_readfirstlane_b32 s%d, v%d" % (sidx + rnd, T + 2))
        if rnd < 7:
            for j in range(8):
                a("v_cmp_eq_u32 vcc, v%d, v%d" % (K + j, T + 2))
                a("s_nop 1")
                a("v_cndmask_b32 v%d, v%d, 0, vcc" % (K + j, K + j))
    for rnd in range(8):
        a("s_and_b32 s%d, s%d, 0xffff" % (sidx + rnd, sidx + rnd))
        a("s_sub_u32 s%d, 2047, s%d" % (sidx + rnd, sidx + rnd))


def gen_gateup(a):
    name = "k6_gu_kernel"
    kernel_header(a, name)
    a("s_cmp_ge_u32 s2, 56")
    a("s_cbranch_scc1 L_k6_done")
    a("s_load_dwordx4 s[4:7], s[0:1], %d" % KA["wg"])
    a("s_load_dwordx2 s[20:21], s[0:1], %d" % KA["ws"])
    a("v_and_b32 v1, 15, v0")
    a("v_lshrrev_b32 v2, 4, v0")
    a("s_waitcnt lgkmcnt(0)")
    srd_from(a, 8, 4, 0, 512 * 3584)
    srd_from(a, 12, 6, 0, 512 * 3584)
    srd_from(a, 16, 20, WS_R, 2048 * 4)
    srd_from(a, 24, 20, WS_H2, 2048 * 1024)
    srd_from(a, 28, 20, WS_GU, 8 * 1792 * 4)
    srd_from(a, 32, 20, WS_IDX, 32)
    K, T = 8, 16
    topk8(a, 16, 0, K, T, 40)
    a("s_mov_b32 s22, %d" % (32 * 3584))
    a("v_mul_lo_u32 v3, v2, s22")
    a("v_lshlrev_b32 v4, 2, v1")
    a("s_lshl_b32 s23, s2, 6")
    a("v_add3_u32 v3, v3, v4, s23")
    for i in range(32):
        a("s_mov_b32 s22, %d" % (i * 3584))
        a("buffer_load_dword v%d, v3, s[8:11], s22 offen" % (64 + i))
    for i in range(24):
        a("s_mov_b32 s22, %d" % (i * 3584))
        a("buffer_load_dword v%d, v3, s[12:15], s22 offen" % (96 + i))
    a("s_waitcnt vmcnt(56)")
    topk8_compute(a, 0, K, T, 40)
    for i in range(24, 32):
        a("s_mov_b32 s22, %d" % (i * 3584))
        a("buffer_load_dword v%d, v3, s[12:15], s22 offen" % (96 + i))
    a("s_cmp_lg_u32 s2, 0")
    a("s_cbranch_scc1 L_k6_noidx")
    for j in range(8):
        a("v_mov_b32 v%d, s%d" % (16 + j, 40 + j))
    a("v_mov_b32 v24, 0")
    a("v_cmp_eq_u32 vcc, 0, v0")
    a("s_and_saveexec_b64 s[48:49], vcc")
    a("buffer_store_dwordx4 v[16:19], v24, s[32:35], 0 offen")
    a("buffer_store_dwordx4 v[20:23], v24, s[32:35], 0 offen offset:16")
    a("s_mov_b64 exec, s[48:49]")
    a.label("L_k6_noidx")
    XB = 1024
    a("v_lshlrev_b32 v5, 2, v0")
    for j in range(8):
        a("s_lshl_b32 s22, s%d, 10" % (40 + j))
        a("buffer_load_dword v%d, v5, s[24:27], s22 offen" % (28 + j))
    a("v_lshlrev_b32 v6, 6, v0")
    a("s_waitcnt vmcnt(0)")
    for j in range(8):
        unpack_bf16(a, 28 + j, 40 + j, 48 + j)
    a("ds_write_b128 v6, v[40:43] offset:%d" % XB)
    a("ds_write_b128 v6, v[44:47] offset:%d" % (XB + 16))
    a("ds_write_b128 v6, v[48:51] offset:%d" % (XB + 32))
    a("ds_write_b128 v6, v[52:55] offset:%d" % (XB + 48))
    a("s_waitcnt lgkmcnt(0)")
    a("s_barrier")
    for i in range(32):
        a("v_mov_b32 v%d, 0" % (128 + i))
    a("v_lshlrev_b32 v6, 10, v2")
    for i in range(32):
        xb = 28 + 8 * (i & 1)
        a("ds_read_b128 v[%d:%d], v6 offset:%d" % (xb, xb + 3, XB + i * 32))
        a("ds_read_b128 v[%d:%d], v6 offset:%d" % (xb + 4, xb + 7, XB + i * 32 + 16))
        unpack_bf16(a, 64 + i, 44, 45)
        unpack_bf16(a, 96 + i, 46, 47)
        a("s_waitcnt lgkmcnt(0)")
        for j in range(8):
            a("v_fmac_f32 v%d, v%d, v44" % (128 + 2 * j, xb + j))
            a("v_fmac_f32 v%d, v%d, v45" % (129 + 2 * j, xb + j))
            a("v_fmac_f32 v%d, v%d, v46" % (144 + 2 * j, xb + j))
            a("v_fmac_f32 v%d, v%d, v47" % (145 + 2 * j, xb + j))
    for i in range(32):
        a("ds_swizzle_b32 v%d, v%d offset:0x401F" % (64 + i, 128 + i))
    a("s_waitcnt lgkmcnt(0)")
    for i in range(32):
        a("v_add_f32 v%d, v%d, v%d" % (128 + i, 128 + i, 64 + i))
    for i in range(32):
        a("v_mov_b32 v%d, v%d" % (64 + i, 128 + i))
    a("s_nop 1")
    for i in range(32):
        a("v_permlane32_swap_b32 v%d, v%d" % (128 + i, 64 + i))
    a("s_nop 1")
    for i in range(32):
        a("v_add_f32 v%d, v%d, v%d" % (128 + i, 128 + i, 64 + i))
    RB = 20480
    a("v_lshrrev_b32 v7, 6, v0")
    a("v_lshlrev_b32 v7, 11, v7")
    a("v_lshlrev_b32 v8, 7, v1")
    a("v_add_u32 v7, v7, v8")
    a("v_and_b32 v9, 63, v0")
    a("v_cmp_gt_u32 vcc, 16, v9")
    a("s_and_saveexec_b64 s[48:49], vcc")
    for q in range(8):
        a("ds_write_b128 v7, v[%d:%d] offset:%d" % (128 + 4 * q, 131 + 4 * q, RB + 16 * q))
    a("s_mov_b64 exec, s[48:49]")
    a("s_waitcnt lgkmcnt(0)")
    a("s_barrier")
    a("v_lshrrev_b32 v10, 5, v0")
    a("v_and_b32 v11, 31, v0")
    a("v_lshrrev_b32 v12, 1, v11")
    a("v_and_b32 v13, 1, v11")
    a("v_lshlrev_b32 v12, 7, v12")
    a("v_lshl_add_u32 v13, v10, 1, v13")
    a("v_lshl_add_u32 v12, v13, 2, v12")
    for w in range(4):
        a("ds_read_b32 v%d, v12 offset:%d" % (16 + w, RB + w * 2048))
        a("ds_read_b32 v%d, v12 offset:%d" % (20 + w, RB + w * 2048 + 64))
    a("s_waitcnt lgkmcnt(0)")
    a("v_add_f32 v16, v16, v17")
    a("v_add_f32 v18, v18, v19")
    a("v_add_f32 v16, v16, v18")
    a("v_add_f32 v20, v20, v21")
    a("v_add_f32 v22, v22, v23")
    a("v_add_f32 v20, v20, v22")
    round_bf16_pair(a, 16, 20, 24)
    silu_reg(a, 16, 24)
    round_bf16(a, 16)
    a("v_mul_f32 v16, v16, v20")
    round_bf16(a, 16)
    a("s_mov_b32 s22, %d" % (1792 * 4))
    a("v_mul_lo_u32 v10, v10, s22")
    a("v_lshl_add_u32 v10, v11, 2, v10")
    a("s_lshl_b32 s23, s2, 7")
    a("v_add_u32 v10, s23, v10")
    a("buffer_store_dword v16, v10, s[28:31], 0 offen")
    a.label("L_k6_done")
    a("s_endpgm")
    return name, 160


def gen_down(a):
    name = "k7_down_kernel"
    kernel_header(a, name)
    a("s_cmp_ge_u32 s2, 32")
    a("s_cbranch_scc1 L_k7_done")
    a("s_load_dwordx2 s[4:5], s[0:1], %d" % KA["wd"])
    a("s_load_dwordx2 s[6:7], s[0:1], %d" % KA["out"])
    a("s_load_dwordx2 s[20:21], s[0:1], %d" % KA["ws"])
    a("v_and_b32 v1, 7, v0")
    a("v_lshrrev_b32 v2, 3, v0")
    a("s_waitcnt lgkmcnt(0)")
    a("s_add_u32 s50, s20, 0x%x" % WS_IDX)
    a("s_addc_u32 s51, s21, 0")
    a("s_load_dwordx8 s[40:47], s[50:51], 0")
    srd_from(a, 8, 4, 0, 1792 * 1024)
    srd_from(a, 12, 6, 0, 2048 * 1024)
    srd_from(a, 16, 20, WS_GU, 8 * 1792 * 4)
    srd_from(a, 24, 20, WS_H2, 2048 * 1024)
    srd_from(a, 28, 20, WS_X1, 2048 * 1024)
    srd_from(a, 32, 20, WS_R, 2048 * 4)
    srd_from(a, 36, 20, WS_MOD, 3072 * 4)
    a("s_mov_b32 s22, %d" % (56 * 1024))
    a("v_mul_lo_u32 v3, v2, s22")
    a("v_lshlrev_b32 v4, 2, v1")
    a("s_lshl_b32 s23, s2, 5")
    a("v_add3_u32 v3, v3, v4, s23")
    a("v_lshlrev_b32 v5, 2, v0")
    for i in range(7):
        for j in range(8):
            a("s_mov_b32 s22, %d" % (j * 1792 * 4 + i * 1024))
            a("buffer_load_dword v%d, v5, s[16:19], s22 offen" % (128 + 8 * i + j))
    a("v_lshlrev_b32 v6, 5, v0")
    a("s_waitcnt vmcnt(0)")
    for i in range(56):
        a("s_mov_b32 s22, %d" % (i * 1024))
        a("buffer_load_dword v%d, v3, s[8:11], s22 offen" % (64 + i))
    for i in range(7):
        a("ds_write_b128 v6, v[%d:%d] offset:%d" % (128 + 8 * i, 131 + 8 * i, i * 8192))
        a("ds_write_b128 v6, v[%d:%d] offset:%d" % (132 + 8 * i, 135 + 8 * i, i * 8192 + 16))
    a("s_waitcnt lgkmcnt(0)")
    a("s_barrier")
    for i in range(16):
        a("v_mov_b32 v%d, 0" % (32 + i))
    a("s_mov_b32 s22, %d" % (56 * 32))
    a("v_mul_lo_u32 v6, v2, s22")
    for i in range(56):
        xb = 16 + 8 * (i & 1)
        a("ds_read_b128 v[%d:%d], v6 offset:%d" % (xb, xb + 3, i * 32))
        a("ds_read_b128 v[%d:%d], v6 offset:%d" % (xb + 4, xb + 7, i * 32 + 16))
        a("s_waitcnt vmcnt(%d)" % (55 - i))
        unpack_bf16(a, 64 + i, 8, 9)
        a("s_waitcnt lgkmcnt(0)")
        for j in range(8):
            a("v_fmac_f32 v%d, v%d, v8" % (32 + 2 * j, xb + j))
            a("v_fmac_f32 v%d, v%d, v9" % (33 + 2 * j, xb + j))
    for off in ("0x201F", "0x401F"):
        for i in range(16):
            a("ds_swizzle_b32 v%d, v%d offset:%s" % (48 + i, 32 + i, off))
        a("s_waitcnt lgkmcnt(0)")
        for i in range(16):
            a("v_add_f32 v%d, v%d, v%d" % (32 + i, 32 + i, 48 + i))
    for i in range(16):
        a("v_mov_b32 v%d, v%d" % (48 + i, 32 + i))
    a("s_nop 1")
    for i in range(16):
        a("v_permlane32_swap_b32 v%d, v%d" % (32 + i, 48 + i))
    a("s_nop 1")
    for i in range(16):
        a("v_add_f32 v%d, v%d, v%d" % (32 + i, 32 + i, 48 + i))
    a("s_barrier")
    a("v_lshrrev_b32 v7, 6, v0")
    a("v_lshlrev_b32 v7, 9, v7")
    a("v_lshlrev_b32 v8, 6, v1")
    a("v_add_u32 v7, v7, v8")
    a("v_and_b32 v9, 63, v0")
    a("v_cmp_gt_u32 vcc, 8, v9")
    a("s_and_saveexec_b64 s[48:49], vcc")
    for q in range(4):
        a("ds_write_b128 v7, v[%d:%d] offset:%d" % (32 + 4 * q, 35 + 4 * q, 16 * q))
    a("s_mov_b64 exec, s[48:49]")
    a("s_waitcnt lgkmcnt(0)")
    a("s_barrier")
    a("v_cmp_gt_u32 vcc, 128, v0")
    a("s_and_saveexec_b64 s[48:49], vcc")
    a("s_cbranch_execz L_k7_done")
    a("v_lshrrev_b32 v10, 4, v0")
    a("v_and_b32 v11, 15, v0")
    a("v_lshrrev_b32 v12, 1, v11")
    a("v_and_b32 v13, 1, v11")
    a("v_lshlrev_b32 v12, 6, v12")
    a("v_lshl_add_u32 v13, v10, 1, v13")
    a("v_lshl_add_u32 v12, v13, 2, v12")
    for w in range(4):
        a("ds_read_b32 v%d, v12 offset:%d" % (16 + w, w * 512))
    a("v_mov_b32 v14, s40")
    for j in range(1, 8):
        a("v_mov_b32 v15, s%d" % (40 + j))
        a("v_cmp_eq_u32 vcc, %d, v10" % j)
        a("s_nop 1")
        a("v_cndmask_b32 v14, v14, v15, vcc")
    a("s_lshl_b32 s23, s2, 4")
    a("v_add_u32 v11, s23, v11")
    a("v_lshlrev_b32 v24, 10, v14")
    a("v_lshl_add_u32 v24, v11, 1, v24")
    a("v_lshlrev_b32 v25, 2, v14")
    a("v_lshlrev_b32 v26, 2, v11")
    a("buffer_load_ushort v27, v24, s[24:27], 0 offen")
    a("buffer_load_ushort v28, v24, s[28:31], 0 offen")
    a("buffer_load_dword v29, v25, s[32:35], 0 offen")
    a("s_mov_b32 s22, %d" % (5 * 2048))
    a("buffer_load_dword v30, v26, s[36:39], s22 offen")
    a("s_waitcnt lgkmcnt(0)")
    a("v_add_f32 v16, v16, v17")
    a("v_add_f32 v18, v18, v19")
    a("v_add_f32 v16, v16, v18")
    round_bf16(a, 16)
    a("s_waitcnt vmcnt(0)")
    a("v_lshlrev_b32 v27, 16, v27")
    a("v_lshlrev_b32 v28, 16, v28")
    a("v_mul_f32 v31, %s, v29" % NLOG2E)
    a("v_exp_f32 v31, v31")
    a("s_nop 0")
    a("v_add_f32 v31, 1.0, v31")
    a("v_rcp_f32 v31, v31")
    a("s_nop 0")
    round_bf16(a, 31)
    a("v_mul_f32 v16, v16, v31")
    round_bf16(a, 16)
    a("v_add_f32 v16, v16, v27")
    round_bf16(a, 16)
    a("v_mul_f32 v16, v16, v30")
    round_bf16(a, 16)
    a("v_add_f32 v16, v16, v28")
    a("v_cvt_pk_bf16_f32 v16, v16, v16")
    a("buffer_store_short v16, v24, s[12:15], 0 offen")
    a.label("L_k7_done")
    a("s_endpgm")
    return name, 192


WS_P6 = WS_PART


def gen_gateup2(a):
    name = "k6_gu_kernel"
    kernel_header(a, name)
    GB, UB, DB, XB = 8192, 40960, 73728, 0
    TK = XB + 4096
    GUB = XB + 6144
    a("s_cmp_ge_u32 s2, 56")
    a("s_cbranch_scc1 L_k6_done")
    a("s_load_dwordx4 s[4:7], s[0:1], %d" % KA["wg"])
    a("s_load_dwordx2 s[50:51], s[0:1], %d" % KA["wd"])
    a("s_load_dwordx2 s[20:21], s[0:1], %d" % KA["ws"])
    a("v_lshrrev_b32 v4, 6, v0")
    a("v_and_b32 v5, 63, v0")
    a("v_readfirstlane_b32 s52, v4")
    a("v_and_b32 v6, 15, v5")
    a("v_lshrrev_b32 v7, 4, v5")
    a("s_waitcnt lgkmcnt(0)")
    srd_from(a, 8, 4, 0, 512 * 3584)
    srd_from(a, 12, 6, 0, 512 * 3584)
    srd_from(a, 16, 20, WS_R, 2048 * 4)
    srd_from(a, 24, 20, WS_H2, 2048 * 1024)
    srd_from(a, 28, 20, WS_P6, 56 * 8 * 512 * 4)
    srd_from(a, 32, 20, WS_IDX, 32)
    srd_from(a, 36, 50, 0, 1792 * 1024)
    K, T = 8, 16
    topk8(a, 16, 0, K, T, 40)
    a("v_lshrrev_b32 v28, 2, v5")
    a("s_lshl_b32 s22, s52, 7")
    a("v_add_u32 v28, s22, v28")
    a("s_mov_b32 s22, 3584")
    a("v_mul_lo_u32 v28, v28, s22")
    a("v_and_b32 v29, 3, v5")
    a("v_lshl_add_u32 v28, v29, 4, v28")
    a("s_lshl_b32 s23, s2, 6")
    a("v_add_u32 v28, s23, v28")
    a("s_lshl_b32 s53, s52, 13")
    for mat, base in ((8, GB), (12, UB)):
        for i in range(8):
            a("s_add_u32 s54, s53, %d" % (base + i * 1024))
            a("s_mov_b32 m0, s54")
            a("s_mov_b32 s55, %d" % (i * 16 * 3584))
            a("buffer_load_dwordx4 v28, s[%d:%d], s55 offen lds" % (mat, mat + 3))
    a("v_lshlrev_b32 v29, 4, v5")
    a("s_lshl_b32 s23, s2, 15")
    a("s_lshl_b32 s54, s52, 13")
    a("s_add_u32 s23, s23, s54")
    a("s_mul_i32 s56, s52, %d" % (8 * 1056))
    for i in range(8):
        a("s_add_u32 s54, s56, %d" % (DB + i * 1056))
        a("s_mov_b32 m0, s54")
        a("s_add_u32 s55, s23, %d" % (i * 1024))
        a("buffer_load_dwordx4 v29, s[36:39], s55 offen lds")
    a("s_waitcnt vmcnt(24)")
    topk8_compute(a, TK, K, T, 40)
    a("s_cmp_lg_u32 s2, 0")
    a("s_cbranch_scc1 L_k6_noidx")
    for j in range(8):
        a("v_mov_b32 v%d, s%d" % (16 + j, 40 + j))
    a("v_mov_b32 v24, 0")
    a("v_cmp_eq_u32 vcc, 0, v0")
    a("s_and_saveexec_b64 s[48:49], vcc")
    a("buffer_store_dwordx4 v[16:19], v24, s[32:35], 0 offen")
    a("buffer_store_dwordx4 v[20:23], v24, s[32:35], 0 offen offset:16")
    a("s_mov_b64 exec, s[48:49]")
    a.label("L_k6_noidx")
    a("v_and_b32 v16, 7, v6")
    a("v_mov_b32 v17, s40")
    for j in range(1, 8):
        a("v_mov_b32 v18, s%d" % (40 + j))
        a("v_cmp_eq_u32 vcc, %d, v16" % j)
        a("s_nop 1")
        a("v_cndmask_b32 v17, v17, v18, vcc")
    a("v_lshlrev_b32 v17, 10, v17")
    a("v_lshl_add_u32 v17, v7, 4, v17")
    XF = 64
    for st in range(16):
        a("buffer_load_dwordx4 v[%d:%d], v17, s[24:27], 0 offen offset:%d" % (XF + 4 * st, XF + 4 * st + 3, 64 * st))
    a("v_lshrrev_b32 v18, 2, v6")
    a("v_lshl_add_u32 v18, v7, 3, v18")
    a("v_lshlrev_b32 v19, 6, v18")
    a("v_and_b32 v20, 3, v6")
    a("v_lshl_add_u32 v19, v20, 3, v19")
    a("s_and_b32 s54, s52, 1")
    a("s_lshl_b32 s54, s54, 5")
    a("s_lshr_b32 s55, s52, 1")
    a("s_lshl_b32 s55, s55, 15")
    a("s_add_u32 s54, s54, s55")
    a("v_add_u32 v19, s54, v19")
    a("s_waitcnt vmcnt(0)")
    a("s_barrier")
    AF = 32
    for half in range(2):
        for st in range(8 * half, 8 * half + 8):
            f = AF + 4 * (st & 7)
            a("ds_read_b64_tr_b16 v[%d:%d], v19 offset:%d" % (f, f + 1, GB + st * 2048))
            a("ds_read_b64_tr_b16 v[%d:%d], v19 offset:%d" % (f + 2, f + 3, GB + st * 2048 + 256))
            if (st & 3) == 3:
                a("s_waitcnt lgkmcnt(0)")
                for s2 in range(st - 3, st + 1):
                    f2 = AF + 4 * (s2 & 7)
                    c = "0" if s2 == 0 else "v[28:31]"
                    a("v_mfma_f32_16x16x32_bf16 v[28:31], v[%d:%d], v[%d:%d], %s" % (
                        f2, f2 + 3, XF + 4 * s2, XF + 4 * s2 + 3, c))
    a("s_nop 15")
    a("v_lshlrev_b32 v20, 7, v6")
    a("v_lshl_add_u32 v20, v7, 4, v20")
    a("s_and_b32 s54, s52, 1")
    a("s_lshl_b32 s54, s54, 6")
    a("s_lshr_b32 s55, s52, 1")
    a("s_lshl_b32 s55, s55, 11")
    a("s_add_u32 s54, s54, s55")
    a("v_add_u32 v20, s54, v20")
    a("ds_write_b128 v20, v[28:31] offset:%d" % XB)
    a("s_waitcnt lgkmcnt(0)")
    a("s_barrier")
    a("v_lshlrev_b32 v20, 2, v0")
    a("ds_read_b32 v21, v20 offset:%d" % XB)
    a("ds_read_b32 v22, v20 offset:%d" % (XB + 2048))
    a("s_waitcnt lgkmcnt(0)")
    round_bf16_pair(a, 21, 22, 24)
    silu_reg(a, 21, 24)
    round_bf16(a, 21)
    a("v_mul_f32 v21, v21, v22")
    a("v_cvt_pk_bf16_f32 v21, v21, v21")
    a("v_lshlrev_b32 v20, 1, v0")
    a("ds_write_b16 v20, v21 offset:%d" % GUB)
    a("s_waitcnt lgkmcnt(0)")
    a("s_barrier")
    a("v_lshlrev_b32 v20, 6, v16")
    a("v_lshl_add_u32 v20, v7, 4, v20")
    a("ds_read_b128 v[24:27], v20 offset:%d" % GUB)
    a("s_mov_b32 s22, 1056")
    a("v_mul_lo_u32 v21, v18, s22")
    a("v_and_b32 v22, 3, v6")
    a("v_lshl_add_u32 v21, v22, 3, v21")
    a("s_lshl_b32 s54, s52, 8")
    a("s_add_u32 s54, s54, %d" % DB)
    a("v_add_u32 v21, s54, v21")
    for tl in range(8):
        f = AF + 4 * tl
        a("ds_read_b64_tr_b16 v[%d:%d], v21 offset:%d" % (f, f + 1, tl * 32))
        a("ds_read_b64_tr_b16 v[%d:%d], v21 offset:%d" % (f + 2, f + 3, tl * 32 + 4 * 1056))
        if tl == 3:
            a("s_waitcnt lgkmcnt(0)")
    a("s_waitcnt lgkmcnt(0)")
    for tl in range(8):
        f = AF + 4 * tl
        d = XF + 4 * tl
        a("v_mfma_f32_16x16x32_bf16 v[%d:%d], v[%d:%d], v[24:27], 0" % (d, d + 3, f, f + 3))
    a("v_lshlrev_b32 v20, 11, v6")
    a("v_lshl_add_u32 v20, v7, 4, v20")
    a("s_lshl_b32 s54, s2, 14")
    a("s_lshl_b32 s55, s52, 9")
    a("s_add_u32 s54, s54, s55")
    a("v_add_u32 v20, s54, v20")
    a("v_cmp_gt_u32 vcc, 8, v6")
    a("s_nop 7")
    a("s_and_saveexec_b64 s[48:49], vcc")
    for tl in range(8):
        d = XF + 4 * tl
        a("buffer_store_dwordx4 v[%d:%d], v20, s[28:31], 0 offen offset:%d" % (d, d + 3, tl * 64))
    a.label("L_k6_done")
    a("s_endpgm")
    return name, 128


def gen_down2(a):
    name = "k7_down_kernel"
    kernel_header(a, name)
    a("s_cmp_ge_u32 s2, 16")
    a("s_cbranch_scc1 L_k7_done")
    a("s_load_dwordx2 s[6:7], s[0:1], %d" % KA["out"])
    a("s_load_dwordx2 s[20:21], s[0:1], %d" % KA["ws"])
    a("s_waitcnt lgkmcnt(0)")
    a("s_lshr_b32 s22, s2, 1")
    a("s_lshl_b32 s23, s22, 2")
    a("s_add_u32 s50, s20, 0x%x" % WS_IDX)
    a("s_addc_u32 s51, s21, 0")
    a("s_load_dword s40, s[50:51], s23")
    srd_from(a, 12, 6, 0, 2048 * 1024)
    srd_from(a, 16, 20, WS_P6, 56 * 8 * 512 * 4)
    srd_from(a, 24, 20, WS_H2, 2048 * 1024)
    srd_from(a, 28, 20, WS_X1, 2048 * 1024)
    srd_from(a, 32, 20, WS_R, 2048 * 4)
    srd_from(a, 36, 20, WS_MOD, 3072 * 4)
    a("s_lshl_b32 s23, s2, 8")
    a("v_add_u32 v1, s23, v0")
    a("v_lshlrev_b32 v2, 2, v1")
    for b in range(56):
        a("s_mov_b32 s23, %d" % (b * 16384))
        a("buffer_load_dword v%d, v2, s[16:19], s23 offen" % (8 + b))
    a("v_and_b32 v3, 511, v1")
    a("s_waitcnt lgkmcnt(0)")
    a("s_lshl_b32 s41, s40, 10")
    a("v_lshl_add_u32 v4, v3, 1, s41")
    a("s_lshl_b32 s42, s40, 2")
    a("v_mov_b32 v5, s42")
    a("v_lshlrev_b32 v6, 2, v3")
    a("buffer_load_ushort v67, v4, s[24:27], 0 offen")
    a("buffer_load_ushort v68, v4, s[28:31], 0 offen")
    a("buffer_load_dword v69, v5, s[32:35], 0 offen")
    a("s_mov_b32 s23, %d" % (5 * 2048))
    a("buffer_load_dword v70, v6, s[36:39], s23 offen")
    a("s_waitcnt vmcnt(4)")
    n = 56
    regs = list(range(8, 64))
    while len(regs) > 1:
        nxt = []
        for i in range(0, len(regs) - 1, 2):
            a("v_add_f32 v%d, v%d, v%d" % (regs[i], regs[i], regs[i + 1]))
            nxt.append(regs[i])
        if len(regs) & 1:
            nxt.append(regs[-1])
        regs = nxt
    y = regs[0]
    round_bf16(a, y)
    a("s_waitcnt vmcnt(0)")
    a("v_lshlrev_b32 v67, 16, v67")
    a("v_lshlrev_b32 v68, 16, v68")
    a("v_mul_f32 v71, %s, v69" % NLOG2E)
    a("v_exp_f32 v71, v71")
    a("s_nop 0")
    a("v_add_f32 v71, 1.0, v71")
    a("v_rcp_f32 v71, v71")
    a("s_nop 0")
    round_bf16(a, 71)
    a("v_mul_f32 v%d, v%d, v71" % (y, y))
    round_bf16(a, y)
    a("v_add_f32 v%d, v%d, v67" % (y, y))
    round_bf16(a, y)
    a("v_mul_f32 v%d, v%d, v70" % (y, y))
    round_bf16(a, y)
    a("v_add_f32 v%d, v%d, v68" % (y, y))
    a("v_cvt_pk_bf16_f32 v%d, v%d, v%d" % (y, y, y))
    a("buffer_store_short v%d, v4, s[12:15], 0 offen" % y)
    a.label("L_k7_done")
    a("s_endpgm")
    return name, 72
```

```python
import sys, os
sys.path.insert(0, os.path.dirname(os.path.abspath(__file__)))
from asmlib import *
import small, attn, attn16, oproj, merged

HEADER = open(os.path.join(os.path.dirname(os.path.abspath(__file__)), "..", "cdna_kernels",
              "adaLN_cond__mha_block_cached__moe_arch_mod__prompt.s.ref")).read().split("; Override launch")[0]

def build():
    a = Asm()
    kernels = []
    launches = []
    def add(gen, grid, block, lds):
        name, nv = gen(a)
        kernels.append((name, nv))
        launches.append("; @launch kernel=%s grid=(%d,1,1) block=(%d,1,1) lds=%d" % (name, grid, block, lds))
    add(small.gen_mod, 48, 256, 8192)
    add(small.gen_ln1, 256, 512, 0)
    add(attn16.gen_attn, 256, 512, 163840)
    add(oproj.gen_oproj, 256, 512, 163840)
    add(merged.gen_tail, 256, 640, 107520)
    out = HEADER + "\n".join(launches) + "\n"
    out += '.amdgcn_target "amdgcn-amd-amdhsa--gfx950"\n.text\n'
    out += a.text()
    out += '.section .rodata,"a"\n'
    for name, nv in kernels:
        out += ".p2align 6\n" + kernel_desc(name, nv)
    return out

if __name__ == "__main__":
    dst = os.path.join(os.path.dirname(os.path.abspath(__file__)), "..", "cdna_kernels",
                       "adaLN_cond__mha_block_cached__moe_arch_mod__prompt.s")
    if len(sys.argv) > 1:
        dst = sys.argv[1]
    open(dst, "w").write(build())
    print("wrote", dst)
```

```python
from asmlib import *
import os
DIAG = os.environ.get("DIAG", "0") == "1"
WS_DIAG = 0x3000000
PRIO = int(os.environ.get("PRIO", "3"))
_stamp = [0]

OACC = 192
QF = 160
SB = [96, 128]
PB = 80
POOL = 48
NPOOL = 8
LOOK = 6
LSUM = 32
ONES = 12
KAD = 16
VAD = 20
DK0, DK1, DV0, DV1 = 28, 29, 30, 31
MP, M0, M1 = 1, 2, 3
T0 = 4

S_L2E = 32
S_WAVE = 33
S_C = 34
S_KOFF, S_VOFF = 35, 36
S_M0K = [37, 38, 39]
S_M0V = [40, 41, 42]
S_CNT = 43

NSLOT = 3
KSLOT = [0, 16384, 32768]
VBASE = 49152
VSLOT = [0, 16384, 32768]
WQ_BASE = 98304


def stamp(a):
    if not DIAG:
        return
    i = _stamp[0]
    _stamp[0] += 1
    a("s_memtime s[%d:%d]" % (60 + 2 * i, 61 + 2 * i))


def rstamp(a, reg):
    if DIAG:
        a("s_memrealtime s[%d:%d]" % (reg, reg + 1))


def stamp_flush(a):
    if not DIAG:
        return
    rstamp(a, 92)
    a("s_waitcnt lgkmcnt(0) vmcnt(0)")
    a("s_add_u32 s56, s30, 0x%x" % WS_DIAG)
    a("s_addc_u32 s57, s31, 0")
    a("s_mov_b32 s58, 0x100000")
    a("s_mov_b32 s59, 0x00020000")
    a("s_lshl_b32 s54, s2, 3")
    a("s_add_u32 s54, s54, s%d" % S_WAVE)
    a("s_lshl_b32 s54, s54, 6")
    a("v_mov_b32 v4, s54")
    for i in range(_stamp[0]):
        a("v_mov_b32 v5, s%d" % (60 + 2 * i))
        a("buffer_store_dword v5, v4, s[56:59], 0 offen offset:%d" % (4 * i))
    for i, r in enumerate((90, 92)):
        a("v_mov_b32 v5, s%d" % r)
        a("buffer_store_dword v5, v4, s[56:59], 0 offen offset:%d" % (48 + 4 * i))


def mfma(d, fa, fb, c):
    cs = "0" if c is None else "v[%d:%d]" % (c, c + 3)
    return "v_mfma_f32_16x16x32_bf16 v[%d:%d], v[%d:%d], v[%d:%d], %s" % (d, d + 3, fa, fa + 3, fb, fb + 3, cs)


class Item:
    def __init__(self, reads, mf, guard=False):
        self.reads = reads
        self.mf = mf
        self.guard = guard
        self.before = []
        self.after = [[] for _ in mf]


class Stream:
    def __init__(self, a, pool, npool, look):
        self.a, self.pool, self.npool, self.look = a, pool, npool, look
        self.since_cvt = 99

    def emit(self, s):
        if s.endswith(":"):
            self.a.label(s[:-1])
            return
        self.a(s)
        if s.startswith("v_cvt_pk") and ", 0, " not in s:
            self.since_cvt = 0
        else:
            self.since_cvt += 1

    def run(self, items, preissued, nxt=None):
        rd = [it for it in items if it.reads]
        nrd = len(rd)
        assert nrd % self.npool == 0 or nxt is None
        seq = rd + ([it for it in nxt if it.reads][:self.look] if nxt else [])
        issued = []

        def fr_of(k):
            return self.pool + 4 * (k % self.npool)

        def issue(k):
            for r in seq[k].reads(fr_of(k)):
                self.emit(r)
                issued.append(k)
        if preissued:
            for k in range(min(self.look, nrd)):
                issued += [k] * len(seq[k].reads(fr_of(k)))
        else:
            for k in range(min(self.look, len(seq))):
                issue(k)
        k = 0
        for it in items:
            for s in it.before:
                self.emit(s)
            fr = None
            if it.reads:
                fr = fr_of(k)
                later = sum(1 for j in issued if j > k)
                self.emit("s_waitcnt lgkmcnt(%d)" % later)
            for m, (f, aft) in enumerate(zip(it.mf, it.after)):
                if it.guard and self.since_cvt < 2:
                    self.emit("s_nop %d" % (1 - self.since_cvt))
                self.emit(f(fr))
                if m == len(it.mf) - 1 and it.reads:
                    if k + self.look < len(seq):
                        issue(k + self.look)
                    k += 1
                for s in aft:
                    self.emit(s)


def qk_items(kslot, S):
    items = []
    for kt in range(4):
        for s in range(4):
            off = KSLOT[kslot] + kt * 4096
            def reads(fr, s=s, off=off):
                return ["ds_read_b128 v[%d:%d], v%d offset:%d" % (fr, fr + 3, KAD + s, off)]
            mfs = []
            for qt in range(2):
                d = S + 8 * kt + 4 * qt
                mfs.append(lambda fr, d=d, s=s, qt=qt: mfma(d, fr, QF + 16 * qt + 4 * s, None if s == 0 else d))
            items.append(Item(reads, mfs))
    return items


def pv_items(vslot):
    items = []
    for ks in range(2):
        for dt in range(8):
            off = VSLOT[vslot] + ks * 8192
            def reads(fr, dt=dt, off=off):
                return ["ds_read_b64_tr_b16 v[%d:%d], v%d offset:%d" % (fr, fr + 1, VAD + dt, off),
                        "ds_read_b64_tr_b16 v[%d:%d], v%d offset:%d" % (fr + 2, fr + 3, VAD + dt, off + 4096)]
            mfs = []
            for qt in range(2):
                d = OACC + 8 * dt + 4 * qt
                mfs.append(lambda fr, d=d, ks=ks, qt=qt: mfma(d, fr, PB + 8 * ks + 4 * qt, d))
            items.append(Item(reads, mfs, True))
        mfs = []
        for qt in range(2):
            d = LSUM + 4 * qt
            mfs.append(lambda fr, d=d, ks=ks, qt=qt: mfma(d, ONES, PB + 8 * ks + 4 * qt, d))
        items.append(Item(None, mfs, True))
    return items


def exp_ops(S):
    ops = []
    for kt in range(4):
        for qt in range(2):
            e = S + 8 * kt + 4 * qt
            m = M0 if qt == 0 else M1
            for j in range(4):
                ops.append("v_cvt_pk_bf16_f32 v%d, 0, v%d" % (e + j, e + j))
            for j in range(4):
                ops.append("v_mul_f32 v%d, s%d, v%d" % (e + j, S_C, e + j))
            for j in range(4):
                ops.append("v_cvt_pk_bf16_f32 v%d, 0, v%d" % (e + j, e + j))
            for j in range(4):
                ops.append("v_fma_f32 v%d, v%d, s%d, -v%d" % (e + j, e + j, S_L2E, m))
            for j in range(4):
                ops.append("v_exp_f32 v%d, v%d" % (e + j, e + j))
            p = PB + 8 * (kt >> 1) + 4 * qt + 2 * (kt & 1)
            ops.append("v_cvt_pk_bf16_f32 v%d, v%d, v%d" % (p, e, e + 1))
            ops.append("v_cvt_pk_bf16_f32 v%d, v%d, v%d" % (p + 1, e + 2, e + 3))
    return ops


def max_ops(S):
    ta, tb, t2 = T0, T0 + 1, T0 + 2
    chains = []
    for qt, t in ((0, ta), (1, tb)):
        v = [S + 8 * kt + 4 * qt + r for kt in range(4) for r in range(4)]
        c = ["v_max3_f32 v%d, v%d, v%d, v%d" % (t, v[0], v[1], v[2])]
        for i in range(6):
            c.append("v_max3_f32 v%d, v%d, v%d, v%d" % (t, t, v[3 + 2 * i], v[4 + 2 * i]))
        c.append("v_max_f32 v%d, v%d, v%d" % (t, t, v[15]))
        chains.append(c)
    ops = []
    for x, y in zip(*chains):
        ops += [x, y]
    ops.append("s_nop 1")
    ops.append("v_permlane32_swap_b32 v%d, v%d" % (ta, tb))
    ops.append("v_max_f32 v%d, v%d, v%d" % (ta, ta, tb))
    ops.append("v_mov_b32 v%d, v%d" % (t2, ta))
    ops.append("v_add_f32 v%d, 0x41000000, v%d" % (tb, MP))
    ops.append("s_nop 0")
    ops.append("v_permlane16_swap_b32 v%d, v%d" % (ta, t2))
    ops.append("v_max_f32 v%d, v%d, v%d" % (ta, ta, t2))
    ops.append("v_cvt_pk_bf16_f32 v%d, 0, v%d" % (ta, ta))
    ops.append("v_mul_f32 v%d, s%d, v%d" % (ta, S_C, ta))
    ops.append("v_cvt_pk_bf16_f32 v%d, 0, v%d" % (ta, ta))
    ops.append("v_mul_f32 v%d, s%d, v%d" % (ta, S_L2E, ta))
    return ops


_lbl = [0]


def rescale_check():
    _lbl[0] += 1
    lb = "L_k3_skip%d" % _lbl[0]
    f0, f1 = T0 + 1, T0 + 2
    o = []
    o.append("v_cmp_gt_f32 vcc, v%d, v%d" % (T0, T0 + 1))
    o.append("s_nop 1")
    o.append("s_cbranch_vccz %s" % lb)
    o.append("s_nop 15")
    o.append("v_max_f32 v%d, v%d, v%d" % (T0, T0, MP))
    o.append("v_sub_f32 v%d, v%d, v%d" % (f0, MP, T0))
    o.append("v_exp_f32 v%d, v%d" % (f0, f0))
    o.append("v_mov_b32 v%d, v%d" % (MP, T0))
    o.append("v_mov_b32 v%d, v%d" % (M0, T0))
    o.append("v_mov_b32 v%d, v%d" % (M1, T0))
    o.append("v_mov_b32 v%d, v%d" % (f1, f0))
    o.append("s_nop 1")
    o.append("v_permlane32_swap_b32 v%d, v%d" % (M0, M1))
    o.append("v_permlane32_swap_b32 v%d, v%d" % (f0, f1))
    o.append("s_nop 1")
    o.append("v_mul_f32 v%d, v%d, v%d" % (LSUM, LSUM, f0))
    o.append("v_mul_f32 v%d, v%d, v%d" % (LSUM + 4, LSUM + 4, f1))
    for dt in range(8):
        for qt in range(2):
            for r in range(4):
                x = OACC + 8 * dt + 4 * qt + r
                o.append("v_mul_f32 v%d, v%d, v%d" % (x, x, f0 if qt == 0 else f1))
    o.append("s_nop 1")
    o.append(lb + ":")
    return o


def dma_k(slot):
    return ["s_mov_b32 m0, s%d" % S_M0K[slot],
            "s_nop 0",
            "buffer_load_dwordx4 v%d, s[8:11], s%d offen lds" % (DK0, S_KOFF),
            "buffer_load_dwordx4 v%d, s[8:11], s%d offen offset:1024 lds" % (DK1, S_KOFF),
            "s_add_u32 s%d, s%d, 16384" % (S_KOFF, S_KOFF)]


def dma_v(slot):
    return ["s_mov_b32 m0, s%d" % S_M0V[slot],
            "s_nop 0",
            "buffer_load_dwordx4 v%d, s[12:15], s%d offen lds" % (DV0, S_VOFF),
            "buffer_load_dwordx4 v%d, s[12:15], s%d offen offset:1024 lds" % (DV1, S_VOFF),
            "s_add_u32 s%d, s%d, 16384" % (S_VOFF, S_VOFF)]


def slots_of(items):
    return [(it, m) for it in items for m in range(len(it.mf))]


def spread(slots, lo, hi, ops):
    n = hi - lo
    k = 0
    for g in range(n):
        k2 = (len(ops) * (g + 1) + n - 1) // n
        it, m = slots[lo + g]
        it.after[m] = it.after[m] + ops[k:k2]
        k = k2
    assert k == len(ops)


def iter_items(t, do_qk=True, do_dma_k=True, do_dma_v=True, safe=True):
    p = t & 1
    E = exp_ops(SB[p])
    if do_qk:
        items = qk_items((t + 1) % NSLOT, SB[1 - p]) + pv_items(t % NSLOT)
        sl = slots_of(items)
        assert len(sl) == 68
        items[0].before = ["s_waitcnt vmcnt(0)", "s_barrier"]
        spread(sl, 0, 49, E)
        if safe:
            spread(sl, 52, 68, max_ops(SB[1 - p]))
            it, m = sl[67]
            it.after[m] = it.after[m] + rescale_check()
        if PRIO == 3:
            for pr, sidx in ((3, 0), (2, 17), (1, 34), (0, 51)):
                it, m = sl[sidx]
                it.after[m] = ["s_setprio %d" % pr] + it.after[m]
        if PRIO == 2:
            for pr, sidx in ((1, 0), (0, 34)):
                it, m = sl[sidx]
                it.after[m] = ["s_setprio %d" % pr] + it.after[m]
        if do_dma_k:
            it, m = sl[2]
            it.after[m] = it.after[m] + dma_k(t % NSLOT)
        if do_dma_v:
            it, m = sl[6]
            it.after[m] = it.after[m] + dma_v((t + 2) % NSLOT)
    else:
        items = pv_items(t % NSLOT)
        sl = slots_of(items)
        items[0].before = E[:88]
        spread(sl, 0, 17, E[88:])
    return items


class VmTrack:
    def __init__(self):
        self.ops = []

    def add(self, tag, n=1):
        self.ops += [tag] * n

    def wait_for(self, tags):
        last = max(i for i, t in enumerate(self.ops) if t in tags)
        return len(self.ops) - 1 - last


def lds_tile_write(a, wreg, scale=None):
    for dt in range(8):
        a("v_xor_b32 v%d, %d, v%d" % (T0 + 4, dt << 5, wreg))
        for qt in range(2):
            x = OACC + 8 * dt + 4 * qt
            if scale is not None:
                for r in range(4):
                    a("v_mul_f32 v%d, v%d, v%d" % (x + r, x + r, scale[qt]))
            t = POOL + 4 * dt + 2 * qt
            a("v_cvt_pk_bf16_f32 v%d, v%d, v%d" % (t, x, x + 1))
            a("v_cvt_pk_bf16_f32 v%d, v%d, v%d" % (t + 1, x + 2, x + 3))
            a("ds_write_b64 v%d, v[%d:%d] offset:%d" % (T0 + 4, t, t + 1, qt * 4096))


def gen_attn(a):
    name = "k3_attn_kernel"
    kernel_header(a, name)
    a("s_cmp_ge_u32 s2, 256")
    a("s_cbranch_scc1 L_k3_done")
    stamp(a)
    rstamp(a, 90)
    a("s_load_dwordx4 s[4:7], s[0:1], %d" % KA["k"])
    a("s_load_dwordx2 s[28:29], s[0:1], %d" % KA["wq"])
    a("s_load_dwordx2 s[30:31], s[0:1], %d" % KA["ws"])
    a("s_load_dwordx2 s[80:81], s[0:1], %d" % KA["wo"])
    a("s_load_dwordx4 s[84:87], s[0:1], %d" % KA["wg"])
    a("s_load_dwordx2 s[88:89], s[0:1], %d" % KA["wd"])
    a("s_and_b32 s52, s2, 31")
    a("s_lshr_b32 s53, s2, 5")
    a("v_lshrrev_b32 v4, 6, v0")
    a("v_and_b32 v5, 63, v0")
    a("v_readfirstlane_b32 s%d, v4" % S_WAVE)
    a("v_and_b32 v8, 15, v5")
    a("v_lshrrev_b32 v9, 4, v5")
    a("s_waitcnt lgkmcnt(0)")
    a("s_lshl_b32 s44, s52, 19")
    a("s_add_u32 s8, s4, s44")
    a("s_addc_u32 s9, s5, 0")
    a("s_mov_b32 s10, 524288")
    a("s_mov_b32 s11, 0x00020000")
    a("s_add_u32 s12, s6, s44")
    a("s_addc_u32 s13, s7, 0")
    a("s_mov_b32 s14, 524288")
    a("s_mov_b32 s15, 0x00020000")
    a("s_lshl_b32 s44, s52, 8")
    a("s_add_u32 s16, s28, s44")
    a("s_addc_u32 s17, s29, 0")
    a("s_sub_u32 s18, %d, s44" % (512 * 8192))
    a("s_mov_b32 s19, 0x00020000")
    a("s_lshl_b32 s45, s53, 18")
    a("s_add_u32 s45, s45, 0x%x" % WS_H1)
    a("s_add_u32 s20, s30, s45")
    a("s_addc_u32 s21, s31, 0")
    a("s_mov_b32 s22, 262144")
    a("s_mov_b32 s23, 0x00020000")
    a("s_lshl_b32 s45, s53, 21")
    a("s_add_u32 s45, s45, s44")
    a("s_add_u32 s45, s45, 0x%x" % WS_O)
    a("s_add_u32 s24, s30, s45")
    a("s_addc_u32 s25, s31, 0")
    a("s_sub_u32 s26, %d, s44" % (256 * 8192))
    a("s_mov_b32 s27, 0x00020000")
    a("s_mov_b32 s%d, 0x3db504f3" % S_C)
    a("s_mov_b32 s%d, 0x3fb8aa3b" % S_L2E)
    a("s_lshl_b32 s46, s%d, 11" % S_WAVE)
    for sl in range(NSLOT):
        a("s_add_u32 s%d, s46, %d" % (S_M0K[sl], KSLOT[sl]))
        a("s_add_u32 s%d, s46, %d" % (S_M0V[sl], VBASE + VSLOT[sl]))
    a("s_mov_b32 s%d, 0" % S_KOFF)
    a("s_mov_b32 s%d, 0" % S_VOFF)
    a("v_xor_b32 v10, v9, v8")
    a("v_lshlrev_b32 v10, 4, v10")
    a("v_lshl_add_u32 v%d, v8, 8, v10" % KAD)
    for s in range(1, 4):
        a("v_xor_b32 v%d, %d, v%d" % (KAD + s, s << 6, KAD))
    a("v_lshrrev_b32 v10, 2, v8")
    a("v_lshl_add_u32 v11, v9, 2, v10")
    a("v_and_b32 v12, 7, v11")
    a("v_lshlrev_b32 v11, 8, v11")
    a("v_lshl_add_u32 v11, v12, 5, v11")
    a("v_and_b32 v12, 3, v8")
    a("v_lshl_add_u32 v%d, v12, 3, v11" % VAD)
    for dt in range(1, 8):
        a("v_xor_b32 v%d, %d, v%d" % (VAD + dt, dt << 5, VAD))
    a("s_lshl_b32 s47, s%d, 3" % S_WAVE)
    a("v_add_u32 v10, s47, v9")
    a("v_and_b32 v11, 15, v10")
    a("v_xor_b32 v11, v11, v8")
    a("v_lshlrev_b32 v11, 4, v11")
    a("v_lshl_add_u32 v%d, v10, 8, v11" % DK0)
    a("v_add_u32 v12, 4, v10")
    a("v_and_b32 v11, 15, v12")
    a("v_xor_b32 v11, v11, v8")
    a("v_lshlrev_b32 v11, 4, v11")
    a("v_lshl_add_u32 v%d, v10, 8, v11" % DK1)
    a("v_lshlrev_b32 v11, 1, v9")
    a("v_xor_b32 v11, v11, v8")
    a("v_lshlrev_b32 v11, 4, v11")
    a("v_xor_b32 v12, 0x80, v11")
    a("v_lshl_add_u32 v%d, v10, 8, v11" % DV0)
    a("v_lshl_add_u32 v%d, v10, 8, v12" % DV1)
    a("v_lshl_add_u32 v13, v10, 13, v11")
    a("v_lshl_add_u32 v14, v10, 13, v12")
    a("v_add_u32 v14, %d, v14" % (32768 - 1024))
    a("s_lshl_b32 s50, s%d, 15" % S_WAVE)
    a("v_lshlrev_b32 v15, 4, v5")
    a("v_add_u32 v15, s50, v15")
    a("v_lshrrev_b32 v10, 1, v9")
    a("v_xor_b32 v10, v10, v8")
    a("v_lshlrev_b32 v10, 4, v10")
    a("v_lshl_add_u32 v10, v8, 8, v10")
    a("v_and_b32 v11, 1, v9")
    a("v_lshl_add_u32 v10, v11, 3, v10")
    a("s_lshl_b32 s55, s%d, 13" % S_WAVE)
    a("s_add_u32 s55, s55, %d" % WQ_BASE)
    a("v_add_u32 v6, s55, v10")
    a("s_lshl_b32 s47, s%d, 5" % S_WAVE)
    a("v_add_u32 v0, s47, v9")
    a("v_lshlrev_b32 v0, 13, v0")
    a("v_lshl_add_u32 v0, v8, 4, v0")
    a("v_mov_b32 v7, v9")
    a("v_mov_b32 v5, v8")
    WA = 40
    H1F = 32
    WA = 4
    vm = VmTrack()

    def wq_dma(c):
        a("s_add_u32 s48, s46, %d" % (WQ_BASE + (c & 3) * 16384))
        a("s_mov_b32 m0, s48")
        a("s_mov_b32 s49, %d" % (c * 64 * 8192))
        a("buffer_load_dwordx4 v13, s[16:19], s49 offen lds")
        a("buffer_load_dwordx4 v14, s[16:19], s49 offen offset:1024 lds")
        vm.add("W%d" % c, 2)

    def h1_loads(c):
        a("s_mov_b32 s51, %d" % (c * 4096))
        for i in range(4):
            f = H1F + 16 * c + 4 * i
            a("buffer_load_dwordx4 v[%d:%d], v15, s[20:23], s51 offen offset:%d" % (f, f + 3, 1024 * i))
        vm.add("H%d" % c, 4)

    for dt in range(8):
        a("v_add_u32 v%d, %d, v%d" % (VAD + dt, WQ_BASE, VAD + dt))
    for c in range(2):
        wq_dma(c)
        h1_loads(c)
    stamp(a)
    for c in range(8):
        a("s_waitcnt vmcnt(%d)" % vm.wait_for(["W%d" % c, "H%d" % c]))
        a("s_barrier")
        if c in (0, 1, 4):
            stamp(a)
        if c + 2 < 8:
            wq_dma(c + 2)
            h1_loads(c + 2)
        if c == 5:
            for s in dma_k(0) + dma_k(1) + dma_v(0):
                a(s)
            vm.add("KV", 6)
        if c == 6:
            for s in dma_k(2) + dma_v(1):
                a(s)
            vm.add("KV", 4)
            a("s_lshl_b32 s47, s2, 3")
            a("s_add_u32 s47, s47, s%d" % S_WAVE)
            a("s_lshl_b32 s47, s47, 6")
            a("v_lshl_add_u32 v104, v7, 4, v5")
            a("v_add_u32 v104, s47, v104")
            a("s_mov_b32 s47, %d" % (149797 * 128))
            a("v_mul_hi_u32 v106, v104, s47")
            a("s_mov_b32 s47, 224")
            a("v_mul_lo_u32 v107, v106, s47")
            a("v_sub_u32 v107, v104, v107")
            a("v_lshrrev_b32 v105, 2, v107")
            a("v_and_b32 v107, 3, v107")
            a("v_lshlrev_b32 v105, 15, v105")
            a("v_lshl_add_u32 v105, v106, 6, v105")
            a("v_lshl_add_u32 v105, v107, 4, v105")
            a("v_mov_b32 v107, 0x7fffffff")
            a("v_cmp_gt_u32 vcc, 512, v106")
            a("v_lshlrev_b32 v104, 4, v104")
            a("v_cndmask_b32 v105, v107, v105, vcc")
            for i, base in enumerate((84, 86)):
                a("s_mov_b32 s56, s%d" % base)
                a("s_mov_b32 s57, s%d" % (base + 1))
                a("s_mov_b32 s58, %d" % (512 * 3584))
                a("s_mov_b32 s59, 0x00020000")
                a("buffer_load_dwordx4 v[%d:%d], v104, s[56:59], 0 offen" % (96 + 4 * i, 99 + 4 * i))
            vm.add("RP", 2)
        cb = (c & 3) * 16384
        items = []
        for s2 in range(2):
            for dt in range(8):
                s = 2 * c + s2
                def reads(fr, dt=dt, s2=s2, cb=cb):
                    return ["ds_read_b64_tr_b16 v[%d:%d], v%d offset:%d" % (fr, fr + 1, VAD + dt, cb + s2 * 8192),
                            "ds_read_b64_tr_b16 v[%d:%d], v%d offset:%d" % (fr + 2, fr + 3, VAD + dt, cb + s2 * 8192 + 4096)]
                mfs = []
                for qt in range(2):
                    d = OACC + 8 * dt + 4 * qt
                    mfs.append(lambda fr, d=d, s=s, qt=qt: mfma(d, fr, H1F + 8 * s + 4 * qt, None if s == 0 else d))
                items.append(Item(reads, mfs))
        st = Stream(a, QF, 8, 6)
        st.run(items, False)
    a("s_nop 15")
    a("s_barrier")
    for dt in range(8):
        a("v_add_u32 v%d, %d, v%d" % (VAD + dt, VBASE - WQ_BASE, VAD + dt))
    a("v_mov_b32 v40, v6")
    a("v_mov_b32 v41, v7")
    a("v_mov_b32 v42, v5")
    lds_tile_write(a, 6)
    for s in range(4):
        a("v_add_u32 v%d, s55, v%d" % (T0 + 4 + s, KAD + s))
    a("s_waitcnt lgkmcnt(0)")
    for qt in range(2):
        for s in range(4):
            f = QF + 16 * qt + 4 * s
            a("ds_read_b128 v[%d:%d], v%d offset:%d" % (f, f + 3, T0 + 4 + s, qt * 4096))
    for i in range(4):
        a("v_mov_b32 v%d, 0x3f803f80" % (ONES + i))

    def main_part(safe, tag):
        for i in range(64):
            a("v_mov_b32 v%d, 0" % (OACC + i))
        for r in (MP, M0, M1):
            a("v_mov_b32 v%d, 0xff800000" % r)
        for i in range(8):
            a("v_mov_b32 v%d, 0" % (LSUM + i))
        if not safe:
            stamp(a)
        a("s_waitcnt vmcnt(0) lgkmcnt(0)")
        a("s_barrier")
        if not safe:
            for i, off in enumerate((WS_GP, WS_UP)):
                a("s_add_u32 s56, s30, 0x%x" % off)
                a("s_addc_u32 s57, s31, 0")
                a("s_mov_b32 s58, %d" % (512 * 3584))
                a("s_mov_b32 s59, 0x00020000")
                a("buffer_store_dwordx4 v[%d:%d], v105, s[56:59], 0 offen" % (96 + 4 * i, 99 + 4 * i))
        body = []
        for t in range(6):
            body += iter_items(t, safe=safe)
        st = Stream(a, POOL, NPOOL, LOOK)
        q0 = qk_items(0, SB[0])
        st.run(q0, False, body)
        a("s_nop 15")
        for s in max_ops(SB[0]) + rescale_check():
            st.emit(s)
        if not safe:
            stamp(a)
            a("s_lshl_b32 s47, s2, 3")
            a("s_add_u32 s47, s47, s%d" % S_WAVE)
            a("s_lshl_b32 s47, s47, 10")
            a("v_lshl_add_u32 v43, v42, 4, s47")
            a("v_lshl_add_u32 v43, v41, 8, v43")
            for base, nb, two in ((80, 4096 * 1024, True), (88, 1792 * 1024, False)):
                a("s_mov_b32 s56, s%d" % base)
                a("s_mov_b32 s57, s%d" % (base + 1))
                a("s_mov_b32 s58, %d" % nb)
                a("s_mov_b32 s59, 0x00020000")
                if two:
                    a("buffer_load_dwordx4 v[44:47], v43, s[56:59], 0 offen")
                    a("s_mov_b32 s47, %d" % (2048 * 1024))
                    a("buffer_load_dwordx4 v[44:47], v43, s[56:59], s47 offen")
                else:
                    a("buffer_load_dwordx4 v[44:47], v43, s[56:59], 0 offen")
        a("s_mov_b32 s%d, 5" % S_CNT)
        a.label("L_k3_loop" + tag)
        st.run(body, True, body)
        a("s_sub_u32 s%d, s%d, 1" % (S_CNT, S_CNT))
        a("s_cmp_lg_u32 s%d, 0" % S_CNT)
        a("s_cbranch_scc1 L_k3_loop" + tag)
        tail = iter_items(30, do_dma_k=False, do_dma_v=False, safe=safe) + iter_items(31, do_qk=False)
        st.run(tail, True)
        a("s_setprio 0")

    main_part(False, "f")
    a("s_nop 15")
    a("v_max_f32 v%d, v%d, v%d" % (T0, LSUM, LSUM + 4))
    a("v_mov_b32 v%d, 0x5f800000" % (T0 + 1))
    a("v_cmp_nlt_f32 vcc, v%d, v%d" % (LSUM, T0 + 1))
    a("v_cmp_nlt_f32 s[48:49], v%d, v%d" % (LSUM + 4, T0 + 1))
    a("s_nop 1")
    a("s_or_b64 s[48:49], s[48:49], vcc")
    a("s_cmp_lg_u64 s[48:49], 0")
    a("s_cselect_b32 s47, 1, 0")
    a("v_mov_b32 v%d, s47" % T0)
    a("s_lshl_b32 s47, s%d, 2" % S_WAVE)
    a("v_mov_b32 v%d, s47" % (T0 + 1))
    a("ds_write_b32 v%d, v%d offset:%d" % (T0 + 1, T0, KSLOT[2]))
    a("s_waitcnt lgkmcnt(0)")
    a("s_barrier")
    a("v_mov_b32 v%d, 0" % (T0 + 1))
    a("ds_read_b128 v[%d:%d], v%d offset:%d" % (POOL, POOL + 3, T0 + 1, KSLOT[2]))
    a("ds_read_b128 v[%d:%d], v%d offset:%d" % (POOL + 4, POOL + 7, T0 + 1, KSLOT[2] + 16))
    a("s_waitcnt lgkmcnt(0)")
    for i in range(1, 8):
        a("v_or_b32 v%d, v%d, v%d" % (POOL, POOL, POOL + i))
    a("s_nop 0")
    a("v_readfirstlane_b32 s47, v%d" % POOL)
    a("s_cmp_eq_u32 s47, 0")
    a("s_cbranch_scc1 L_k3_epi")
    a("s_barrier")
    a("s_mov_b32 s%d, 0" % S_KOFF)
    a("s_mov_b32 s%d, 0" % S_VOFF)
    for s in dma_k(0) + dma_k(1) + dma_v(0) + dma_k(2) + dma_v(1):
        a(s)
    main_part(True, "s")
    a.label("L_k3_epi")
    stamp(a)
    a("s_nop 15")
    a("v_rcp_f32 v%d, v%d" % (M0, LSUM))
    a("v_rcp_f32 v%d, v%d" % (M1, LSUM + 4))
    a("s_nop 0")
    lds_tile_write(a, 40, scale=(M0, M1))
    for i in range(4):
        a("v_add_u32 v%d, %d, v41" % (T0 + 4, 4 * i))
        a("v_xor_b32 v%d, v%d, v42" % (T0 + 5, T0 + 4))
        a("v_lshlrev_b32 v%d, 4, v%d" % (T0 + 5, T0 + 5))
        a("v_lshl_add_u32 v%d, v%d, 8, v%d" % (T0 + 5, T0 + 4, T0 + 5))
        a("v_add_u32 v%d, s55, v%d" % (KAD + i, T0 + 5))
    a("s_waitcnt lgkmcnt(0)")
    for i in range(8):
        f = SB[0] + 4 * i
        a("ds_read_b128 v[%d:%d], v%d offset:%d" % (f, f + 3, KAD + (i & 3), (i >> 2) * 4096))
    for i in range(8):
        f = SB[0] + 4 * i
        a("s_waitcnt lgkmcnt(%d)" % (7 - i))
        a("s_mov_b32 s47, %d" % (i * 4 * 8192))
        a("buffer_store_dwordx4 v[%d:%d], v0, s[24:27], s47 offen" % (f, f + 3))
    stamp(a)
    stamp_flush(a)
    a.label("L_k3_done")
    a("s_endpgm")
    return name, 256
```

```python
from asmlib import *
from small import *
import os
DIAG5 = os.environ.get("DIAG5", "0") == "1"
_n5 = [0]


def st5(a):
    if DIAG5:
        a("s_memrealtime s[%d:%d]" % (96 + 0, 97))
        a("s_waitcnt lgkmcnt(0)")
        a("v_mov_b32 v120, s96")
        a("s_lshl_b32 s98, s2, 3")
        a("s_add_u32 s98, s98, s52")
        a("s_lshl_b32 s98, s98, 6")
        a("s_add_u32 s98, s98, 0x%x" % (0x3000000 - WS_P6B + 4 * _n5[0]))
        a("v_mov_b32 v121, s98")
        a("s_mov_b32 s94, 0x7fffffff")
        a("buffer_store_dword v120, v121, s[92:95], 0 offen")
        _n5[0] += 1


def signal(a, srd, off, tmpv):
    a("s_waitcnt vmcnt(0) lgkmcnt(0)")
    a("s_barrier")
    a("v_mov_b32 v%d, 1" % tmpv)
    a("s_lshl_b32 s58, s2, 2")
    a("v_mov_b32 v%d, s58" % (tmpv + 1))
    a("v_cmp_eq_u32 vcc, 0, v0")
    a("s_and_saveexec_b64 s[48:49], vcc")
    a("buffer_store_dword v%d, v%d, s[%d:%d], 0 offen offset:%d sc1" % (tmpv, tmpv + 1, srd, srd + 3, off))
    a("s_mov_b64 exec, s[48:49]")


_wl = [0]


def wait_flags(a, srd, off, n, swave, tmpv):
    _wl[0] += 1
    lp, dn = "L_poll%d" % _wl[0], "L_polldone%d" % _wl[0]
    a("s_cmp_lg_u32 s%d, 0" % swave)
    a("s_cbranch_scc1 %s" % dn)
    if n == 256:
        a("v_lshlrev_b32 v%d, 4, v0" % (tmpv + 4))
    else:
        a("v_min_u32 v%d, %d, v0" % (tmpv + 4, n - 1))
        a("v_lshlrev_b32 v%d, 2, v%d" % (tmpv + 4, tmpv + 4))
    a.label(lp)
    if n == 256:
        a("buffer_load_dwordx4 v[%d:%d], v%d, s[%d:%d], 0 offen offset:%d sc1" % (tmpv, tmpv + 3, tmpv + 4, srd, srd + 3, off))
        a("s_waitcnt vmcnt(0)")
        a("v_and_b32 v%d, v%d, v%d" % (tmpv, tmpv, tmpv + 1))
        a("v_and_b32 v%d, v%d, v%d" % (tmpv + 2, tmpv + 2, tmpv + 3))
        a("v_and_b32 v%d, v%d, v%d" % (tmpv, tmpv, tmpv + 2))
    else:
        a("buffer_load_dword v%d, v%d, s[%d:%d], 0 offen offset:%d sc1" % (tmpv, tmpv + 4, srd, srd + 3, off))
        a("s_waitcnt vmcnt(0)")
    a("v_cmp_ne_u32 vcc, 1, v%d" % tmpv)
    a("s_nop 1")
    a("s_cbranch_vccz %s" % dn)
    a("s_sleep 1")
    a("s_branch %s" % lp)
    a.label(dn)
    a("s_barrier")


def gen_k12(a):
    name = "k1_modln_kernel"
    kernel_header(a, name)
    a("s_cmp_ge_u32 s2, 256")
    a("s_cbranch_scc1 L_k12_done")
    a("s_load_dwordx2 s[50:51], s[0:1], %d" % KA["x"])
    a("s_load_dwordx4 s[4:7], s[0:1], %d" % KA["c"])
    a("s_load_dwordx4 s[20:23], s[0:1], %d" % KA["dbg"])
    a("v_and_b32 v1, 63, v0")
    a("v_lshrrev_b32 v2, 6, v0")
    a("s_nop 0")
    a("v_readfirstlane_b32 s52, v2")
    a("s_waitcnt lgkmcnt(0)")
    srd_from(a, 8, 4, 0, 1024)
    srd_from(a, 12, 6, 0, 512 * 6144)
    srd_from(a, 16, 22, WS_MOD, 3072 * 4)
    srd_from(a, 24, 50, 0, 2048 * 1024)
    srd_from(a, 28, 22, WS_H1, 2048 * 1024)
    srd_from(a, 32, 20, 0, 256)
    a("s_lshl_b32 s53, s2, 13")
    a("v_lshlrev_b32 v3, 10, v2")
    a("v_lshlrev_b32 v4, 4, v1")
    a("v_add3_u32 v3, v3, v4, s53")
    a("buffer_load_dwordx4 v[108:111], v3, s[24:27], 0 offen")
    a("s_cmp_ge_u32 s2, 48")
    a("s_cbranch_scc1 L_k12_ln")
    a("s_cmp_ge_u32 s52, 4")
    a("s_cbranch_scc1 L_k12_gskip")
    a("v_and_b32 v5, 7, v0")
    a("v_lshrrev_b32 v6, 3, v0")
    a("v_lshlrev_b32 v7, 5, v6")
    a("buffer_load_dwordx4 v[8:11], v7, s[8:11], 0 offen")
    a("buffer_load_dwordx4 v[12:15], v7, s[8:11], 0 offen offset:16")
    a("s_mov_b32 s53, %d" % (16 * 6144))
    a("v_mul_lo_u32 v7, v6, s53")
    a("v_lshl_add_u32 v7, v5, 4, v7")
    a("s_lshl_b32 s53, s2, 7")
    a("v_add_u32 v7, s53, v7")
    for i in range(16):
        a("s_mov_b32 s54, %d" % (i * 6144))
        a("buffer_load_dwordx4 v[%d:%d], v7, s[12:15], s54 offen" % (32 + 4 * i, 35 + 4 * i))
    a("s_waitcnt vmcnt(16)")
    for i in range(8):
        unpack_bf16(a, 8 + i, 16 + 2 * i, 17 + 2 * i)
    for i in range(16):
        silu_reg(a, 16 + i, 104)
        round_bf16(a, 16 + i)
    for j in range(8):
        a("v_mov_b32 v%d, 0" % (96 + j))
    for i in range(16):
        a("s_waitcnt vmcnt(%d)" % (15 - i))
        for d in range(4):
            unpack_bf16(a, 32 + 4 * i + d, 104, 105)
            a("v_fmac_f32 v%d, v%d, v104" % (96 + 2 * d, 16 + i))
            a("v_fmac_f32 v%d, v%d, v105" % (97 + 2 * d, 16 + i))
    a("v_lshlrev_b32 v7, 8, v6")
    a("v_lshl_add_u32 v7, v5, 5, v7")
    a("ds_write_b128 v7, v[96:99]")
    a("ds_write_b128 v7, v[100:103] offset:16")
    a("s_waitcnt lgkmcnt(0)")
    a.label("L_k12_gskip")
    a("s_barrier")
    a("s_cmp_lg_u32 s52, 0")
    a("s_cbranch_scc1 L_k12_rskip")
    a("v_lshlrev_b32 v7, 2, v0")
    for g in range(32):
        a("ds_read_b32 v%d, v7 offset:%d" % (32 + g, g * 256))
    a("s_waitcnt lgkmcnt(0)")
    for g in range(1, 32):
        a("v_add_f32 v32, v32, v%d" % (32 + g))
    round_bf16(a, 32)
    a("s_lshl_b32 s53, s2, 8")
    a("v_add_u32 v7, s53, v7")
    a("buffer_store_dword v32, v7, s[16:19], 0 offen sc1")
    a.label("L_k12_rskip")
    signal(a, 32, 0, 5)
    a.label("L_k12_ln")
    a("s_waitcnt vmcnt(0)")
    for i in range(4):
        unpack_bf16(a, 108 + i, 16 + 2 * i, 17 + 2 * i)
    layernorm8(a, 16, 40)
    wait_counter(a, 32, 0, 48, 52, 5)
    a("v_lshlrev_b32 v5, 5, v1")
    a("buffer_load_dwordx4 v[24:27], v5, s[16:19], 0 offen sc1")
    a("buffer_load_dwordx4 v[28:31], v5, s[16:19], 0 offen offset:16 sc1")
    a("buffer_load_dwordx4 v[32:35], v5, s[16:19], 0 offen offset:2048 sc1")
    a("buffer_load_dwordx4 v[36:39], v5, s[16:19], 0 offen offset:2064 sc1")
    a("s_lshl_b32 s53, s2, 3")
    a("v_add_u32 v40, s53, v2")
    a("v_lshrrev_b32 v41, 5, v40")
    a("v_lshlrev_b32 v41, 15, v41")
    a("v_lshrrev_b32 v42, 1, v1")
    a("v_lshl_add_u32 v41, v42, 10, v41")
    a("v_and_b32 v42, 1, v1")
    a("v_lshl_add_u32 v41, v42, 9, v41")
    a("v_and_b32 v42, 31, v40")
    a("v_lshl_add_u32 v41, v42, 4, v41")
    a("s_waitcnt vmcnt(0)")
    modulate8(a, 16, 32, 24, 44)
    pack8(a, 16, 8)
    a("buffer_store_dwordx4 v[8:11], v41, s[28:31], 0 offen")
    a.label("L_k12_done")
    a("s_endpgm")
    return name, 112


def gen_tail(a, nsplit=4):
    name = "k5_tail_kernel"
    kernel_header(a, name)
    GB, UB, DB, XB = 8192, 40960, 73728, 0
    TK = XB + 4096
    GUB = XB + 6144
    a("s_cmp_ge_u32 s2, 256")
    a("s_cbranch_scc1 L_k5_done")
    a("s_load_dwordx2 s[4:5], s[0:1], %d" % KA["x"])
    a("s_load_dwordx4 s[60:63], s[0:1], %d" % KA["wr"])
    a("s_load_dwordx4 s[64:67], s[0:1], %d" % KA["wu"])
    a("s_load_dwordx2 s[68:69], s[0:1], %d" % KA["out"])
    a("s_load_dwordx4 s[20:23], s[0:1], %d" % KA["dbg"])
    a("v_and_b32 v1, 63, v0")
    a("v_lshrrev_b32 v2, 6, v0")
    a("s_nop 0")
    a("v_readfirstlane_b32 s52, v2")
    a("s_waitcnt lgkmcnt(0)")
    srd_from(a, 8, 4, 0, 2048 * 1024)
    srd_from(a, 12, 22, WS_MOD, 3072 * 4)
    srd_from(a, 16, 22, WS_PART, nsplit * 2048 * 2048)
    srd_from(a, 24, 60, 0, 1024)
    srd_from(a, 28, 68, 0, 2048 * 1024)
    srd_from(a, 32, 22, WS_X1, 2048 * 1024)
    srd_from(a, 36, 22, WS_H2, 2048 * 1024)
    srd_from(a, 72, 22, WS_R, 2048 * 4)
    srd_from(a, 76, 22, WS_FLAG, 320 * 4)
    srd_from(a, 80, 22, WS_GP, 512 * 3584)
    srd_from(a, 84, 22, WS_UP, 512 * 3584)
    srd_from(a, 88, 66, 0, 1792 * 1024)
    srd_from(a, 92, 22, WS_P6B, 56 * 8 * 512 * 4)
    a("s_cmp_lt_u32 s52, 8")
    a("s_cbranch_scc1 L_k5_rows")
    a("s_cmp_ge_u32 s2, 56")
    a("s_cbranch_scc1 L_k5_done")
    a("s_sub_u32 s59, s52, 8")
    a("v_lshlrev_b32 v112, 4, v1")
    a("s_lshl_b32 s56, s59, 14")
    a("s_lshl_b32 s53, s2, 15")
    a("s_add_u32 s53, s53, s56")
    for mat, base in ((80, GB), (84, UB)):
        for i in range(16):
            a("s_add_u32 s54, s56, %d" % (base + i * 1024))
            a("s_mov_b32 m0, s54")
            a("s_add_u32 s55, s53, %d" % (i * 1024))
            a("buffer_load_dwordx4 v112, s[%d:%d], s55 offen lds" % (mat, mat + 3))
    a("s_mul_i32 s57, s59, %d" % (16 * 1056))
    for i in range(16):
        a("s_add_u32 s54, s57, %d" % (DB + i * 1056))
        a("s_mov_b32 m0, s54")
        a("s_add_u32 s55, s53, %d" % (i * 1024))
        a("buffer_load_dwordx4 v112, s[88:91], s55 offen lds")
    a("s_barrier")
    a("s_waitcnt vmcnt(0)")
    a("s_barrier")
    a("s_branch L_k5_done")
    a.label("L_k5_rows")
    st5(a)
    a("s_lshl_b32 s53, s2, 13")
    a("v_lshlrev_b32 v3, 10, v2")
    a("v_lshlrev_b32 v4, 4, v1")
    a("v_add3_u32 v3, v3, v4, s53")
    a("v_lshlrev_b32 v6, 1, v3")
    a("buffer_load_dwordx4 v[8:11], v3, s[8:11], 0 offen")
    for p in range(nsplit):
        a("s_mov_b32 s53, 0x%x" % (p * 2048 * 2048))
        a("buffer_load_dwordx4 v[%d:%d], v6, s[16:19], s53 offen" % (64 + 8 * p, 67 + 8 * p))
        a("buffer_load_dwordx4 v[%d:%d], v6, s[16:19], s53 offen offset:16" % (68 + 8 * p, 71 + 8 * p))
    a("v_lshlrev_b32 v5, 5, v1")
    for j, base in ((2, 24), (3, 32), (4, 40), (5, 48)):
        a("s_mov_b32 s53, %d" % (j * 2048))
        a("buffer_load_dwordx4 v[%d:%d], v5, s[12:15], s53 offen" % (base, base + 3))
        a("buffer_load_dwordx4 v[%d:%d], v5, s[12:15], s53 offen offset:16" % (base + 4, base + 7))
    a("buffer_load_dwordx4 v[12:15], v4, s[24:27], 0 offen")
    a("s_waitcnt vmcnt(0)")
    a.label("L_k5_p1")
    st5(a)
    for i in range(4):
        unpack_bf16(a, 8 + i, 16 + 2 * i, 17 + 2 * i)
    for p in range(1, nsplit):
        for i in range(8):
            a("v_add_f32 v%d, v%d, v%d" % (64 + i, 64 + i, 64 + 8 * p + i))
    T = 100
    for i in range(0, 8, 2):
        round_bf16_pair(a, 64 + i, 65 + i, T)
        a("v_mul_f32 v%d, v%d, v%d" % (64 + i, 64 + i, 24 + i))
        a("v_mul_f32 v%d, v%d, v%d" % (65 + i, 65 + i, 25 + i))
        round_bf16_pair(a, 64 + i, 65 + i, T)
        a("v_add_f32 v%d, v%d, v%d" % (16 + i, 16 + i, 64 + i))
        a("v_add_f32 v%d, v%d, v%d" % (17 + i, 17 + i, 65 + i))
        round_bf16_pair(a, 16 + i, 17 + i, T)
    for i in range(8):
        a("v_mov_b32 v%d, v%d" % (72 + i, 16 + i))
    pack8(a, 16, 8)
    a("buffer_store_dwordx4 v[8:11], v3, s[32:35], 0 offen sc1")
    layernorm8(a, 16, T)
    modulate8(a, 16, 40, 32, T)
    pack8(a, 16, 84)
    a("buffer_store_dwordx4 v[84:87], v3, s[36:39], 0 offen sc1")
    for i in range(4):
        unpack_bf16(a, 12 + i, 88 + 2 * i, 89 + 2 * i)
    a("v_mul_f32 v%d, v16, v88" % T)
    for i in range(1, 8):
        a("v_fmac_f32 v%d, v%d, v%d" % (T, 16 + i, 88 + i))
    wave_allreduce(a, T, T + 1)
    round_bf16(a, T)
    a("v_lshrrev_b32 v7, 8, v3")
    a("v_cmp_eq_u32 vcc, 0, v1")
    a("s_and_saveexec_b64 s[48:49], vcc")
    a("buffer_store_dword v%d, v7, s[72:75], 0 offen sc1" % T)
    a("s_mov_b64 exec, s[48:49]")
    for i in range(0, 8, 2):
        a("v_mul_f32 v%d, v%d, v%d" % (16 + i, 16 + i, 48 + i))
        a("v_mul_f32 v%d, v%d, v%d" % (17 + i, 17 + i, 49 + i))
        round_bf16_pair(a, 16 + i, 17 + i, T)
        a("v_add_f32 v%d, v%d, v%d" % (16 + i, 16 + i, 72 + i))
        a("v_add_f32 v%d, v%d, v%d" % (17 + i, 17 + i, 73 + i))
    pack8(a, 16, 92)
    a("buffer_store_dwordx4 v[92:95], v3, s[28:31], 0 offen sc1")
    st5(a)
    signal(a, 76, 0, 5)
    st5(a)
    a("s_cmp_ge_u32 s2, 56")
    a("s_cbranch_scc1 L_k5_done")
    a("s_cmp_ge_u32 s52, 4")
    a("s_cbranch_scc1 L_k5_done")
    a.label("L_k5_p2")
    a("v_mov_b32 v5, v1")
    a("v_and_b32 v6, 15, v5")
    a("v_lshrrev_b32 v7, 4, v5")
    wait_flags(a, 76, 0, 256, 52, 28)
    st5(a)
    K, T = 8, 16
    a("v_lshlrev_b32 v%d, 5, v0" % T)
    a("buffer_load_dwordx4 v[%d:%d], v%d, s[72:75], 0 offen sc1" % (K, K + 3, T))
    a("buffer_load_dwordx4 v[%d:%d], v%d, s[72:75], 0 offen offset:16 sc1" % (K + 4, K + 7, T))
    a("v_lshlrev_b32 v%d, 3, v0" % (T + 1))
    a("v_sub_u32 v%d, 2047, v%d" % (T + 1, T + 1))
    a("v_lshrrev_b32 v%d, 6, v0" % (T + 4))
    a("v_lshlrev_b32 v%d, 2, v%d" % (T + 4, T + 4))
    a("s_waitcnt vmcnt(0)")
    st5(a)
    topk8_compute(a, TK, K, T, 40)
    st5(a)
    a("v_and_b32 v16, 7, v6")
    a("v_mov_b32 v17, s40")
    for j in range(1, 8):
        a("v_mov_b32 v18, s%d" % (40 + j))
        a("v_cmp_eq_u32 vcc, %d, v16" % j)
        a("s_nop 1")
        a("v_cndmask_b32 v17, v17, v18, vcc")
    a("v_lshlrev_b32 v17, 10, v17")
    a("v_lshl_add_u32 v17, v7, 4, v17")
    XF = 64
    for st in range(16):
        a("buffer_load_dwordx4 v[%d:%d], v17, s[36:39], 0 offen offset:%d sc1" % (XF + 4 * st, XF + 4 * st + 3, 64 * st))
    a("v_lshrrev_b32 v18, 2, v6")
    a("v_lshl_add_u32 v18, v7, 3, v18")
    a("v_lshlrev_b32 v19, 6, v18")
    a("v_and_b32 v20, 3, v6")
    a("v_lshl_add_u32 v19, v20, 3, v19")
    a("s_and_b32 s54, s52, 1")
    a("s_lshl_b32 s54, s54, 5")
    a("s_lshr_b32 s55, s52, 1")
    a("s_lshl_b32 s55, s55, 15")
    a("s_add_u32 s54, s54, s55")
    a("v_add_u32 v19, s54, v19")
    AF = 32
    for st in range(16):
        f = AF + 4 * (st & 7)
        a("ds_read_b64_tr_b16 v[%d:%d], v19 offset:%d" % (f, f + 1, GB + st * 2048))
        a("ds_read_b64_tr_b16 v[%d:%d], v19 offset:%d" % (f + 2, f + 3, GB + st * 2048 + 256))
        if (st & 3) == 3:
            a("s_waitcnt lgkmcnt(0) vmcnt(%d)" % (15 - st))
            for s2 in range(st - 3, st + 1):
                f2 = AF + 4 * (s2 & 7)
                c = "0" if s2 == 0 else "v[28:31]"
                a("v_mfma_f32_16x16x32_bf16 v[28:31], v[%d:%d], v[%d:%d], %s" % (
                    f2, f2 + 3, XF + 4 * s2, XF + 4 * s2 + 3, c))
    a("s_nop 15")
    st5(a)
    a("v_lshlrev_b32 v20, 7, v6")
    a("v_lshl_add_u32 v20, v7, 4, v20")
    a("s_and_b32 s54, s52, 1")
    a("s_lshl_b32 s54, s54, 6")
    a("s_lshr_b32 s55, s52, 1")
    a("s_lshl_b32 s55, s55, 11")
    a("s_add_u32 s54, s54, s55")
    a("v_add_u32 v20, s54, v20")
    a("ds_write_b128 v20, v[28:31] offset:%d" % XB)
    a("s_waitcnt lgkmcnt(0)")
    a("s_barrier")
    a("v_lshlrev_b32 v20, 2, v0")
    a("ds_read_b32 v21, v20 offset:%d" % XB)
    a("ds_read_b32 v22, v20 offset:%d" % (XB + 2048))
    a("s_waitcnt lgkmcnt(0)")
    round_bf16_pair(a, 21, 22, 24)
    silu_reg(a, 21, 24)
    round_bf16(a, 21)
    a("v_mul_f32 v21, v21, v22")
    a("v_cvt_pk_bf16_f32 v21, v21, v21")
    a("v_lshlrev_b32 v20, 1, v0")
    a("ds_write_b16 v20, v21 offset:%d" % GUB)
    a("s_waitcnt lgkmcnt(0)")
    a("s_barrier")
    a("v_lshlrev_b32 v20, 6, v16")
    a("v_lshl_add_u32 v20, v7, 4, v20")
    a("ds_read_b128 v[24:27], v20 offset:%d" % GUB)
    a("s_mov_b32 s53, 1056")
    a("v_mul_lo_u32 v21, v18, s53")
    a("v_and_b32 v22, 3, v6")
    a("v_lshl_add_u32 v21, v22, 3, v21")
    a("s_lshl_b32 s54, s52, 8")
    a("s_add_u32 s54, s54, %d" % DB)
    a("v_add_u32 v21, s54, v21")
    for tl in range(8):
        f = AF + 4 * tl
        a("ds_read_b64_tr_b16 v[%d:%d], v21 offset:%d" % (f, f + 1, tl * 32))
        a("ds_read_b64_tr_b16 v[%d:%d], v21 offset:%d" % (f + 2, f + 3, tl * 32 + 4 * 1056))
        if tl == 3:
            a("s_waitcnt lgkmcnt(0)")
    a("s_waitcnt lgkmcnt(0)")
    for tl in range(8):
        f = AF + 4 * tl
        d = XF + 4 * tl
        a("v_mfma_f32_16x16x32_bf16 v[%d:%d], v[%d:%d], v[24:27], 0" % (d, d + 3, f, f + 3))
    a("v_lshlrev_b32 v20, 11, v6")
    a("v_lshl_add_u32 v20, v7, 4, v20")
    a("s_lshl_b32 s54, s2, 14")
    a("s_lshl_b32 s55, s52, 9")
    a("s_add_u32 s54, s54, s55")
    a("v_add_u32 v20, s54, v20")
    a("v_cmp_gt_u32 vcc, 8, v6")
    a("s_nop 7")
    a("s_and_saveexec_b64 s[48:49], vcc")
    for tl in range(8):
        d = XF + 4 * tl
        a("buffer_store_dwordx4 v[%d:%d], v20, s[92:95], 0 offen offset:%d sc1" % (d, d + 3, tl * 64))
    a("s_mov_b64 exec, s[48:49]")
    st5(a)
    signal(a, 76, 1024, 5)
    st5(a)
    a("s_cmp_ge_u32 s2, 16")
    a("s_cbranch_scc1 L_k5_done")
    a("s_lshr_b32 s53, s2, 1")
    a("s_mov_b32 s54, s40")
    for j in range(1, 8):
        a("s_cmp_eq_u32 s53, %d" % j)
        a("s_cselect_b32 s54, s%d, s54" % (40 + j))
    a("s_lshl_b32 s53, s2, 8")
    a("v_add_u32 v1, s53, v0")
    a("v_lshlrev_b32 v2, 2, v1")
    a("v_and_b32 v3, 511, v1")
    a("s_lshl_b32 s55, s54, 10")
    a("v_lshl_add_u32 v4, v3, 1, s55")
    a("s_lshl_b32 s55, s54, 2")
    a("v_mov_b32 v5, s55")
    a("v_lshlrev_b32 v6, 2, v3")
    a("buffer_load_ushort v67, v4, s[36:39], 0 offen sc1")
    a("buffer_load_ushort v68, v4, s[32:35], 0 offen sc1")
    a("buffer_load_dword v69, v5, s[72:75], 0 offen sc1")
    a("s_mov_b32 s53, %d" % (5 * 2048))
    a("buffer_load_dword v70, v6, s[12:15], s53 offen")
    wait_flags(a, 76, 1024, 56, 52, 72)
    st5(a)
    for b in range(56):
        a("s_mov_b32 s53, %d" % (b * 16384))
        a("buffer_load_dword v%d, v2, s[92:95], s53 offen sc1" % (8 + b))
    a("s_waitcnt vmcnt(56)")
    a("v_lshlrev_b32 v67, 16, v67")
    a("v_lshlrev_b32 v68, 16, v68")
    a("v_mul_f32 v71, %s, v69" % NLOG2E)
    a("v_exp_f32 v71, v71")
    a("s_nop 0")
    a("v_add_f32 v71, 1.0, v71")
    a("v_rcp_f32 v71, v71")
    a("s_nop 0")
    round_bf16(a, 71)
    a("s_waitcnt vmcnt(0)")
    regs = list(range(8, 64))
    while len(regs) > 1:
        nxt = []
        for i in range(0, len(regs) - 1, 2):
            a("v_add_f32 v%d, v%d, v%d" % (regs[i], regs[i], regs[i + 1]))
            nxt.append(regs[i])
        if len(regs) & 1:
            nxt.append(regs[-1])
        regs = nxt
    y = regs[0]
    round_bf16(a, y)
    a("v_mul_f32 v%d, v%d, v71" % (y, y))
    round_bf16(a, y)
    a("v_add_f32 v%d, v%d, v67" % (y, y))
    round_bf16(a, y)
    a("v_mul_f32 v%d, v%d, v70" % (y, y))
    round_bf16(a, y)
    a("v_add_f32 v%d, v%d, v68" % (y, y))
    a("v_cvt_pk_bf16_f32 v%d, v%d, v%d" % (y, y, y))
    a("buffer_store_short v%d, v4, s[28:31], 0 offen sc1" % y)
    a("s_waitcnt vmcnt(0)")
    st5(a)
    a.label("L_k5_done")
    a("s_endpgm")
    return name, 128
```

```python
from asmlib import *

LOG2E = "0x3fb8aa3b"
NLOG2E = "0xbfb8aa3b"


def silu_reg(a, x, t):
    a("v_mul_f32 v%d, %s, v%d" % (t, NLOG2E, x))
    a("v_exp_f32 v%d, v%d" % (t, t))
    a("s_nop 0")
    a("v_add_f32 v%d, 1.0, v%d" % (t, t))
    a("v_rcp_f32 v%d, v%d" % (t, t))
    a("s_nop 0")
    a("v_mul_f32 v%d, v%d, v%d" % (x, x, t))


def gen_mod(a):
    name = "k1_mod_kernel"
    kernel_header(a, name)
    a("s_cmp_ge_u32 s2, 48")
    a("s_cbranch_scc1 L_k1_done")
    a("s_load_dwordx4 s[4:7], s[0:1], %d" % KA["c"])
    a("s_load_dwordx2 s[20:21], s[0:1], %d" % KA["ws"])
    a("v_and_b32 v1, 7, v0")
    a("v_lshrrev_b32 v2, 3, v0")
    a("s_waitcnt lgkmcnt(0)")
    srd_from(a, 8, 4, 0, 1024)
    srd_from(a, 12, 6, 0, 512 * 6144)
    srd_from(a, 16, 20, WS_MOD, 3072 * 4)
    a("s_cmp_lg_u32 s2, 0")
    a("s_cbranch_scc1 L_k1_noflag")
    srd_from(a, 28, 20, WS_FLAG, 4096)
    a("v_lshlrev_b32 v3, 2, v0")
    a("v_mov_b32 v4, 0")
    a("buffer_store_dword v4, v3, s[28:31], 0 offen")
    a("buffer_store_dword v4, v3, s[28:31], 0 offen offset:1024")
    a("buffer_store_dword v4, v3, s[28:31], 0 offen offset:2048")
    a("buffer_store_dword v4, v3, s[28:31], 0 offen offset:3072")
    a.label("L_k1_noflag")
    a("v_lshlrev_b32 v3, 5, v2")
    a("buffer_load_dwordx4 v[8:11], v3, s[8:11], 0 offen")
    a("buffer_load_dwordx4 v[12:15], v3, s[8:11], 0 offen offset:16")
    a("s_mov_b32 s22, %d" % (16 * 6144))
    a("v_mul_lo_u32 v4, v2, s22")
    a("v_lshlrev_b32 v5, 4, v1")
    a("v_add_u32 v4, v4, v5")
    a("s_lshl_b32 s23, s2, 7")
    a("v_add_u32 v4, s23, v4")
    for i in range(16):
        a("s_mov_b32 s24, %d" % (i * 6144))
        a("buffer_load_dwordx4 v[%d:%d], v4, s[12:15], s24 offen" % (32 + 4 * i, 35 + 4 * i))
    a("s_waitcnt vmcnt(16)")
    for i in range(8):
        unpack_bf16(a, 8 + i, 16 + 2 * i, 17 + 2 * i)
    for i in range(16):
        silu_reg(a, 16 + i, 104)
        round_bf16(a, 16 + i)
    for j in range(8):
        a("v_mov_b32 v%d, 0" % (96 + j))
    for i in range(16):
        a("s_waitcnt vmcnt(%d)" % (15 - i))
        for d in range(4):
            unpack_bf16(a, 32 + 4 * i + d, 104, 105)
            a("v_fmac_f32 v%d, v%d, v104" % (96 + 2 * d, 16 + i))
            a("v_fmac_f32 v%d, v%d, v105" % (97 + 2 * d, 16 + i))
    a("v_lshlrev_b32 v6, 8, v2")
    a("v_lshlrev_b32 v7, 5, v1")
    a("v_add_u32 v6, v6, v7")
    a("ds_write_b128 v6, v[96:99]")
    a("ds_write_b128 v6, v[100:103] offset:16")
    a("s_waitcnt lgkmcnt(0)")
    a("s_barrier")
    a("v_cmp_gt_u32 vcc, 64, v0")
    a("s_and_saveexec_b64 s[26:27], vcc")
    a("s_cbranch_execz L_k1_done")
    a("v_lshlrev_b32 v6, 2, v0")
    for g in range(32):
        a("ds_read_b32 v%d, v6 offset:%d" % (32 + g, g * 256))
    a("s_waitcnt lgkmcnt(0)")
    for g in range(1, 32):
        a("v_add_f32 v32, v32, v%d" % (32 + g))
    round_bf16(a, 32)
    a("s_lshl_b32 s23, s2, 8")
    a("v_add_u32 v6, s23, v6")
    a("buffer_store_dword v32, v6, s[16:19], 0 offen")
    a.label("L_k1_done")
    a("s_endpgm")
    return name, 112


def layernorm8(a, X, T):
    s, t, mean, meanb, den, rc = T, T + 1, T + 2, T + 3, T + 4, T + 5
    D = T + 6
    a("v_add_f32 v%d, v%d, v%d" % (s, X, X + 1))
    for i in range(2, 8):
        a("v_add_f32 v%d, v%d, v%d" % (s, s, X + i))
    wave_allreduce(a, s, t)
    a("v_mul_f32 v%d, 0x3b000000, v%d" % (mean, s))
    a("v_mov_b32 v%d, v%d" % (meanb, mean))
    round_bf16(a, meanb)
    a("v_mov_b32 v%d, 0" % s)
    for i in range(8):
        a("v_sub_f32 v%d, v%d, v%d" % (D, X + i, mean))
        a("v_fmac_f32 v%d, v%d, v%d" % (s, D, D))
    wave_allreduce(a, s, t)
    a("v_mul_f32 v%d, 0x3b000000, v%d" % (den, s))
    round_bf16(a, den)
    a("v_add_f32 v%d, 0x3727c5ac, v%d" % (den, den))
    round_bf16(a, den)
    a("v_sqrt_f32 v%d, v%d" % (den, den))
    a("s_nop 0")
    round_bf16(a, den)
    a("v_rcp_f32 v%d, v%d" % (rc, den))
    a("s_nop 0")
    for i in range(0, 8, 2):
        a("v_sub_f32 v%d, v%d, v%d" % (X + i, X + i, meanb))
        a("v_sub_f32 v%d, v%d, v%d" % (X + i + 1, X + i + 1, meanb))
        round_bf16_pair(a, X + i, X + i + 1, t)
        for e in range(2):
            x = X + i + e
            a("v_mul_f32 v%d, v%d, v%d" % (D, x, rc))
            a("v_fma_f32 v%d, -v%d, v%d, v%d" % (D + 1, D, den, x))
            a("v_fma_f32 v%d, v%d, v%d, v%d" % (x, D + 1, rc, D))
        round_bf16_pair(a, X + i, X + i + 1, t)


def modulate8(a, X, SC, SH, t):
    for i in range(0, 8, 2):
        a("v_add_f32 v%d, 1.0, v%d" % (SC + i, SC + i))
        a("v_add_f32 v%d, 1.0, v%d" % (SC + i + 1, SC + i + 1))
        round_bf16_pair(a, SC + i, SC + i + 1, t)
        a("v_mul_f32 v%d, v%d, v%d" % (X + i, X + i, SC + i))
        a("v_mul_f32 v%d, v%d, v%d" % (X + i + 1, X + i + 1, SC + i + 1))
        round_bf16_pair(a, X + i, X + i + 1, t)
        a("v_add_f32 v%d, v%d, v%d" % (X + i, X + i, SH + i))
        a("v_add_f32 v%d, v%d, v%d" % (X + i + 1, X + i + 1, SH + i + 1))
        round_bf16_pair(a, X + i, X + i + 1, t)


def pack8(a, X, P):
    for i in range(4):
        a("v_cvt_pk_bf16_f32 v%d, v%d, v%d" % (P + i, X + 2 * i, X + 2 * i + 1))


def gen_ln1(a):
    name = "k2_ln1_kernel"
    kernel_header(a, name)
    a("s_cmp_ge_u32 s2, 256")
    a("s_cbranch_scc1 L_k2_done")
    a("s_load_dwordx2 s[4:5], s[0:1], %d" % KA["x"])
    a("s_load_dwordx2 s[20:21], s[0:1], %d" % KA["ws"])
    a("v_and_b32 v1, 63, v0")
    a("v_lshrrev_b32 v2, 6, v0")
    a("s_waitcnt lgkmcnt(0)")
    srd_from(a, 8, 4, 0, 2048 * 1024)
    srd_from(a, 12, 20, WS_MOD, 3072 * 4)
    srd_from(a, 16, 20, WS_H1, 2048 * 1024)
    a("s_lshl_b32 s22, s2, 13")
    a("v_lshlrev_b32 v3, 10, v2")
    a("v_lshlrev_b32 v4, 4, v1")
    a("v_add3_u32 v3, v3, v4, s22")
    a("buffer_load_dwordx4 v[8:11], v3, s[8:11], 0 offen")
    a("v_lshlrev_b32 v5, 5, v1")
    a("buffer_load_dwordx4 v[24:27], v5, s[12:15], 0 offen")
    a("buffer_load_dwordx4 v[28:31], v5, s[12:15], 0 offen offset:16")
    a("buffer_load_dwordx4 v[32:35], v5, s[12:15], 0 offen offset:2048")
    a("buffer_load_dwordx4 v[36:39], v5, s[12:15], 0 offen offset:2064")
    a("s_waitcnt vmcnt(4)")
    for i in range(4):
        unpack_bf16(a, 8 + i, 16 + 2 * i, 17 + 2 * i)
    layernorm8(a, 16, 40)
    a("s_waitcnt vmcnt(0)")
    modulate8(a, 16, 32, 24, 40)
    pack8(a, 16, 8)
    a("s_lshl_b32 s22, s2, 3")
    a("v_add_u32 v40, s22, v2")
    a("v_lshrrev_b32 v41, 5, v40")
    a("v_lshlrev_b32 v41, 15, v41")
    a("v_lshrrev_b32 v42, 2, v1")
    a("v_lshl_add_u32 v41, v42, 11, v41")
    a("v_bfe_u32 v42, v40, 4, 1")
    a("v_lshl_add_u32 v41, v42, 10, v41")
    a("v_and_b32 v42, 1, v1")
    a("v_lshl_add_u32 v41, v42, 9, v41")
    a("v_and_b32 v42, 15, v40")
    a("v_lshl_add_u32 v41, v42, 4, v41")
    a("v_bfe_u32 v42, v1, 1, 1")
    a("v_lshl_add_u32 v41, v42, 3, v41")
    a("buffer_store_dwordx2 v[8:9], v41, s[16:19], 0 offen")
    a("buffer_store_dwordx2 v[10:11], v41, s[16:19], 0 offen offset:256")
    a.label("L_k2_done")
    a("s_endpgm")
    return name, 56


def gen_fin(a, nsplit=4):
    name = "k5_fin_kernel"
    kernel_header(a, name)
    a("s_cmp_ge_u32 s2, 256")
    a("s_cbranch_scc1 L_k5_done")
    a("s_load_dwordx2 s[4:5], s[0:1], %d" % KA["x"])
    a("s_load_dwordx2 s[6:7], s[0:1], %d" % KA["wr"])
    a("s_load_dwordx2 s[40:41], s[0:1], %d" % KA["out"])
    a("s_load_dwordx2 s[20:21], s[0:1], %d" % KA["ws"])
    a("v_and_b32 v1, 63, v0")
    a("v_lshrrev_b32 v2, 6, v0")
    a("s_waitcnt lgkmcnt(0)")
    srd_from(a, 8, 4, 0, 2048 * 1024)
    srd_from(a, 12, 20, WS_MOD, 3072 * 4)
    srd_from(a, 16, 20, WS_PART, nsplit * 2048 * 2048)
    srd_from(a, 24, 6, 0, 1024)
    srd_from(a, 28, 40, 0, 2048 * 1024)
    srd_from(a, 32, 20, WS_X1, 2048 * 1024)
    srd_from(a, 36, 20, WS_H2, 2048 * 1024)
    srd_from(a, 44, 20, WS_R, 2048 * 4)
    a("s_lshl_b32 s22, s2, 13")
    a("v_lshlrev_b32 v3, 10, v2")
    a("v_lshlrev_b32 v4, 4, v1")
    a("v_add3_u32 v3, v3, v4, s22")
    a("v_lshlrev_b32 v6, 1, v3")
    a("buffer_load_dwordx4 v[8:11], v3, s[8:11], 0 offen")
    for p in range(nsplit):
        a("s_mov_b32 s23, 0x%x" % (p * 2048 * 2048))
        a("buffer_load_dwordx4 v[%d:%d], v6, s[16:19], s23 offen" % (64 + 8 * p, 67 + 8 * p))
        a("buffer_load_dwordx4 v[%d:%d], v6, s[16:19], s23 offen offset:16" % (68 + 8 * p, 71 + 8 * p))
    a("v_lshlrev_b32 v5, 5, v1")
    for j, base in ((2, 24), (3, 32), (4, 40), (5, 48)):
        a("s_mov_b32 s23, %d" % (j * 2048))
        a("buffer_load_dwordx4 v[%d:%d], v5, s[12:15], s23 offen" % (base, base + 3))
        a("buffer_load_dwordx4 v[%d:%d], v5, s[12:15], s23 offen offset:16" % (base + 4, base + 7))
    a("buffer_load_dwordx4 v[12:15], v4, s[24:27], 0 offen")
    a("s_waitcnt vmcnt(0)")
    for i in range(4):
        unpack_bf16(a, 8 + i, 16 + 2 * i, 17 + 2 * i)
    for p in range(1, nsplit):
        for i in range(8):
            a("v_add_f32 v%d, v%d, v%d" % (64 + i, 64 + i, 64 + 8 * p + i))
    T = 100
    for i in range(0, 8, 2):
        round_bf16_pair(a, 64 + i, 65 + i, T)
        a("v_mul_f32 v%d, v%d, v%d" % (64 + i, 64 + i, 24 + i))
        a("v_mul_f32 v%d, v%d, v%d" % (65 + i, 65 + i, 25 + i))
        round_bf16_pair(a, 64 + i, 65 + i, T)
        a("v_add_f32 v%d, v%d, v%d" % (16 + i, 16 + i, 64 + i))
        a("v_add_f32 v%d, v%d, v%d" % (17 + i, 17 + i, 65 + i))
        round_bf16_pair(a, 16 + i, 17 + i, T)
    for i in range(8):
        a("v_mov_b32 v%d, v%d" % (72 + i, 16 + i))
    pack8(a, 16, 8)
    a("buffer_store_dwordx4 v[8:11], v3, s[32:35], 0 offen")
    layernorm8(a, 16, T)
    modulate8(a, 16, 40, 32, T)
    pack8(a, 16, 84)
    a("buffer_store_dwordx4 v[84:87], v3, s[36:39], 0 offen")
    for i in range(4):
        unpack_bf16(a, 12 + i, 88 + 2 * i, 89 + 2 * i)
    a("v_mul_f32 v%d, v16, v88" % T)
    for i in range(1, 8):
        a("v_fmac_f32 v%d, v%d, v%d" % (T, 16 + i, 88 + i))
    wave_allreduce(a, T, T + 1)
    round_bf16(a, T)
    a("v_lshrrev_b32 v7, 8, v3")
    a("v_cmp_eq_u32 vcc, 0, v1")
    a("s_and_saveexec_b64 s[48:49], vcc")
    a("buffer_store_dword v%d, v7, s[44:47], 0 offen" % T)
    a("s_mov_b64 exec, s[48:49]")
    for i in range(0, 8, 2):
        a("v_mul_f32 v%d, v%d, v%d" % (16 + i, 16 + i, 48 + i))
        a("v_mul_f32 v%d, v%d, v%d" % (17 + i, 17 + i, 49 + i))
        round_bf16_pair(a, 16 + i, 17 + i, T)
        a("v_add_f32 v%d, v%d, v%d" % (16 + i, 16 + i, 72 + i))
        a("v_add_f32 v%d, v%d, v%d" % (17 + i, 17 + i, 73 + i))
    pack8(a, 16, 92)
    a("buffer_store_dwordx4 v[92:95], v3, s[28:31], 0 offen")
    a.label("L_k5_done")
    a("s_endpgm")
    return name, 112


def topk8(a, srd_r, lds_base, K, T, sidx):
    a("v_lshlrev_b32 v%d, 5, v0" % T)
    a("buffer_load_dwordx4 v[%d:%d], v%d, s[%d:%d], 0 offen" % (K, K + 3, T, srd_r, srd_r + 3))
    a("buffer_load_dwordx4 v[%d:%d], v%d, s[%d:%d], 0 offen offset:16" % (K + 4, K + 7, T, srd_r, srd_r + 3))
    a("v_lshlrev_b32 v%d, 3, v0" % (T + 1))
    a("v_sub_u32 v%d, 2047, v%d" % (T + 1, T + 1))
    a("v_lshrrev_b32 v%d, 6, v0" % (T + 4))
    a("v_lshlrev_b32 v%d, 2, v%d" % (T + 4, T + 4))
    return


def topk8_compute(a, lds_base, K, T, sidx):
    for j in range(8):
        k = K + j
        a("v_ashrrev_i32 v%d, 31, v%d" % (T + 2, k))
        a("v_or_b32 v%d, 0x80000000, v%d" % (T + 2, T + 2))
        a("v_xor_b32 v%d, v%d, v%d" % (k, k, T + 2))
        a("v_and_b32 v%d, 0xffff0000, v%d" % (k, k))
        a("v_subrev_u32 v%d, %d, v%d" % (T + 2, j, T + 1))
        a("v_or_b32 v%d, v%d, v%d" % (k, k, T + 2))
    for rnd in range(8):
        a("v_max_u32 v%d, v%d, v%d" % (T + 2, K, K + 1))
        for j in range(2, 8):
            a("v_max_u32 v%d, v%d, v%d" % (T + 2, T + 2, K + j))
        wave_allreduce(a, T + 2, T + 3, op="v_max_u32")
        a("ds_write_b32 v%d, v%d offset:%d" % (T + 4, T + 2, lds_base + rnd * 16))
        a("s_waitcnt lgkmcnt(0)")
        a("s_barrier")
        a("v_mov_b32 v%d, 0" % (T + 5))
        a("ds_read_b128 v[%d:%d], v%d offset:%d" % (T + 8, T + 11, T + 5, lds_base + rnd * 16))
        a("s_waitcnt lgkmcnt(0)")
        a("v_max_u32 v%d, v%d, v%d" % (T + 2, T + 8, T + 9))
        a("v_max_u32 v%d, v%d, v%d" % (T + 3, T + 10, T + 11))
        a("v_max_u32 v%d, v%d, v%d" % (T + 2, T + 2, T + 3))
        a("s_nop 0")
        a("v_readfirstlane_b32 s%d, v%d" % (sidx + rnd, T + 2))
        if rnd < 7:
            for j in range(8):
                a("v_cmp_eq_u32 vcc, v%d, v%d" % (K + j, T + 2))
                a("s_nop 1")
                a("v_cndmask_b32 v%d, v%d, 0, vcc" % (K + j, K + j))
    for rnd in range(8):
        a("s_and_b32 s%d, s%d, 0xffff" % (sidx + rnd, sidx + rnd))
        a("s_sub_u32 s%d, 2047, s%d" % (sidx + rnd, sidx + rnd))


def gen_gateup(a):
    name = "k6_gu_kernel"
    kernel_header(a, name)
    a("s_cmp_ge_u32 s2, 56")
    a("s_cbranch_scc1 L_k6_done")
    a("s_load_dwordx4 s[4:7], s[0:1], %d" % KA["wg"])
    a("s_load_dwordx2 s[20:21], s[0:1], %d" % KA["ws"])
    a("v_and_b32 v1, 15, v0")
    a("v_lshrrev_b32 v2, 4, v0")
    a("s_waitcnt lgkmcnt(0)")
    srd_from(a, 8, 4, 0, 512 * 3584)
    srd_from(a, 12, 6, 0, 512 * 3584)
    srd_from(a, 16, 20, WS_R, 2048 * 4)
    srd_from(a, 24, 20, WS_H2, 2048 * 1024)
    srd_from(a, 28, 20, WS_GU, 8 * 1792 * 4)
    srd_from(a, 32, 20, WS_IDX, 32)
    K, T = 8, 16
    topk8(a, 16, 0, K, T, 40)
    a("s_mov_b32 s22, %d" % (32 * 3584))
    a("v_mul_lo_u32 v3, v2, s22")
    a("v_lshlrev_b32 v4, 2, v1")
    a("s_lshl_b32 s23, s2, 6")
    a("v_add3_u32 v3, v3, v4, s23")
    for i in range(32):
        a("s_mov_b32 s22, %d" % (i * 3584))
        a("buffer_load_dword v%d, v3, s[8:11], s22 offen" % (64 + i))
    for i in range(24):
        a("s_mov_b32 s22, %d" % (i * 3584))
        a("buffer_load_dword v%d, v3, s[12:15], s22 offen" % (96 + i))
    a("s_waitcnt vmcnt(56)")
    topk8_compute(a, 0, K, T, 40)
    for i in range(24, 32):
        a("s_mov_b32 s22, %d" % (i * 3584))
        a("buffer_load_dword v%d, v3, s[12:15], s22 offen" % (96 + i))
    a("s_cmp_lg_u32 s2, 0")
    a("s_cbranch_scc1 L_k6_noidx")
    for j in range(8):
        a("v_mov_b32 v%d, s%d" % (16 + j, 40 + j))
    a("v_mov_b32 v24, 0")
    a("v_cmp_eq_u32 vcc, 0, v0")
    a("s_and_saveexec_b64 s[48:49], vcc")
    a("buffer_store_dwordx4 v[16:19], v24, s[32:35], 0 offen")
    a("buffer_store_dwordx4 v[20:23], v24, s[32:35], 0 offen offset:16")
    a("s_mov_b64 exec, s[48:49]")
    a.label("L_k6_noidx")
    XB = 1024
    a("v_lshlrev_b32 v5, 2, v0")
    for j in range(8):
        a("s_lshl_b32 s22, s%d, 10" % (40 + j))
        a("buffer_load_dword v%d, v5, s[24:27], s22 offen" % (28 + j))
    a("v_lshlrev_b32 v6, 6, v0")
    a("s_waitcnt vmcnt(0)")
    for j in range(8):
        unpack_bf16(a, 28 + j, 40 + j, 48 + j)
    a("ds_write_b128 v6, v[40:43] offset:%d" % XB)
    a("ds_write_b128 v6, v[44:47] offset:%d" % (XB + 16))
    a("ds_write_b128 v6, v[48:51] offset:%d" % (XB + 32))
    a("ds_write_b128 v6, v[52:55] offset:%d" % (XB + 48))
    a("s_waitcnt lgkmcnt(0)")
    a("s_barrier")
    for i in range(32):
        a("v_mov_b32 v%d, 0" % (128 + i))
    a("v_lshlrev_b32 v6, 10, v2")
    for i in range(32):
        xb = 28 + 8 * (i & 1)
        a("ds_read_b128 v[%d:%d], v6 offset:%d" % (xb, xb + 3, XB + i * 32))
        a("ds_read_b128 v[%d:%d], v6 offset:%d" % (xb + 4, xb + 7, XB + i * 32 + 16))
        unpack_bf16(a, 64 + i, 44, 45)
        unpack_bf16(a, 96 + i, 46, 47)
        a("s_waitcnt lgkmcnt(0)")
        for j in range(8):
            a("v_fmac_f32 v%d, v%d, v44" % (128 + 2 * j, xb + j))
            a("v_fmac_f32 v%d, v%d, v45" % (129 + 2 * j, xb + j))
            a("v_fmac_f32 v%d, v%d, v46" % (144 + 2 * j, xb + j))
            a("v_fmac_f32 v%d, v%d, v47" % (145 + 2 * j, xb + j))
    for i in range(32):
        a("ds_swizzle_b32 v%d, v%d offset:0x401F" % (64 + i, 128 + i))
    a("s_waitcnt lgkmcnt(0)")
    for i in range(32):
        a("v_add_f32 v%d, v%d, v%d" % (128 + i, 128 + i, 64 + i))
    for i in range(32):
        a("v_mov_b32 v%d, v%d" % (64 + i, 128 + i))
    a("s_nop 1")
    for i in range(32):
        a("v_permlane32_swap_b32 v%d, v%d" % (128 + i, 64 + i))
    a("s_nop 1")
    for i in range(32):
        a("v_add_f32 v%d, v%d, v%d" % (128 + i, 128 + i, 64 + i))
    RB = 20480
    a("v_lshrrev_b32 v7, 6, v0")
    a("v_lshlrev_b32 v7, 11, v7")
    a("v_lshlrev_b32 v8, 7, v1")
    a("v_add_u32 v7, v7, v8")
    a("v_and_b32 v9, 63, v0")
    a("v_cmp_gt_u32 vcc, 16, v9")
    a("s_and_saveexec_b64 s[48:49], vcc")
    for q in range(8):
        a("ds_write_b128 v7, v[%d:%d] offset:%d" % (128 + 4 * q, 131 + 4 * q, RB + 16 * q))
    a("s_mov_b64 exec, s[48:49]")
    a("s_waitcnt lgkmcnt(0)")
    a("s_barrier")
    a("v_lshrrev_b32 v10, 5, v0")
    a("v_and_b32 v11, 31, v0")
    a("v_lshrrev_b32 v12, 1, v11")
    a("v_and_b32 v13, 1, v11")
    a("v_lshlrev_b32 v12, 7, v12")
    a("v_lshl_add_u32 v13, v10, 1, v13")
    a("v_lshl_add_u32 v12, v13, 2, v12")
    for w in range(4):
        a("ds_read_b32 v%d, v12 offset:%d" % (16 + w, RB + w * 2048))
        a("ds_read_b32 v%d, v12 offset:%d" % (20 + w, RB + w * 2048 + 64))
    a("s_waitcnt lgkmcnt(0)")
    a("v_add_f32 v16, v16, v17")
    a("v_add_f32 v18, v18, v19")
    a("v_add_f32 v16, v16, v18")
    a("v_add_f32 v20, v20, v21")
    a("v_add_f32 v22, v22, v23")
    a("v_add_f32 v20, v20, v22")
    round_bf16_pair(a, 16, 20, 24)
    silu_reg(a, 16, 24)
    round_bf16(a, 16)
    a("v_mul_f32 v16, v16, v20")
    round_bf16(a, 16)
    a("s_mov_b32 s22, %d" % (1792 * 4))
    a("v_mul_lo_u32 v10, v10, s22")
    a("v_lshl_add_u32 v10, v11, 2, v10")
    a("s_lshl_b32 s23, s2, 7")
    a("v_add_u32 v10, s23, v10")
    a("buffer_store_dword v16, v10, s[28:31], 0 offen")
    a.label("L_k6_done")
    a("s_endpgm")
    return name, 160


def gen_down(a):
    name = "k7_down_kernel"
    kernel_header(a, name)
    a("s_cmp_ge_u32 s2, 32")
    a("s_cbranch_scc1 L_k7_done")
    a("s_load_dwordx2 s[4:5], s[0:1], %d" % KA["wd"])
    a("s_load_dwordx2 s[6:7], s[0:1], %d" % KA["out"])
    a("s_load_dwordx2 s[20:21], s[0:1], %d" % KA["ws"])
    a("v_and_b32 v1, 7, v0")
    a("v_lshrrev_b32 v2, 3, v0")
    a("s_waitcnt lgkmcnt(0)")
    a("s_add_u32 s50, s20, 0x%x" % WS_IDX)
    a("s_addc_u32 s51, s21, 0")
    a("s_load_dwordx8 s[40:47], s[50:51], 0")
    srd_from(a, 8, 4, 0, 1792 * 1024)
    srd_from(a, 12, 6, 0, 2048 * 1024)
    srd_from(a, 16, 20, WS_GU, 8 * 1792 * 4)
    srd_from(a, 24, 20, WS_H2, 2048 * 1024)
    srd_from(a, 28, 20, WS_X1, 2048 * 1024)
    srd_from(a, 32, 20, WS_R, 2048 * 4)
    srd_from(a, 36, 20, WS_MOD, 3072 * 4)
    a("s_mov_b32 s22, %d" % (56 * 1024))
    a("v_mul_lo_u32 v3, v2, s22")
    a("v_lshlrev_b32 v4, 2, v1")
    a("s_lshl_b32 s23, s2, 5")
    a("v_add3_u32 v3, v3, v4, s23")
    a("v_lshlrev_b32 v5, 2, v0")
    for i in range(7):
        for j in range(8):
            a("s_mov_b32 s22, %d" % (j * 1792 * 4 + i * 1024))
            a("buffer_load_dword v%d, v5, s[16:19], s22 offen" % (128 + 8 * i + j))
    a("v_lshlrev_b32 v6, 5, v0")
    a("s_waitcnt vmcnt(0)")
    for i in range(56):
        a("s_mov_b32 s22, %d" % (i * 1024))
        a("buffer_load_dword v%d, v3, s[8:11], s22 offen" % (64 + i))
    for i in range(7):
        a("ds_write_b128 v6, v[%d:%d] offset:%d" % (128 + 8 * i, 131 + 8 * i, i * 8192))
        a("ds_write_b128 v6, v[%d:%d] offset:%d" % (132 + 8 * i, 135 + 8 * i, i * 8192 + 16))
    a("s_waitcnt lgkmcnt(0)")
    a("s_barrier")
    for i in range(16):
        a("v_mov_b32 v%d, 0" % (32 + i))
    a("s_mov_b32 s22, %d" % (56 * 32))
    a("v_mul_lo_u32 v6, v2, s22")
    for i in range(56):
        xb = 16 + 8 * (i & 1)
        a("ds_read_b128 v[%d:%d], v6 offset:%d" % (xb, xb + 3, i * 32))
        a("ds_read_b128 v[%d:%d], v6 offset:%d" % (xb + 4, xb + 7, i * 32 + 16))
        a("s_waitcnt vmcnt(%d)" % (55 - i))
        unpack_bf16(a, 64 + i, 8, 9)
        a("s_waitcnt lgkmcnt(0)")
        for j in range(8):
            a("v_fmac_f32 v%d, v%d, v8" % (32 + 2 * j, xb + j))
            a("v_fmac_f32 v%d, v%d, v9" % (33 + 2 * j, xb + j))
    for off in ("0x201F", "0x401F"):
        for i in range(16):
            a("ds_swizzle_b32 v%d, v%d offset:%s" % (48 + i, 32 + i, off))
        a("s_waitcnt lgkmcnt(0)")
        for i in range(16):
            a("v_add_f32 v%d, v%d, v%d" % (32 + i, 32 + i, 48 + i))
    for i in range(16):
        a("v_mov_b32 v%d, v%d" % (48 + i, 32 + i))
    a("s_nop 1")
    for i in range(16):
        a("v_permlane32_swap_b32 v%d, v%d" % (32 + i, 48 + i))
    a("s_nop 1")
    for i in range(16):
        a("v_add_f32 v%d, v%d, v%d" % (32 + i, 32 + i, 48 + i))
    a("s_barrier")
    a("v_lshrrev_b32 v7, 6, v0")
    a("v_lshlrev_b32 v7, 9, v7")
    a("v_lshlrev_b32 v8, 6, v1")
    a("v_add_u32 v7, v7, v8")
    a("v_and_b32 v9, 63, v0")
    a("v_cmp_gt_u32 vcc, 8, v9")
    a("s_and_saveexec_b64 s[48:49], vcc")
    for q in range(4):
        a("ds_write_b128 v7, v[%d:%d] offset:%d" % (32 + 4 * q, 35 + 4 * q, 16 * q))
    a("s_mov_b64 exec, s[48:49]")
    a("s_waitcnt lgkmcnt(0)")
    a("s_barrier")
    a("v_cmp_gt_u32 vcc, 128, v0")
    a("s_and_saveexec_b64 s[48:49], vcc")
    a("s_cbranch_execz L_k7_done")
    a("v_lshrrev_b32 v10, 4, v0")
    a("v_and_b32 v11, 15, v0")
    a("v_lshrrev_b32 v12, 1, v11")
    a("v_and_b32 v13, 1, v11")
    a("v_lshlrev_b32 v12, 6, v12")
    a("v_lshl_add_u32 v13, v10, 1, v13")
    a("v_lshl_add_u32 v12, v13, 2, v12")
    for w in range(4):
        a("ds_read_b32 v%d, v12 offset:%d" % (16 + w, w * 512))
    a("v_mov_b32 v14, s40")
    for j in range(1, 8):
        a("v_mov_b32 v15, s%d" % (40 + j))
        a("v_cmp_eq_u32 vcc, %d, v10" % j)
        a("s_nop 1")
        a("v_cndmask_b32 v14, v14, v15, vcc")
    a("s_lshl_b32 s23, s2, 4")
    a("v_add_u32 v11, s23, v11")
    a("v_lshlrev_b32 v24, 10, v14")
    a("v_lshl_add_u32 v24, v11, 1, v24")
    a("v_lshlrev_b32 v25, 2, v14")
    a("v_lshlrev_b32 v26, 2, v11")
    a("buffer_load_ushort v27, v24, s[24:27], 0 offen")
    a("buffer_load_ushort v28, v24, s[28:31], 0 offen")
    a("buffer_load_dword v29, v25, s[32:35], 0 offen")
    a("s_mov_b32 s22, %d" % (5 * 2048))
    a("buffer_load_dword v30, v26, s[36:39], s22 offen")
    a("s_waitcnt lgkmcnt(0)")
    a("v_add_f32 v16, v16, v17")
    a("v_add_f32 v18, v18, v19")
    a("v_add_f32 v16, v16, v18")
    round_bf16(a, 16)
    a("s_waitcnt vmcnt(0)")
    a("v_lshlrev_b32 v27, 16, v27")
    a("v_lshlrev_b32 v28, 16, v28")
    a("v_mul_f32 v31, %s, v29" % NLOG2E)
    a("v_exp_f32 v31, v31")
    a("s_nop 0")
    a("v_add_f32 v31, 1.0, v31")
    a("v_rcp_f32 v31, v31")
    a("s_nop 0")
    round_bf16(a, 31)
    a("v_mul_f32 v16, v16, v31")
    round_bf16(a, 16)
    a("v_add_f32 v16, v16, v27")
    round_bf16(a, 16)
    a("v_mul_f32 v16, v16, v30")
    round_bf16(a, 16)
    a("v_add_f32 v16, v16, v28")
    a("v_cvt_pk_bf16_f32 v16, v16, v16")
    a("buffer_store_short v16, v24, s[12:15], 0 offen")
    a.label("L_k7_done")
    a("s_endpgm")
    return name, 192


WS_P6 = WS_PART


def gen_gateup2(a):
    name = "k6_gu_kernel"
    kernel_header(a, name)
    GB, UB, DB, XB = 8192, 40960, 73728, 0
    TK = XB + 4096
    GUB = XB + 6144
    a("s_cmp_ge_u32 s2, 56")
    a("s_cbranch_scc1 L_k6_done")
    a("s_load_dwordx4 s[4:7], s[0:1], %d" % KA["wg"])
    a("s_load_dwordx2 s[50:51], s[0:1], %d" % KA["wd"])
    a("s_load_dwordx2 s[20:21], s[0:1], %d" % KA["ws"])
    a("v_lshrrev_b32 v4, 6, v0")
    a("v_and_b32 v5, 63, v0")
    a("v_readfirstlane_b32 s52, v4")
    a("v_and_b32 v6, 15, v5")
    a("v_lshrrev_b32 v7, 4, v5")
    a("s_waitcnt lgkmcnt(0)")
    srd_from(a, 8, 4, 0, 512 * 3584)
    srd_from(a, 12, 6, 0, 512 * 3584)
    srd_from(a, 16, 20, WS_R, 2048 * 4)
    srd_from(a, 24, 20, WS_H2, 2048 * 1024)
    srd_from(a, 28, 20, WS_P6, 56 * 8 * 512 * 4)
    srd_from(a, 32, 20, WS_IDX, 32)
    srd_from(a, 36, 50, 0, 1792 * 1024)
    K, T = 8, 16
    topk8(a, 16, 0, K, T, 40)
    a("v_lshrrev_b32 v28, 2, v5")
    a("s_lshl_b32 s22, s52, 7")
    a("v_add_u32 v28, s22, v28")
    a("s_mov_b32 s22, 3584")
    a("v_mul_lo_u32 v28, v28, s22")
    a("v_and_b32 v29, 3, v5")
    a("v_lshl_add_u32 v28, v29, 4, v28")
    a("s_lshl_b32 s23, s2, 6")
    a("v_add_u32 v28, s23, v28")
    a("s_lshl_b32 s53, s52, 13")
    for mat, base in ((8, GB), (12, UB)):
        for i in range(8):
            a("s_add_u32 s54, s53, %d" % (base + i * 1024))
            a("s_mov_b32 m0, s54")
            a("s_mov_b32 s55, %d" % (i * 16 * 3584))
            a("buffer_load_dwordx4 v28, s[%d:%d], s55 offen lds" % (mat, mat + 3))
    a("v_lshlrev_b32 v29, 4, v5")
    a("s_lshl_b32 s23, s2, 15")
    a("s_lshl_b32 s54, s52, 13")
    a("s_add_u32 s23, s23, s54")
    a("s_mul_i32 s56, s52, %d" % (8 * 1056))
    for i in range(8):
        a("s_add_u32 s54, s56, %d" % (DB + i * 1056))
        a("s_mov_b32 m0, s54")
        a("s_add_u32 s55, s23, %d" % (i * 1024))
        a("buffer_load_dwordx4 v29, s[36:39], s55 offen lds")
    a("s_waitcnt vmcnt(24)")
    topk8_compute(a, TK, K, T, 40)
    a("s_cmp_lg_u32 s2, 0")
    a("s_cbranch_scc1 L_k6_noidx")
    for j in range(8):
        a("v_mov_b32 v%d, s%d" % (16 + j, 40 + j))
    a("v_mov_b32 v24, 0")
    a("v_cmp_eq_u32 vcc, 0, v0")
    a("s_and_saveexec_b64 s[48:49], vcc")
    a("buffer_store_dwordx4 v[16:19], v24, s[32:35], 0 offen")
    a("buffer_store_dwordx4 v[20:23], v24, s[32:35], 0 offen offset:16")
    a("s_mov_b64 exec, s[48:49]")
    a.label("L_k6_noidx")
    a("v_and_b32 v16, 7, v6")
    a("v_mov_b32 v17, s40")
    for j in range(1, 8):
        a("v_mov_b32 v18, s%d" % (40 + j))
        a("v_cmp_eq_u32 vcc, %d, v16" % j)
        a("s_nop 1")
        a("v_cndmask_b32 v17, v17, v18, vcc")
    a("v_lshlrev_b32 v17, 10, v17")
    a("v_lshl_add_u32 v17, v7, 4, v17")
    XF = 64
    for st in range(16):
        a("buffer_load_dwordx4 v[%d:%d], v17, s[24:27], 0 offen offset:%d" % (XF + 4 * st, XF + 4 * st + 3, 64 * st))
    a("v_lshrrev_b32 v18, 2, v6")
    a("v_lshl_add_u32 v18, v7, 3, v18")
    a("v_lshlrev_b32 v19, 6, v18")
    a("v_and_b32 v20, 3, v6")
    a("v_lshl_add_u32 v19, v20, 3, v19")
    a("s_and_b32 s54, s52, 1")
    a("s_lshl_b32 s54, s54, 5")
    a("s_lshr_b32 s55, s52, 1")
    a("s_lshl_b32 s55, s55, 15")
    a("s_add_u32 s54, s54, s55")
    a("v_add_u32 v19, s54, v19")
    a("s_waitcnt vmcnt(0)")
    a("s_barrier")
    AF = 32
    for half in range(2):
        for st in range(8 * half, 8 * half + 8):
            f = AF + 4 * (st & 7)
            a("ds_read_b64_tr_b16 v[%d:%d], v19 offset:%d" % (f, f + 1, GB + st * 2048))
            a("ds_read_b64_tr_b16 v[%d:%d], v19 offset:%d" % (f + 2, f + 3, GB + st * 2048 + 256))
            if (st & 3) == 3:
                a("s_waitcnt lgkmcnt(0)")
                for s2 in range(st - 3, st + 1):
                    f2 = AF + 4 * (s2 & 7)
                    c = "0" if s2 == 0 else "v[28:31]"
                    a("v_mfma_f32_16x16x32_bf16 v[28:31], v[%d:%d], v[%d:%d], %s" % (
                        f2, f2 + 3, XF + 4 * s2, XF + 4 * s2 + 3, c))
    a("s_nop 15")
    a("v_lshlrev_b32 v20, 7, v6")
    a("v_lshl_add_u32 v20, v7, 4, v20")
    a("s_and_b32 s54, s52, 1")
    a("s_lshl_b32 s54, s54, 6")
    a("s_lshr_b32 s55, s52, 1")
    a("s_lshl_b32 s55, s55, 11")
    a("s_add_u32 s54, s54, s55")
    a("v_add_u32 v20, s54, v20")
    a("ds_write_b128 v20, v[28:31] offset:%d" % XB)
    a("s_waitcnt lgkmcnt(0)")
    a("s_barrier")
    a("v_lshlrev_b32 v20, 2, v0")
    a("ds_read_b32 v21, v20 offset:%d" % XB)
    a("ds_read_b32 v22, v20 offset:%d" % (XB + 2048))
    a("s_waitcnt lgkmcnt(0)")
    round_bf16_pair(a, 21, 22, 24)
    silu_reg(a, 21, 24)
    round_bf16(a, 21)
    a("v_mul_f32 v21, v21, v22")
    a("v_cvt_pk_bf16_f32 v21, v21, v21")
    a("v_lshlrev_b32 v20, 1, v0")
    a("ds_write_b16 v20, v21 offset:%d" % GUB)
    a("s_waitcnt lgkmcnt(0)")
    a("s_barrier")
    a("v_lshlrev_b32 v20, 6, v16")
    a("v_lshl_add_u32 v20, v7, 4, v20")
    a("ds_read_b128 v[24:27], v20 offset:%d" % GUB)
    a("s_mov_b32 s22, 1056")
    a("v_mul_lo_u32 v21, v18, s22")
    a("v_and_b32 v22, 3, v6")
    a("v_lshl_add_u32 v21, v22, 3, v21")
    a("s_lshl_b32 s54, s52, 8")
    a("s_add_u32 s54, s54, %d" % DB)
    a("v_add_u32 v21, s54, v21")
    for tl in range(8):
        f = AF + 4 * tl
        a("ds_read_b64_tr_b16 v[%d:%d], v21 offset:%d" % (f, f + 1, tl * 32))
        a("ds_read_b64_tr_b16 v[%d:%d], v21 offset:%d" % (f + 2, f + 3, tl * 32 + 4 * 1056))
        if tl == 3:
            a("s_waitcnt lgkmcnt(0)")
    a("s_waitcnt lgkmcnt(0)")
    for tl in range(8):
        f = AF + 4 * tl
        d = XF + 4 * tl
        a("v_mfma_f32_16x16x32_bf16 v[%d:%d], v[%d:%d], v[24:27], 0" % (d, d + 3, f, f + 3))
    a("v_lshlrev_b32 v20, 11, v6")
    a("v_lshl_add_u32 v20, v7, 4, v20")
    a("s_lshl_b32 s54, s2, 14")
    a("s_lshl_b32 s55, s52, 9")
    a("s_add_u32 s54, s54, s55")
    a("v_add_u32 v20, s54, v20")
    a("v_cmp_gt_u32 vcc, 8, v6")
    a("s_nop 7")
    a("s_and_saveexec_b64 s[48:49], vcc")
    for tl in range(8):
        d = XF + 4 * tl
        a("buffer_store_dwordx4 v[%d:%d], v20, s[28:31], 0 offen offset:%d" % (d, d + 3, tl * 64))
    a.label("L_k6_done")
    a("s_endpgm")
    return name, 128


def gen_down2(a):
    name = "k7_down_kernel"
    kernel_header(a, name)
    a("s_cmp_ge_u32 s2, 16")
    a("s_cbranch_scc1 L_k7_done")
    a("s_load_dwordx2 s[6:7], s[0:1], %d" % KA["out"])
    a("s_load_dwordx2 s[20:21], s[0:1], %d" % KA["ws"])
    a("s_waitcnt lgkmcnt(0)")
    a("s_lshr_b32 s22, s2, 1")
    a("s_lshl_b32 s23, s22, 2")
    a("s_add_u32 s50, s20, 0x%x" % WS_IDX)
    a("s_addc_u32 s51, s21, 0")
    a("s_load_dword s40, s[50:51], s23")
    srd_from(a, 12, 6, 0, 2048 * 1024)
    srd_from(a, 16, 20, WS_P6, 56 * 8 * 512 * 4)
    srd_from(a, 24, 20, WS_H2, 2048 * 1024)
    srd_from(a, 28, 20, WS_X1, 2048 * 1024)
    srd_from(a, 32, 20, WS_R, 2048 * 4)
    srd_from(a, 36, 20, WS_MOD, 3072 * 4)
    a("s_lshl_b32 s23, s2, 8")
    a("v_add_u32 v1, s23, v0")
    a("v_lshlrev_b32 v2, 2, v1")
    for b in range(56):
        a("s_mov_b32 s23, %d" % (b * 16384))
        a("buffer_load_dword v%d, v2, s[16:19], s23 offen" % (8 + b))
    a("v_and_b32 v3, 511, v1")
    a("s_waitcnt lgkmcnt(0)")
    a("s_lshl_b32 s41, s40, 10")
    a("v_lshl_add_u32 v4, v3, 1, s41")
    a("s_lshl_b32 s42, s40, 2")
    a("v_mov_b32 v5, s42")
    a("v_lshlrev_b32 v6, 2, v3")
    a("buffer_load_ushort v67, v4, s[24:27], 0 offen")
    a("buffer_load_ushort v68, v4, s[28:31], 0 offen")
    a("buffer_load_dword v69, v5, s[32:35], 0 offen")
    a("s_mov_b32 s23, %d" % (5 * 2048))
    a("buffer_load_dword v70, v6, s[36:39], s23 offen")
    a("s_waitcnt vmcnt(4)")
    n = 56
    regs = list(range(8, 64))
    while len(regs) > 1:
        nxt = []
        for i in range(0, len(regs) - 1, 2):
            a("v_add_f32 v%d, v%d, v%d" % (regs[i], regs[i], regs[i + 1]))
            nxt.append(regs[i])
        if len(regs) & 1:
            nxt.append(regs[-1])
        regs = nxt
    y = regs[0]
    round_bf16(a, y)
    a("s_waitcnt vmcnt(0)")
    a("v_lshlrev_b32 v67, 16, v67")
    a("v_lshlrev_b32 v68, 16, v68")
    a("v_mul_f32 v71, %s, v69" % NLOG2E)
    a("v_exp_f32 v71, v71")
    a("s_nop 0")
    a("v_add_f32 v71, 1.0, v71")
    a("v_rcp_f32 v71, v71")
    a("s_nop 0")
    round_bf16(a, 71)
    a("v_mul_f32 v%d, v%d, v71" % (y, y))
    round_bf16(a, y)
    a("v_add_f32 v%d, v%d, v67" % (y, y))
    round_bf16(a, y)
    a("v_mul_f32 v%d, v%d, v70" % (y, y))
    round_bf16(a, y)
    a("v_add_f32 v%d, v%d, v68" % (y, y))
    a("v_cvt_pk_bf16_f32 v%d, v%d, v%d" % (y, y, y))
    a("buffer_store_short v%d, v4, s[12:15], 0 offen" % y)
    a.label("L_k7_done")
    a("s_endpgm")
    return name, 72
```

```python
from asmlib import *
import os
DIAG = os.environ.get("DIAG", "0") == "1"
WS_DIAG = 0x3000000
PRIO = int(os.environ.get("PRIO", "3"))
PFD = int(os.environ.get("PFD", "3"))
_stamp = [0]

OACC = 192
QF = 160
SB = [96, 128]
PB = 80
POOL = 48
NPOOL = 8
LOOK = 6
LSUM = 32
ONES = 12
KAD = 16
VAD = 20
DK0, DK1, DV0, DV1 = 28, 29, 30, 31
MP, M0, M1 = 1, 2, 3
T0 = 4

S_L2E = 32
S_WAVE = 33
S_C = 34
S_KOFF, S_VOFF = 35, 36
S_M0K = [37, 38, 39]
S_M0V = [40, 41, 42]
S_CNT = 43

NSLOT = 3
KSLOT = [0, 16384, 32768]
VBASE = 49152
VSLOT = [0, 16384, 32768]
WQ_BASE = 98304


def stamp(a):
    if not DIAG:
        return
    i = _stamp[0]
    _stamp[0] += 1
    a("s_memtime s[%d:%d]" % (60 + 2 * i, 61 + 2 * i))


def rstamp(a, reg):
    if DIAG:
        a("s_memrealtime s[%d:%d]" % (reg, reg + 1))


def stamp_flush(a):
    if not DIAG:
        return
    rstamp(a, 92)
    a("s_waitcnt lgkmcnt(0) vmcnt(0)")
    a("s_add_u32 s56, s30, 0x%x" % WS_DIAG)
    a("s_addc_u32 s57, s31, 0")
    a("s_mov_b32 s58, 0x100000")
    a("s_mov_b32 s59, 0x00020000")
    a("s_lshl_b32 s54, s2, 3")
    a("s_add_u32 s54, s54, s%d" % S_WAVE)
    a("s_lshl_b32 s54, s54, 6")
    a("v_mov_b32 v4, s54")
    for i in range(_stamp[0]):
        a("v_mov_b32 v5, s%d" % (60 + 2 * i))
        a("buffer_store_dword v5, v4, s[56:59], 0 offen offset:%d" % (4 * i))
    for i, r in enumerate((90, 92)):
        a("v_mov_b32 v5, s%d" % r)
        a("buffer_store_dword v5, v4, s[56:59], 0 offen offset:%d" % (48 + 4 * i))


def mfma(d, fa, fb, c):
    cs = "0" if c is None else "v[%d:%d]" % (c, c + 3)
    return "v_mfma_f32_16x16x32_bf16 v[%d:%d], v[%d:%d], v[%d:%d], %s" % (d, d + 3, fa, fa + 3, fb, fb + 3, cs)


class Item:
    def __init__(self, reads, mf, guard=False):
        self.reads = reads
        self.mf = mf
        self.guard = guard
        self.before = []
        self.after = [[] for _ in mf]


class Stream:
    def __init__(self, a, pool, npool, look):
        self.a, self.pool, self.npool, self.look = a, pool, npool, look
        self.since_cvt = 99

    def emit(self, s):
        if s.endswith(":"):
            self.a.label(s[:-1])
            return
        self.a(s)
        if s.startswith("v_cvt_pk") and ", 0, " not in s:
            self.since_cvt = 0
        else:
            self.since_cvt += 1

    def run(self, items, preissued, nxt=None):
        rd = [it for it in items if it.reads]
        nrd = len(rd)
        assert nrd % self.npool == 0 or nxt is None
        seq = rd + ([it for it in nxt if it.reads][:self.look] if nxt else [])
        issued = []

        def fr_of(k):
            return self.pool + 4 * (k % self.npool)

        def issue(k):
            for r in seq[k].reads(fr_of(k)):
                self.emit(r)
                issued.append(k)
        if preissued:
            for k in range(min(self.look, nrd)):
                issued += [k] * len(seq[k].reads(fr_of(k)))
        else:
            for k in range(min(self.look, len(seq))):
                issue(k)
        k = 0
        for it in items:
            for s in it.before:
                self.emit(s)
            fr = None
            if it.reads:
                fr = fr_of(k)
                later = sum(1 for j in issued if j > k)
                self.emit("s_waitcnt lgkmcnt(%d)" % later)
            for m, (f, aft) in enumerate(zip(it.mf, it.after)):
                if it.guard and self.since_cvt < 2:
                    self.emit("s_nop %d" % (1 - self.since_cvt))
                self.emit(f(fr))
                if m == len(it.mf) - 1 and it.reads:
                    if k + self.look < len(seq):
                        issue(k + self.look)
                    k += 1
                for s in aft:
                    self.emit(s)


def qk_items(kslot, S):
    items = []
    for kt in range(4):
        for s in range(4):
            off = KSLOT[kslot] + kt * 4096
            def reads(fr, s=s, off=off):
                return ["ds_read_b128 v[%d:%d], v%d offset:%d" % (fr, fr + 3, KAD + s, off)]
            mfs = []
            for qt in range(2):
                d = S + 8 * kt + 4 * qt
                mfs.append(lambda fr, d=d, s=s, qt=qt: mfma(d, fr, QF + 16 * qt + 4 * s, None if s == 0 else d))
            items.append(Item(reads, mfs))
    return items


def pv_items(vslot):
    items = []
    for ks in range(2):
        for dt in range(8):
            off = VSLOT[vslot] + ks * 8192
            def reads(fr, dt=dt, off=off):
                return ["ds_read_b64_tr_b16 v[%d:%d], v%d offset:%d" % (fr, fr + 1, VAD + dt, off),
                        "ds_read_b64_tr_b16 v[%d:%d], v%d offset:%d" % (fr + 2, fr + 3, VAD + dt, off + 4096)]
            mfs = []
            for qt in range(2):
                d = OACC + 8 * dt + 4 * qt
                mfs.append(lambda fr, d=d, ks=ks, qt=qt: mfma(d, fr, PB + 8 * ks + 4 * qt, d))
            items.append(Item(reads, mfs, True))
        mfs = []
        for qt in range(2):
            d = LSUM + 4 * qt
            mfs.append(lambda fr, d=d, ks=ks, qt=qt: mfma(d, ONES, PB + 8 * ks + 4 * qt, d))
        items.append(Item(None, mfs, True))
    return items


def exp_ops(S):
    ops = []
    for kt in range(4):
        for qt in range(2):
            e = S + 8 * kt + 4 * qt
            m = M0 if qt == 0 else M1
            for j in range(4):
                ops.append("v_cvt_pk_bf16_f32 v%d, 0, v%d" % (e + j, e + j))
            for j in range(4):
                ops.append("v_mul_f32 v%d, s%d, v%d" % (e + j, S_C, e + j))
            for j in range(4):
                ops.append("v_cvt_pk_bf16_f32 v%d, 0, v%d" % (e + j, e + j))
            for j in range(4):
                ops.append("v_fma_f32 v%d, v%d, s%d, -v%d" % (e + j, e + j, S_L2E, m))
            for j in range(4):
                ops.append("v_exp_f32 v%d, v%d" % (e + j, e + j))
            p = PB + 8 * (kt >> 1) + 4 * qt + 2 * (kt & 1)
            ops.append("v_cvt_pk_bf16_f32 v%d, v%d, v%d" % (p, e, e + 1))
            ops.append("v_cvt_pk_bf16_f32 v%d, v%d, v%d" % (p + 1, e + 2, e + 3))
    return ops


def max_ops(S):
    ta, tb, t2 = T0, T0 + 1, T0 + 2
    chains = []
    for qt, t in ((0, ta), (1, tb)):
        v = [S + 8 * kt + 4 * qt + r for kt in range(4) for r in range(4)]
        c = ["v_max3_f32 v%d, v%d, v%d, v%d" % (t, v[0], v[1], v[2])]
        for i in range(6):
            c.append("v_max3_f32 v%d, v%d, v%d, v%d" % (t, t, v[3 + 2 * i], v[4 + 2 * i]))
        c.append("v_max_f32 v%d, v%d, v%d" % (t, t, v[15]))
        chains.append(c)
    ops = []
    for x, y in zip(*chains):
        ops += [x, y]
    ops.append("s_nop 1")
    ops.append("v_permlane32_swap_b32 v%d, v%d" % (ta, tb))
    ops.append("v_max_f32 v%d, v%d, v%d" % (ta, ta, tb))
    ops.append("v_mov_b32 v%d, v%d" % (t2, ta))
    ops.append("v_add_f32 v%d, 0x41000000, v%d" % (tb, MP))
    ops.append("s_nop 0")
    ops.append("v_permlane16_swap_b32 v%d, v%d" % (ta, t2))
    ops.append("v_max_f32 v%d, v%d, v%d" % (ta, ta, t2))
    ops.append("v_cvt_pk_bf16_f32 v%d, 0, v%d" % (ta, ta))
    ops.append("v_mul_f32 v%d, s%d, v%d" % (ta, S_C, ta))
    ops.append("v_cvt_pk_bf16_f32 v%d, 0, v%d" % (ta, ta))
    ops.append("v_mul_f32 v%d, s%d, v%d" % (ta, S_L2E, ta))
    return ops


_lbl = [0]


def rescale_check():
    _lbl[0] += 1
    lb = "L_k3_skip%d" % _lbl[0]
    f0, f1 = T0 + 1, T0 + 2
    o = []
    o.append("v_cmp_gt_f32 vcc, v%d, v%d" % (T0, T0 + 1))
    o.append("s_nop 1")
    o.append("s_cbranch_vccz %s" % lb)
    o.append("s_nop 15")
    o.append("v_max_f32 v%d, v%d, v%d" % (T0, T0, MP))
    o.append("v_sub_f32 v%d, v%d, v%d" % (f0, MP, T0))
    o.append("v_exp_f32 v%d, v%d" % (f0, f0))
    o.append("v_mov_b32 v%d, v%d" % (MP, T0))
    o.append("v_mov_b32 v%d, v%d" % (M0, T0))
    o.append("v_mov_b32 v%d, v%d" % (M1, T0))
    o.append("v_mov_b32 v%d, v%d" % (f1, f0))
    o.append("s_nop 1")
    o.append("v_permlane32_swap_b32 v%d, v%d" % (M0, M1))
    o.append("v_permlane32_swap_b32 v%d, v%d" % (f0, f1))
    o.append("s_nop 1")
    o.append("v_mul_f32 v%d, v%d, v%d" % (LSUM, LSUM, f0))
    o.append("v_mul_f32 v%d, v%d, v%d" % (LSUM + 4, LSUM + 4, f1))
    for dt in range(8):
        for qt in range(2):
            for r in range(4):
                x = OACC + 8 * dt + 4 * qt + r
                o.append("v_mul_f32 v%d, v%d, v%d" % (x, x, f0 if qt == 0 else f1))
    o.append("s_nop 1")
    o.append(lb + ":")
    return o


def dma_k(slot):
    return ["s_mov_b32 m0, s%d" % S_M0K[slot],
            "s_nop 0",
            "buffer_load_dwordx4 v%d, s[8:11], s%d offen lds" % (DK0, S_KOFF),
            "buffer_load_dwordx4 v%d, s[8:11], s%d offen offset:1024 lds" % (DK1, S_KOFF),
            "s_add_u32 s%d, s%d, 16384" % (S_KOFF, S_KOFF)]


def dma_v(slot):
    return ["s_mov_b32 m0, s%d" % S_M0V[slot],
            "s_nop 0",
            "buffer_load_dwordx4 v%d, s[12:15], s%d offen lds" % (DV0, S_VOFF),
            "buffer_load_dwordx4 v%d, s[12:15], s%d offen offset:1024 lds" % (DV1, S_VOFF),
            "s_add_u32 s%d, s%d, 16384" % (S_VOFF, S_VOFF)]


def slots_of(items):
    return [(it, m) for it in items for m in range(len(it.mf))]


def spread(slots, lo, hi, ops):
    n = hi - lo
    k = 0
    for g in range(n):
        k2 = (len(ops) * (g + 1) + n - 1) // n
        it, m = slots[lo + g]
        it.after[m] = it.after[m] + ops[k:k2]
        k = k2
    assert k == len(ops)


def iter_items(t, do_qk=True, do_dma_k=True, do_dma_v=True, safe=True):
    p = t & 1
    E = exp_ops(SB[p])
    if do_qk:
        items = qk_items((t + 1) % NSLOT, SB[1 - p]) + pv_items(t % NSLOT)
        sl = slots_of(items)
        assert len(sl) == 68
        items[0].before = ["s_waitcnt vmcnt(0)", "s_barrier"]
        spread(sl, 0, 49, E)
        if safe:
            spread(sl, 52, 68, max_ops(SB[1 - p]))
            it, m = sl[67]
            it.after[m] = it.after[m] + rescale_check()
        if PRIO == 3:
            for pr, sidx in ((3, 0), (2, 17), (1, 34), (0, 51)):
                it, m = sl[sidx]
                it.after[m] = ["s_setprio %d" % pr] + it.after[m]
        if PRIO == 2:
            for pr, sidx in ((1, 0), (0, 34)):
                it, m = sl[sidx]
                it.after[m] = ["s_setprio %d" % pr] + it.after[m]
        if do_dma_k:
            it, m = sl[2]
            it.after[m] = it.after[m] + dma_k(t % NSLOT)
        if do_dma_v:
            it, m = sl[6]
            it.after[m] = it.after[m] + dma_v((t + 2) % NSLOT)
    else:
        items = pv_items(t % NSLOT)
        sl = slots_of(items)
        items[0].before = E[:88]
        spread(sl, 0, 17, E[88:])
    return items


class VmTrack:
    def __init__(self):
        self.ops = []

    def add(self, tag, n=1):
        self.ops += [tag] * n

    def wait_for(self, tags):
        last = max(i for i, t in enumerate(self.ops) if t in tags)
        return len(self.ops) - 1 - last


def lds_tile_write(a, wreg, scale=None):
    for dt in range(8):
        a("v_xor_b32 v%d, %d, v%d" % (T0 + 4, dt << 5, wreg))
        for qt in range(2):
            x = OACC + 8 * dt + 4 * qt
            if scale is not None:
                for r in range(4):
                    a("v_mul_f32 v%d, v%d, v%d" % (x + r, x + r, scale[qt]))
            t = POOL + 4 * dt + 2 * qt
            a("v_cvt_pk_bf16_f32 v%d, v%d, v%d" % (t, x, x + 1))
            a("v_cvt_pk_bf16_f32 v%d, v%d, v%d" % (t + 1, x + 2, x + 3))
            a("ds_write_b64 v%d, v[%d:%d] offset:%d" % (T0 + 4, t, t + 1, qt * 4096))


def gen_attn(a):
    name = "k3_attn_kernel"
    kernel_header(a, name)
    a("s_cmp_ge_u32 s2, 256")
    a("s_cbranch_scc1 L_k3_done")
    stamp(a)
    rstamp(a, 90)
    a("s_load_dwordx4 s[4:7], s[0:1], %d" % KA["k"])
    a("s_load_dwordx2 s[28:29], s[0:1], %d" % KA["wq"])
    a("s_load_dwordx2 s[30:31], s[0:1], %d" % KA["ws"])
    a("s_load_dwordx2 s[80:81], s[0:1], %d" % KA["wo"])
    a("s_load_dwordx4 s[84:87], s[0:1], %d" % KA["wg"])
    a("s_load_dwordx2 s[88:89], s[0:1], %d" % KA["wd"])
    a("s_and_b32 s52, s2, 31")
    a("s_lshr_b32 s53, s2, 5")
    a("v_lshrrev_b32 v4, 6, v0")
    a("v_and_b32 v5, 63, v0")
    a("v_readfirstlane_b32 s%d, v4" % S_WAVE)
    a("v_and_b32 v8, 15, v5")
    a("v_lshrrev_b32 v9, 4, v5")
    a("s_waitcnt lgkmcnt(0)")
    a("s_lshl_b32 s44, s52, 19")
    a("s_add_u32 s8, s4, s44")
    a("s_addc_u32 s9, s5, 0")
    a("s_mov_b32 s10, 524288")
    a("s_mov_b32 s11, 0x00020000")
    a("s_add_u32 s12, s6, s44")
    a("s_addc_u32 s13, s7, 0")
    a("s_mov_b32 s14, 524288")
    a("s_mov_b32 s15, 0x00020000")
    a("s_lshl_b32 s44, s52, 8")
    a("s_add_u32 s16, s28, s44")
    a("s_addc_u32 s17, s29, 0")
    a("s_sub_u32 s18, %d, s44" % (512 * 8192))
    a("s_mov_b32 s19, 0x00020000")
    a("s_lshl_b32 s45, s53, 18")
    a("s_add_u32 s45, s45, 0x%x" % WS_H1)
    a("s_add_u32 s20, s30, s45")
    a("s_addc_u32 s21, s31, 0")
    a("s_mov_b32 s22, 262144")
    a("s_mov_b32 s23, 0x00020000")
    a("s_lshl_b32 s45, s53, 21")
    a("s_add_u32 s45, s45, s44")
    a("s_add_u32 s45, s45, 0x%x" % WS_O)
    a("s_add_u32 s24, s30, s45")
    a("s_addc_u32 s25, s31, 0")
    a("s_sub_u32 s26, %d, s44" % (256 * 8192))
    a("s_mov_b32 s27, 0x00020000")
    a("s_mov_b32 s%d, 0x3db504f3" % S_C)
    a("s_mov_b32 s%d, 0x3fb8aa3b" % S_L2E)
    a("s_lshl_b32 s46, s%d, 11" % S_WAVE)
    for sl in range(NSLOT):
        a("s_add_u32 s%d, s46, %d" % (S_M0K[sl], KSLOT[sl]))
        a("s_add_u32 s%d, s46, %d" % (S_M0V[sl], VBASE + VSLOT[sl]))
    a("s_mov_b32 s%d, 0" % S_KOFF)
    a("s_mov_b32 s%d, 0" % S_VOFF)
    a("v_xor_b32 v10, v9, v8")
    a("v_lshlrev_b32 v10, 4, v10")
    a("v_lshl_add_u32 v%d, v8, 8, v10" % KAD)
    for s in range(1, 4):
        a("v_xor_b32 v%d, %d, v%d" % (KAD + s, s << 6, KAD))
    a("v_lshrrev_b32 v10, 2, v8")
    a("v_lshl_add_u32 v11, v9, 2, v10")
    a("v_and_b32 v12, 7, v11")
    a("v_lshlrev_b32 v11, 8, v11")
    a("v_lshl_add_u32 v11, v12, 5, v11")
    a("v_and_b32 v12, 3, v8")
    a("v_lshl_add_u32 v%d, v12, 3, v11" % VAD)
    for dt in range(1, 8):
        a("v_xor_b32 v%d, %d, v%d" % (VAD + dt, dt << 5, VAD))
    a("s_lshl_b32 s47, s%d, 3" % S_WAVE)
    a("v_add_u32 v10, s47, v9")
    a("v_and_b32 v11, 15, v10")
    a("v_xor_b32 v11, v11, v8")
    a("v_lshlrev_b32 v11, 4, v11")
    a("v_lshl_add_u32 v%d, v10, 8, v11" % DK0)
    a("v_add_u32 v12, 4, v10")
    a("v_and_b32 v11, 15, v12")
    a("v_xor_b32 v11, v11, v8")
    a("v_lshlrev_b32 v11, 4, v11")
    a("v_lshl_add_u32 v%d, v10, 8, v11" % DK1)
    a("v_lshlrev_b32 v11, 1, v9")
    a("v_xor_b32 v11, v11, v8")
    a("v_lshlrev_b32 v11, 4, v11")
    a("v_xor_b32 v12, 0x80, v11")
    a("v_lshl_add_u32 v%d, v10, 8, v11" % DV0)
    a("v_lshl_add_u32 v%d, v10, 8, v12" % DV1)
    a("v_lshl_add_u32 v13, v10, 13, v11")
    a("v_lshl_add_u32 v14, v10, 13, v12")
    a("v_add_u32 v14, %d, v14" % (32768 - 1024))
    a("s_lshl_b32 s50, s%d, 15" % S_WAVE)
    a("v_lshlrev_b32 v15, 4, v5")
    a("v_add_u32 v15, s50, v15")
    a("v_lshrrev_b32 v10, 1, v9")
    a("v_xor_b32 v10, v10, v8")
    a("v_lshlrev_b32 v10, 4, v10")
    a("v_lshl_add_u32 v10, v8, 8, v10")
    a("v_and_b32 v11, 1, v9")
    a("v_lshl_add_u32 v10, v11, 3, v10")
    a("s_lshl_b32 s55, s%d, 13" % S_WAVE)
    a("s_add_u32 s55, s55, %d" % WQ_BASE)
    a("v_add_u32 v6, s55, v10")
    a("s_lshl_b32 s47, s%d, 5" % S_WAVE)
    a("v_add_u32 v0, s47, v9")
    a("v_lshlrev_b32 v0, 13, v0")
    a("v_lshl_add_u32 v0, v8, 4, v0")
    a("v_mov_b32 v7, v9")
    a("v_mov_b32 v5, v8")
    WA = 40
    H1F = 32
    WA = 4
    vm = VmTrack()

    def wq_dma(c):
        vm.add("W%d" % c, 2)
        return ["s_add_u32 s48, s46, %d" % (WQ_BASE + (c & 3) * 16384),
                "s_mov_b32 m0, s48",
                "s_mov_b32 s49, %d" % (c * 64 * 8192),
                "buffer_load_dwordx4 v13, s[16:19], s49 offen lds",
                "buffer_load_dwordx4 v14, s[16:19], s49 offen offset:1024 lds"]

    def h1_loads(c):
        vm.add("H%d" % c, 4)
        o = ["s_mov_b32 s51, %d" % (c * 4096)]
        for i in range(4):
            f = H1F + 16 * c + 4 * i
            o.append("buffer_load_dwordx4 v[%d:%d], v15, s[20:23], s51 offen offset:%d" % (f, f + 3, 1024 * i))
        return o

    def repack_loads():
        o = []
        o.append("s_lshl_b32 s47, s2, 3")
        o.append("s_add_u32 s47, s47, s%d" % S_WAVE)
        o.append("s_lshl_b32 s47, s47, 6")
        o.append("v_lshl_add_u32 v104, v7, 4, v5")
        o.append("v_add_u32 v104, s47, v104")
        o.append("s_mov_b32 s47, %d" % (149797 * 128))
        o.append("v_mul_hi_u32 v106, v104, s47")
        o.append("s_mov_b32 s47, 224")
        o.append("v_mul_lo_u32 v107, v106, s47")
        o.append("v_sub_u32 v107, v104, v107")
        o.append("v_lshrrev_b32 v105, 2, v107")
        o.append("v_and_b32 v107, 3, v107")
        o.append("v_lshlrev_b32 v105, 15, v105")
        o.append("v_lshl_add_u32 v105, v106, 6, v105")
        o.append("v_lshl_add_u32 v105, v107, 4, v105")
        o.append("v_mov_b32 v107, 0x7fffffff")
        o.append("v_cmp_gt_u32 vcc, 512, v106")
        o.append("v_lshlrev_b32 v104, 4, v104")
        o.append("v_cndmask_b32 v105, v107, v105, vcc")
        for i, base in enumerate((84, 86)):
            o.append("s_mov_b32 s56, s%d" % base)
            o.append("s_mov_b32 s57, s%d" % (base + 1))
            o.append("s_mov_b32 s58, %d" % (512 * 3584))
            o.append("s_mov_b32 s59, 0x00020000")
            o.append("buffer_load_dwordx4 v[%d:%d], v104, s[56:59], 0 offen" % (96 + 4 * i, 99 + 4 * i))
        vm.add("RP", 2)
        return o

    for dt in range(8):
        a("v_add_u32 v%d, %d, v%d" % (VAD + dt, WQ_BASE, VAD + dt))
    for c in range(3):
        for x in wq_dma(c) + h1_loads(c):
            a(x)
    stamp(a)
    a("s_waitcnt vmcnt(%d)" % vm.wait_for(["W0", "H0"]))
    a("s_barrier")
    stamp(a)
    stamp(a)
    stamp(a)
    allit = []
    for c in range(8):
        cb = (c & 3) * 16384
        items = []
        for s2 in range(2):
            for dt in range(8):
                s = 2 * c + s2
                def reads(fr, dt=dt, s2=s2, cb=cb):
                    return ["ds_read_b64_tr_b16 v[%d:%d], v%d offset:%d" % (fr, fr + 1, VAD + dt, cb + s2 * 8192),
                            "ds_read_b64_tr_b16 v[%d:%d], v%d offset:%d" % (fr + 2, fr + 3, VAD + dt, cb + s2 * 8192 + 4096)]
                mfs = []
                for qt in range(2):
                    d = OACC + 8 * dt + 4 * qt
                    mfs.append(lambda fr, d=d, s=s, qt=qt: mfma(d, fr, H1F + 8 * s + 4 * qt, None if s == 0 else d))
                items.append(Item(reads, mfs))
        if c < 7:
            bf = ["s_waitcnt vmcnt(%d)" % vm.wait_for(["W%d" % (c + 1), "H%d" % (c + 1)]), "s_barrier"]
            if c + 3 < 8:
                bf += wq_dma(c + 3) + h1_loads(c + 3)
            if c == 5:
                bf += dma_k(0) + dma_k(1) + dma_v(0)
                vm.add("KV", 6)
            if c == 6:
                bf += dma_k(2) + dma_v(1)
                vm.add("KV", 4)
                bf += repack_loads()
            items[4].before = bf
        allit += items
    st = Stream(a, QF, 8, 6)
    st.run(allit, False)
    a("s_nop 15")
    a("s_barrier")
    for dt in range(8):
        a("v_add_u32 v%d, %d, v%d" % (VAD + dt, VBASE - WQ_BASE, VAD + dt))
    a("v_mov_b32 v40, v6")
    a("v_mov_b32 v41, v7")
    a("v_mov_b32 v42, v5")
    lds_tile_write(a, 6)
    for s in range(4):
        a("v_add_u32 v%d, s55, v%d" % (T0 + 4 + s, KAD + s))
    a("s_waitcnt lgkmcnt(0)")
    for qt in range(2):
        for s in range(4):
            f = QF + 16 * qt + 4 * s
            a("ds_read_b128 v[%d:%d], v%d offset:%d" % (f, f + 3, T0 + 4 + s, qt * 4096))
    for i in range(4):
        a("v_mov_b32 v%d, 0x3f803f80" % (ONES + i))

    def main_part(safe, tag):
        for i in range(64):
            a("v_mov_b32 v%d, 0" % (OACC + i))
        for r in (MP, M0, M1):
            a("v_mov_b32 v%d, 0xff800000" % r)
        for i in range(8):
            a("v_mov_b32 v%d, 0" % (LSUM + i))
        if not safe:
            stamp(a)
        a("s_waitcnt vmcnt(0) lgkmcnt(0)")
        a("s_barrier")
        if not safe:
            for i, off in enumerate((WS_GP, WS_UP)):
                a("s_add_u32 s56, s30, 0x%x" % off)
                a("s_addc_u32 s57, s31, 0")
                a("s_mov_b32 s58, %d" % (512 * 3584))
                a("s_mov_b32 s59, 0x00020000")
                a("buffer_store_dwordx4 v[%d:%d], v105, s[56:59], 0 offen" % (96 + 4 * i, 99 + 4 * i))
        body = []
        for t in range(6):
            body += iter_items(t, safe=safe)
        st = Stream(a, POOL, NPOOL, LOOK)
        q0 = qk_items(0, SB[0])
        st.run(q0, False, body)
        a("s_nop 15")
        for s in max_ops(SB[0]) + rescale_check():
            st.emit(s)
        if not safe:
            stamp(a)
            a("s_lshl_b32 s47, s2, 3")
            a("s_add_u32 s47, s47, s%d" % S_WAVE)
            a("s_lshl_b32 s47, s47, 10")
            a("v_lshl_add_u32 v43, v42, 4, s47")
            a("v_lshl_add_u32 v43, v41, 8, v43")
            for base, nb, two in ((80, 4096 * 1024, True), (88, 1792 * 1024, False)):
                a("s_mov_b32 s56, s%d" % base)
                a("s_mov_b32 s57, s%d" % (base + 1))
                a("s_mov_b32 s58, %d" % nb)
                a("s_mov_b32 s59, 0x00020000")
                if two:
                    a("buffer_load_dwordx4 v[44:47], v43, s[56:59], 0 offen")
                    a("s_mov_b32 s47, %d" % (2048 * 1024))
                    a("buffer_load_dwordx4 v[44:47], v43, s[56:59], s47 offen")
                else:
                    a("buffer_load_dwordx4 v[44:47], v43, s[56:59], 0 offen")
        a("s_mov_b32 s%d, 5" % S_CNT)
        a.label("L_k3_loop" + tag)
        st.run(body, True, body)
        a("s_sub_u32 s%d, s%d, 1" % (S_CNT, S_CNT))
        a("s_cmp_lg_u32 s%d, 0" % S_CNT)
        a("s_cbranch_scc1 L_k3_loop" + tag)
        tail = iter_items(30, do_dma_k=False, do_dma_v=False, safe=safe) + iter_items(31, do_qk=False)
        st.run(tail, True)
        a("s_setprio 0")

    main_part(False, "f")
    a("s_nop 15")
    a("v_max_f32 v%d, v%d, v%d" % (T0, LSUM, LSUM + 4))
    a("v_mov_b32 v%d, 0x5f800000" % (T0 + 1))
    a("v_cmp_nlt_f32 vcc, v%d, v%d" % (LSUM, T0 + 1))
    a("v_cmp_nlt_f32 s[48:49], v%d, v%d" % (LSUM + 4, T0 + 1))
    a("s_nop 1")
    a("s_or_b64 s[48:49], s[48:49], vcc")
    a("s_cmp_lg_u64 s[48:49], 0")
    a("s_cselect_b32 s47, 1, 0")
    a("v_mov_b32 v%d, s47" % T0)
    a("s_lshl_b32 s47, s%d, 2" % S_WAVE)
    a("v_mov_b32 v%d, s47" % (T0 + 1))
    a("ds_write_b32 v%d, v%d offset:%d" % (T0 + 1, T0, KSLOT[2]))
    a("s_waitcnt lgkmcnt(0)")
    a("s_barrier")
    a("v_mov_b32 v%d, 0" % (T0 + 1))
    a("ds_read_b128 v[%d:%d], v%d offset:%d" % (POOL, POOL + 3, T0 + 1, KSLOT[2]))
    a("ds_read_b128 v[%d:%d], v%d offset:%d" % (POOL + 4, POOL + 7, T0 + 1, KSLOT[2] + 16))
    a("s_waitcnt lgkmcnt(0)")
    for i in range(1, 8):
        a("v_or_b32 v%d, v%d, v%d" % (POOL, POOL, POOL + i))
    a("s_nop 0")
    a("v_readfirstlane_b32 s47, v%d" % POOL)
    a("s_cmp_eq_u32 s47, 0")
    a("s_cbranch_scc1 L_k3_epi")
    a("s_barrier")
    a("s_mov_b32 s%d, 0" % S_KOFF)
    a("s_mov_b32 s%d, 0" % S_VOFF)
    for s in dma_k(0) + dma_k(1) + dma_v(0) + dma_k(2) + dma_v(1):
        a(s)
    main_part(True, "s")
    a.label("L_k3_epi")
    stamp(a)
    a("s_nop 15")
    a("v_rcp_f32 v%d, v%d" % (M0, LSUM))
    a("v_rcp_f32 v%d, v%d" % (M1, LSUM + 4))
    a("s_nop 0")
    lds_tile_write(a, 40, scale=(M0, M1))
    for i in range(4):
        a("v_add_u32 v%d, %d, v41" % (T0 + 4, 4 * i))
        a("v_xor_b32 v%d, v%d, v42" % (T0 + 5, T0 + 4))
        a("v_lshlrev_b32 v%d, 4, v%d" % (T0 + 5, T0 + 5))
        a("v_lshl_add_u32 v%d, v%d, 8, v%d" % (T0 + 5, T0 + 4, T0 + 5))
        a("v_add_u32 v%d, s55, v%d" % (KAD + i, T0 + 5))
    a("s_waitcnt lgkmcnt(0)")
    for i in range(8):
        f = SB[0] + 4 * i
        a("ds_read_b128 v[%d:%d], v%d offset:%d" % (f, f + 3, KAD + (i & 3), (i >> 2) * 4096))
    for i in range(8):
        f = SB[0] + 4 * i
        a("s_waitcnt lgkmcnt(%d)" % (7 - i))
        a("s_mov_b32 s47, %d" % (i * 4 * 8192))
        a("buffer_store_dwordx4 v[%d:%d], v0, s[24:27], s47 offen" % (f, f + 3))
    stamp(a)
    stamp_flush(a)
    a.label("L_k3_done")
    a("s_endpgm")
    return name, 256
```

```python
from asmlib import *
from small import *
import os
DIAG5 = os.environ.get("DIAG5", "0") == "1"
_n5 = [0]


def st5(a):
    if DIAG5:
        a("s_memrealtime s[%d:%d]" % (96 + 0, 97))
        a("s_waitcnt lgkmcnt(0)")
        a("v_mov_b32 v120, s96")
        a("s_lshl_b32 s98, s2, 3")
        a("s_add_u32 s98, s98, s52")
        a("s_lshl_b32 s98, s98, 6")
        a("s_add_u32 s98, s98, 0x%x" % (0x3000000 - WS_P6B + 4 * _n5[0]))
        a("v_mov_b32 v121, s98")
        a("s_mov_b32 s94, 0x7fffffff")
        a("buffer_store_dword v120, v121, s[92:95], 0 offen")
        _n5[0] += 1


def signal(a, srd, off, tmpv):
    a("s_waitcnt vmcnt(0) lgkmcnt(0)")
    a("s_barrier")
    a("v_mov_b32 v%d, 1" % tmpv)
    a("s_lshl_b32 s58, s2, 2")
    a("v_mov_b32 v%d, s58" % (tmpv + 1))
    a("v_cmp_eq_u32 vcc, 0, v0")
    a("s_and_saveexec_b64 s[48:49], vcc")
    a("buffer_store_dword v%d, v%d, s[%d:%d], 0 offen offset:%d sc1" % (tmpv, tmpv + 1, srd, srd + 3, off))
    a("s_mov_b64 exec, s[48:49]")


_wl = [0]


def wait_flags(a, srd, off, n, swave, tmpv):
    _wl[0] += 1
    lp, dn = "L_poll%d" % _wl[0], "L_polldone%d" % _wl[0]
    a("s_cmp_lg_u32 s%d, 0" % swave)
    a("s_cbranch_scc1 %s" % dn)
    if n == 256:
        a("v_lshlrev_b32 v%d, 4, v0" % (tmpv + 4))
    else:
        a("v_min_u32 v%d, %d, v0" % (tmpv + 4, n - 1))
        a("v_lshlrev_b32 v%d, 2, v%d" % (tmpv + 4, tmpv + 4))
    a.label(lp)
    if n == 256:
        a("buffer_load_dwordx4 v[%d:%d], v%d, s[%d:%d], 0 offen offset:%d sc1" % (tmpv, tmpv + 3, tmpv + 4, srd, srd + 3, off))
        a("s_waitcnt vmcnt(0)")
        a("v_and_b32 v%d, v%d, v%d" % (tmpv, tmpv, tmpv + 1))
        a("v_and_b32 v%d, v%d, v%d" % (tmpv + 2, tmpv + 2, tmpv + 3))
        a("v_and_b32 v%d, v%d, v%d" % (tmpv, tmpv, tmpv + 2))
    else:
        a("buffer_load_dword v%d, v%d, s[%d:%d], 0 offen offset:%d sc1" % (tmpv, tmpv + 4, srd, srd + 3, off))
        a("s_waitcnt vmcnt(0)")
    a("v_cmp_ne_u32 vcc, 1, v%d" % tmpv)
    a("s_nop 1")
    a("s_cbranch_vccz %s" % dn)
    a("s_sleep 1")
    a("s_branch %s" % lp)
    a.label(dn)
    a("s_barrier")


def gen_k12(a):
    name = "k1_modln_kernel"
    kernel_header(a, name)
    a("s_cmp_ge_u32 s2, 256")
    a("s_cbranch_scc1 L_k12_done")
    a("s_load_dwordx2 s[50:51], s[0:1], %d" % KA["x"])
    a("s_load_dwordx4 s[4:7], s[0:1], %d" % KA["c"])
    a("s_load_dwordx4 s[20:23], s[0:1], %d" % KA["dbg"])
    a("v_and_b32 v1, 63, v0")
    a("v_lshrrev_b32 v2, 6, v0")
    a("s_nop 0")
    a("v_readfirstlane_b32 s52, v2")
    a("s_waitcnt lgkmcnt(0)")
    srd_from(a, 8, 4, 0, 1024)
    srd_from(a, 12, 6, 0, 512 * 6144)
    srd_from(a, 16, 22, WS_MOD, 3072 * 4)
    srd_from(a, 24, 50, 0, 2048 * 1024)
    srd_from(a, 28, 22, WS_H1, 2048 * 1024)
    srd_from(a, 32, 20, 0, 256)
    a("s_lshl_b32 s53, s2, 13")
    a("v_lshlrev_b32 v3, 10, v2")
    a("v_lshlrev_b32 v4, 4, v1")
    a("v_add3_u32 v3, v3, v4, s53")
    a("buffer_load_dwordx4 v[108:111], v3, s[24:27], 0 offen")
    a("s_cmp_ge_u32 s2, 48")
    a("s_cbranch_scc1 L_k12_ln")
    a("s_cmp_ge_u32 s52, 4")
    a("s_cbranch_scc1 L_k12_gskip")
    a("v_and_b32 v5, 7, v0")
    a("v_lshrrev_b32 v6, 3, v0")
    a("v_lshlrev_b32 v7, 5, v6")
    a("buffer_load_dwordx4 v[8:11], v7, s[8:11], 0 offen")
    a("buffer_load_dwordx4 v[12:15], v7, s[8:11], 0 offen offset:16")
    a("s_mov_b32 s53, %d" % (16 * 6144))
    a("v_mul_lo_u32 v7, v6, s53")
    a("v_lshl_add_u32 v7, v5, 4, v7")
    a("s_lshl_b32 s53, s2, 7")
    a("v_add_u32 v7, s53, v7")
    for i in range(16):
        a("s_mov_b32 s54, %d" % (i * 6144))
        a("buffer_load_dwordx4 v[%d:%d], v7, s[12:15], s54 offen" % (32 + 4 * i, 35 + 4 * i))
    a("s_waitcnt vmcnt(16)")
    for i in range(8):
        unpack_bf16(a, 8 + i, 16 + 2 * i, 17 + 2 * i)
    for i in range(16):
        silu_reg(a, 16 + i, 104)
        round_bf16(a, 16 + i)
    for j in range(8):
        a("v_mov_b32 v%d, 0" % (96 + j))
    for i in range(16):
        a("s_waitcnt vmcnt(%d)" % (15 - i))
        for d in range(4):
            unpack_bf16(a, 32 + 4 * i + d, 104, 105)
            a("v_fmac_f32 v%d, v%d, v104" % (96 + 2 * d, 16 + i))
            a("v_fmac_f32 v%d, v%d, v105" % (97 + 2 * d, 16 + i))
    a("v_lshlrev_b32 v7, 8, v6")
    a("v_lshl_add_u32 v7, v5, 5, v7")
    a("ds_write_b128 v7, v[96:99]")
    a("ds_write_b128 v7, v[100:103] offset:16")
    a("s_waitcnt lgkmcnt(0)")
    a.label("L_k12_gskip")
    a("s_barrier")
    a("s_cmp_lg_u32 s52, 0")
    a("s_cbranch_scc1 L_k12_rskip")
    a("v_lshlrev_b32 v7, 2, v0")
    for g in range(32):
        a("ds_read_b32 v%d, v7 offset:%d" % (32 + g, g * 256))
    a("s_waitcnt lgkmcnt(0)")
    for g in range(1, 32):
        a("v_add_f32 v32, v32, v%d" % (32 + g))
    round_bf16(a, 32)
    a("s_lshl_b32 s53, s2, 8")
    a("v_add_u32 v7, s53, v7")
    a("buffer_store_dword v32, v7, s[16:19], 0 offen sc1")
    a.label("L_k12_rskip")
    signal(a, 32, 0, 5)
    a("s_cmp_lg_u32 s2, 0")
    a("s_cbranch_scc1 L_k12_ln")
    srd_from(a, 36, 22, WS_FLAG, 320 * 4)
    a("v_lshlrev_b32 v5, 2, v0")
    a("v_mov_b32 v6, 0")
    a("buffer_store_dword v6, v5, s[36:39], 0 offen")
    a.label("L_k12_ln")
    a("s_waitcnt vmcnt(0)")
    for i in range(4):
        unpack_bf16(a, 108 + i, 16 + 2 * i, 17 + 2 * i)
    layernorm8(a, 16, 40)
    wait_flags(a, 32, 0, 48, 52, 56)
    a("v_lshlrev_b32 v5, 5, v1")
    a("buffer_load_dwordx4 v[24:27], v5, s[16:19], 0 offen sc1")
    a("buffer_load_dwordx4 v[28:31], v5, s[16:19], 0 offen offset:16 sc1")
    a("buffer_load_dwordx4 v[32:35], v5, s[16:19], 0 offen offset:2048 sc1")
    a("buffer_load_dwordx4 v[36:39], v5, s[16:19], 0 offen offset:2064 sc1")
    a("s_lshl_b32 s53, s2, 3")
    a("v_add_u32 v40, s53, v2")
    a("v_lshrrev_b32 v41, 5, v40")
    a("v_lshlrev_b32 v41, 15, v41")
    a("v_lshrrev_b32 v42, 2, v1")
    a("v_lshl_add_u32 v41, v42, 11, v41")
    a("v_bfe_u32 v42, v40, 4, 1")
    a("v_lshl_add_u32 v41, v42, 10, v41")
    a("v_and_b32 v42, 1, v1")
    a("v_lshl_add_u32 v41, v42, 9, v41")
    a("v_and_b32 v42, 15, v40")
    a("v_lshl_add_u32 v41, v42, 4, v41")
    a("v_bfe_u32 v42, v1, 1, 1")
    a("v_lshl_add_u32 v41, v42, 3, v41")
    a("s_waitcnt vmcnt(0)")
    modulate8(a, 16, 32, 24, 44)
    pack8(a, 16, 8)
    a("buffer_store_dwordx2 v[8:9], v41, s[28:31], 0 offen")
    a("buffer_store_dwordx2 v[10:11], v41, s[28:31], 0 offen offset:256")
    a.label("L_k12_done")
    a("s_endpgm")
    return name, 112


def gen_tail(a, nsplit=4):
    name = "k5_tail_kernel"
    kernel_header(a, name)
    GB, UB, DB, XB = 8192, 40960, 73728, 0
    TK = XB + 4096
    GUB = XB + 6144
    a("s_cmp_ge_u32 s2, 256")
    a("s_cbranch_scc1 L_k5_done")
    a("s_load_dwordx2 s[4:5], s[0:1], %d" % KA["x"])
    a("s_load_dwordx4 s[60:63], s[0:1], %d" % KA["wr"])
    a("s_load_dwordx4 s[64:67], s[0:1], %d" % KA["wu"])
    a("s_load_dwordx2 s[68:69], s[0:1], %d" % KA["out"])
    a("s_load_dwordx4 s[20:23], s[0:1], %d" % KA["dbg"])
    a("v_and_b32 v1, 63, v0")
    a("v_lshrrev_b32 v2, 6, v0")
    a("s_nop 0")
    a("v_readfirstlane_b32 s52, v2")
    a("s_waitcnt lgkmcnt(0)")
    srd_from(a, 8, 4, 0, 2048 * 1024)
    srd_from(a, 12, 22, WS_MOD, 3072 * 4)
    srd_from(a, 16, 22, WS_PART, nsplit * 2048 * 2048)
    srd_from(a, 24, 60, 0, 1024)
    srd_from(a, 28, 68, 0, 2048 * 1024)
    srd_from(a, 32, 22, WS_X1, 2048 * 1024)
    srd_from(a, 36, 22, WS_H2, 2048 * 1024)
    srd_from(a, 72, 22, WS_R, 2048 * 4)
    srd_from(a, 76, 22, WS_FLAG, 320 * 4)
    srd_from(a, 80, 22, WS_GP, 512 * 3584)
    srd_from(a, 84, 22, WS_UP, 512 * 3584)
    srd_from(a, 88, 66, 0, 1792 * 1024)
    srd_from(a, 92, 22, WS_P6B, 56 * 8 * 512 * 4)
    a("s_cmp_lt_u32 s52, 8")
    a("s_cbranch_scc1 L_k5_rows")
    a("s_cmp_ge_u32 s2, 56")
    a("s_cbranch_scc1 L_k5_done")
    a("s_sub_u32 s59, s52, 8")
    a("v_lshlrev_b32 v112, 4, v1")
    a("s_lshl_b32 s56, s59, 14")
    a("s_lshl_b32 s53, s2, 15")
    a("s_add_u32 s53, s53, s56")
    for mat, base in ((80, GB), (84, UB)):
        for i in range(16):
            a("s_add_u32 s54, s56, %d" % (base + i * 1024))
            a("s_mov_b32 m0, s54")
            a("s_add_u32 s55, s53, %d" % (i * 1024))
            a("buffer_load_dwordx4 v112, s[%d:%d], s55 offen lds" % (mat, mat + 3))
    a("s_mul_i32 s57, s59, %d" % (16 * 1056))
    for i in range(16):
        a("s_add_u32 s54, s57, %d" % (DB + i * 1056))
        a("s_mov_b32 m0, s54")
        a("s_add_u32 s55, s53, %d" % (i * 1024))
        a("buffer_load_dwordx4 v112, s[88:91], s55 offen lds")
    a("s_barrier")
    a("s_waitcnt vmcnt(0)")
    a("s_barrier")
    a("s_branch L_k5_done")
    a.label("L_k5_rows")
    st5(a)
    a("s_lshl_b32 s53, s2, 13")
    a("v_lshlrev_b32 v3, 10, v2")
    a("v_lshlrev_b32 v4, 4, v1")
    a("v_add3_u32 v3, v3, v4, s53")
    a("v_lshlrev_b32 v6, 1, v3")
    a("buffer_load_dwordx4 v[8:11], v3, s[8:11], 0 offen")
    for p in range(nsplit):
        a("s_mov_b32 s53, 0x%x" % (p * 2048 * 2048))
        a("buffer_load_dwordx4 v[%d:%d], v6, s[16:19], s53 offen" % (64 + 8 * p, 67 + 8 * p))
        a("buffer_load_dwordx4 v[%d:%d], v6, s[16:19], s53 offen offset:16" % (68 + 8 * p, 71 + 8 * p))
    a("v_lshlrev_b32 v5, 5, v1")
    for j, base in ((2, 24), (3, 32), (4, 40), (5, 48)):
        a("s_mov_b32 s53, %d" % (j * 2048))
        a("buffer_load_dwordx4 v[%d:%d], v5, s[12:15], s53 offen" % (base, base + 3))
        a("buffer_load_dwordx4 v[%d:%d], v5, s[12:15], s53 offen offset:16" % (base + 4, base + 7))
    a("buffer_load_dwordx4 v[12:15], v4, s[24:27], 0 offen")
    a("s_waitcnt vmcnt(0)")
    a.label("L_k5_p1")
    st5(a)
    for i in range(4):
        unpack_bf16(a, 8 + i, 16 + 2 * i, 17 + 2 * i)
    for p in range(1, nsplit):
        for i in range(8):
            a("v_add_f32 v%d, v%d, v%d" % (64 + i, 64 + i, 64 + 8 * p + i))
    T = 100
    for i in range(0, 8, 2):
        round_bf16_pair(a, 64 + i, 65 + i, T)
        a("v_mul_f32 v%d, v%d, v%d" % (64 + i, 64 + i, 24 + i))
        a("v_mul_f32 v%d, v%d, v%d" % (65 + i, 65 + i, 25 + i))
        round_bf16_pair(a, 64 + i, 65 + i, T)
        a("v_add_f32 v%d, v%d, v%d" % (16 + i, 16 + i, 64 + i))
        a("v_add_f32 v%d, v%d, v%d" % (17 + i, 17 + i, 65 + i))
        round_bf16_pair(a, 16 + i, 17 + i, T)
    for i in range(8):
        a("v_mov_b32 v%d, v%d" % (72 + i, 16 + i))
    pack8(a, 16, 8)
    a("buffer_store_dwordx4 v[8:11], v3, s[32:35], 0 offen sc1")
    layernorm8(a, 16, T)
    modulate8(a, 16, 40, 32, T)
    pack8(a, 16, 84)
    a("buffer_store_dwordx4 v[84:87], v3, s[36:39], 0 offen sc1")
    for i in range(4):
        unpack_bf16(a, 12 + i, 88 + 2 * i, 89 + 2 * i)
    a("v_mul_f32 v%d, v16, v88" % T)
    for i in range(1, 8):
        a("v_fmac_f32 v%d, v%d, v%d" % (T, 16 + i, 88 + i))
    wave_allreduce(a, T, T + 1)
    round_bf16(a, T)
    a("v_lshrrev_b32 v7, 8, v3")
    a("v_cmp_eq_u32 vcc, 0, v1")
    a("s_and_saveexec_b64 s[48:49], vcc")
    a("buffer_store_dword v%d, v7, s[72:75], 0 offen sc1" % T)
    a("s_mov_b64 exec, s[48:49]")
    for i in range(0, 8, 2):
        a("v_mul_f32 v%d, v%d, v%d" % (16 + i, 16 + i, 48 + i))
        a("v_mul_f32 v%d, v%d, v%d" % (17 + i, 17 + i, 49 + i))
        round_bf16_pair(a, 16 + i, 17 + i, T)
        a("v_add_f32 v%d, v%d, v%d" % (16 + i, 16 + i, 72 + i))
        a("v_add_f32 v%d, v%d, v%d" % (17 + i, 17 + i, 73 + i))
    pack8(a, 16, 92)
    a("buffer_store_dwordx4 v[92:95], v3, s[28:31], 0 offen sc1")
    st5(a)
    signal(a, 76, 0, 5)
    st5(a)
    a("s_cmp_ge_u32 s2, 56")
    a("s_cbranch_scc1 L_k5_done")
    a("s_cmp_ge_u32 s52, 4")
    a("s_cbranch_scc1 L_k5_done")
    a.label("L_k5_p2")
    a("v_mov_b32 v5, v1")
    a("v_and_b32 v6, 15, v5")
    a("v_lshrrev_b32 v7, 4, v5")
    wait_flags(a, 76, 0, 256, 52, 28)
    st5(a)
    K, T = 8, 16
    a("v_lshlrev_b32 v%d, 5, v0" % T)
    a("buffer_load_dwordx4 v[%d:%d], v%d, s[72:75], 0 offen sc1" % (K, K + 3, T))
    a("buffer_load_dwordx4 v[%d:%d], v%d, s[72:75], 0 offen offset:16 sc1" % (K + 4, K + 7, T))
    a("v_lshlrev_b32 v%d, 3, v0" % (T + 1))
    a("v_sub_u32 v%d, 2047, v%d" % (T + 1, T + 1))
    a("v_lshrrev_b32 v%d, 6, v0" % (T + 4))
    a("v_lshlrev_b32 v%d, 2, v%d" % (T + 4, T + 4))
    a("s_waitcnt vmcnt(0)")
    st5(a)
    topk8_compute(a, TK, K, T, 40)
    st5(a)
    a("v_and_b32 v16, 7, v6")
    a("v_mov_b32 v17, s40")
    for j in range(1, 8):
        a("v_mov_b32 v18, s%d" % (40 + j))
        a("v_cmp_eq_u32 vcc, %d, v16" % j)
        a("s_nop 1")
        a("v_cndmask_b32 v17, v17, v18, vcc")
    a("v_lshlrev_b32 v17, 10, v17")
    a("v_lshl_add_u32 v17, v7, 4, v17")
    XF = 64
    for st in range(16):
        a("buffer_load_dwordx4 v[%d:%d], v17, s[36:39], 0 offen offset:%d sc1" % (XF + 4 * st, XF + 4 * st + 3, 64 * st))
    a("v_lshrrev_b32 v18, 2, v6")
    a("v_lshl_add_u32 v18, v7, 3, v18")
    a("v_lshlrev_b32 v19, 6, v18")
    a("v_and_b32 v20, 3, v6")
    a("v_lshl_add_u32 v19, v20, 3, v19")
    a("s_and_b32 s54, s52, 1")
    a("s_lshl_b32 s54, s54, 5")
    a("s_lshr_b32 s55, s52, 1")
    a("s_lshl_b32 s55, s55, 15")
    a("s_add_u32 s54, s54, s55")
    a("v_add_u32 v19, s54, v19")
    AF = 32
    for st in range(16):
        f = AF + 4 * (st & 7)
        a("ds_read_b64_tr_b16 v[%d:%d], v19 offset:%d" % (f, f + 1, GB + st * 2048))
        a("ds_read_b64_tr_b16 v[%d:%d], v19 offset:%d" % (f + 2, f + 3, GB + st * 2048 + 256))
        if (st & 3) == 3:
            a("s_waitcnt lgkmcnt(0) vmcnt(%d)" % (15 - st))
            for s2 in range(st - 3, st + 1):
                f2 = AF + 4 * (s2 & 7)
                c = "0" if s2 == 0 else "v[28:31]"
                a("v_mfma_f32_16x16x32_bf16 v[28:31], v[%d:%d], v[%d:%d], %s" % (
                    f2, f2 + 3, XF + 4 * s2, XF + 4 * s2 + 3, c))
    a("s_nop 15")
    st5(a)
    a("v_lshlrev_b32 v20, 7, v6")
    a("v_lshl_add_u32 v20, v7, 4, v20")
    a("s_and_b32 s54, s52, 1")
    a("s_lshl_b32 s54, s54, 6")
    a("s_lshr_b32 s55, s52, 1")
    a("s_lshl_b32 s55, s55, 11")
    a("s_add_u32 s54, s54, s55")
    a("v_add_u32 v20, s54, v20")
    a("ds_write_b128 v20, v[28:31] offset:%d" % XB)
    a("s_waitcnt lgkmcnt(0)")
    a("s_barrier")
    a("v_lshlrev_b32 v20, 2, v0")
    a("ds_read_b32 v21, v20 offset:%d" % XB)
    a("ds_read_b32 v22, v20 offset:%d" % (XB + 2048))
    a("s_waitcnt lgkmcnt(0)")
    round_bf16_pair(a, 21, 22, 24)
    silu_reg(a, 21, 24)
    round_bf16(a, 21)
    a("v_mul_f32 v21, v21, v22")
    a("v_cvt_pk_bf16_f32 v21, v21, v21")
    a("v_lshlrev_b32 v20, 1, v0")
    a("ds_write_b16 v20, v21 offset:%d" % GUB)
    a("s_waitcnt lgkmcnt(0)")
    a("s_barrier")
    a("v_lshlrev_b32 v20, 6, v16")
    a("v_lshl_add_u32 v20, v7, 4, v20")
    a("ds_read_b128 v[24:27], v20 offset:%d" % GUB)
    a("s_mov_b32 s53, 1056")
    a("v_mul_lo_u32 v21, v18, s53")
    a("v_and_b32 v22, 3, v6")
    a("v_lshl_add_u32 v21, v22, 3, v21")
    a("s_lshl_b32 s54, s52, 8")
    a("s_add_u32 s54, s54, %d" % DB)
    a("v_add_u32 v21, s54, v21")
    for tl in range(8):
        f = AF + 4 * tl
        a("ds_read_b64_tr_b16 v[%d:%d], v21 offset:%d" % (f, f + 1, tl * 32))
        a("ds_read_b64_tr_b16 v[%d:%d], v21 offset:%d" % (f + 2, f + 3, tl * 32 + 4 * 1056))
        if tl == 3:
            a("s_waitcnt lgkmcnt(0)")
    a("s_waitcnt lgkmcnt(0)")
    for tl in range(8):
        f = AF + 4 * tl
        d = XF + 4 * tl
        a("v_mfma_f32_16x16x32_bf16 v[%d:%d], v[%d:%d], v[24:27], 0" % (d, d + 3, f, f + 3))
    a("v_lshlrev_b32 v20, 11, v6")
    a("v_lshl_add_u32 v20, v7, 4, v20")
    a("s_lshl_b32 s54, s2, 14")
    a("s_lshl_b32 s55, s52, 9")
    a("s_add_u32 s54, s54, s55")
    a("v_add_u32 v20, s54, v20")
    a("v_cmp_gt_u32 vcc, 8, v6")
    a("s_nop 7")
    a("s_and_saveexec_b64 s[48:49], vcc")
    for tl in range(8):
        d = XF + 4 * tl
        a("buffer_store_dwordx4 v[%d:%d], v20, s[92:95], 0 offen offset:%d sc1" % (d, d + 3, tl * 64))
    a("s_mov_b64 exec, s[48:49]")
    st5(a)
    signal(a, 76, 1024, 5)
    st5(a)
    a("s_cmp_ge_u32 s2, 16")
    a("s_cbranch_scc1 L_k5_done")
    a("s_lshr_b32 s53, s2, 1")
    a("s_mov_b32 s54, s40")
    for j in range(1, 8):
        a("s_cmp_eq_u32 s53, %d" % j)
        a("s_cselect_b32 s54, s%d, s54" % (40 + j))
    a("s_lshl_b32 s53, s2, 8")
    a("v_add_u32 v1, s53, v0")
    a("v_lshlrev_b32 v2, 2, v1")
    a("v_and_b32 v3, 511, v1")
    a("s_lshl_b32 s55, s54, 10")
    a("v_lshl_add_u32 v4, v3, 1, s55")
    a("s_lshl_b32 s55, s54, 2")
    a("v_mov_b32 v5, s55")
    a("v_lshlrev_b32 v6, 2, v3")
    a("buffer_load_ushort v67, v4, s[36:39], 0 offen sc1")
    a("buffer_load_ushort v68, v4, s[32:35], 0 offen sc1")
    a("buffer_load_dword v69, v5, s[72:75], 0 offen sc1")
    a("s_mov_b32 s53, %d" % (5 * 2048))
    a("buffer_load_dword v70, v6, s[12:15], s53 offen")
    wait_flags(a, 76, 1024, 56, 52, 72)
    st5(a)
    for b in range(56):
        a("s_mov_b32 s53, %d" % (b * 16384))
        a("buffer_load_dword v%d, v2, s[92:95], s53 offen sc1" % (8 + b))
    a("s_waitcnt vmcnt(56)")
    a("v_lshlrev_b32 v67, 16, v67")
    a("v_lshlrev_b32 v68, 16, v68")
    a("v_mul_f32 v71, %s, v69" % NLOG2E)
    a("v_exp_f32 v71, v71")
    a("s_nop 0")
    a("v_add_f32 v71, 1.0, v71")
    a("v_rcp_f32 v71, v71")
    a("s_nop 0")
    round_bf16(a, 71)
    a("s_waitcnt vmcnt(0)")
    regs = list(range(8, 64))
    while len(regs) > 1:
        nxt = []
        for i in range(0, len(regs) - 1, 2):
            a("v_add_f32 v%d, v%d, v%d" % (regs[i], regs[i], regs[i + 1]))
            nxt.append(regs[i])
        if len(regs) & 1:
            nxt.append(regs[-1])
        regs = nxt
    y = regs[0]
    round_bf16(a, y)
    a("v_mul_f32 v%d, v%d, v71" % (y, y))
    round_bf16(a, y)
    a("v_add_f32 v%d, v%d, v67" % (y, y))
    round_bf16(a, y)
    a("v_mul_f32 v%d, v%d, v70" % (y, y))
    round_bf16(a, y)
    a("v_add_f32 v%d, v%d, v68" % (y, y))
    a("v_cvt_pk_bf16_f32 v%d, v%d, v%d" % (y, y, y))
    a("buffer_store_short v%d, v4, s[28:31], 0 offen sc1" % y)
    a("s_waitcnt vmcnt(0)")
    st5(a)
    a.label("L_k5_done")
    a("s_endpgm")
    return name, 128
```

```python
import sys, os
sys.path.insert(0, os.path.dirname(os.path.abspath(__file__)))
from asmlib import *
import small, attn, attn16, oproj, merged

HEADER = open(os.path.join(os.path.dirname(os.path.abspath(__file__)), "..", "cdna_kernels",
              "adaLN_cond__mha_block_cached__moe_arch_mod__prompt.s.ref")).read().split("; Override launch")[0]

def build():
    a = Asm()
    kernels = []
    launches = []
    def add(gen, grid, block, lds):
        name, nv = gen(a)
        kernels.append((name, nv))
        launches.append("; @launch kernel=%s grid=(%d,1,1) block=(%d,1,1) lds=%d" % (name, grid, block, lds))
    if os.environ.get("SEP12", "1") == "1":
        add(small.gen_mod, 48, 256, 8192)
        if not attn16.MERGE2:
            add(small.gen_ln1, 256, 512, 0)
    else:
        add(merged.gen_k12, 256, 512, 8192)
    add(attn16.gen_attn, 256, 512, 163840)
    if not attn16.MERGE4:
        add(oproj.gen_oproj, 256, 512, 163840)
    add(merged.gen_tail, 256, 640, 107520)
    out = HEADER + "\n".join(launches) + "\n"
    out += '.amdgcn_target "amdgcn-amd-amdhsa--gfx950"\n.text\n'
    out += a.text()
    out += '.section .rodata,"a"\n'
    for name, nv in kernels:
        out += ".p2align 6\n" + kernel_desc(name, nv)
    return out

if __name__ == "__main__":
    dst = os.path.join(os.path.dirname(os.path.abspath(__file__)), "..", "cdna_kernels",
                       "adaLN_cond__mha_block_cached__moe_arch_mod__prompt.s")
    if len(sys.argv) > 1:
        dst = sys.argv[1]
    open(dst, "w").write(build())
    print("wrote", dst)
```

```python
from asmlib import *
import os
import oproj
MERGE4 = os.environ.get("MERGE4", "1") == "1"
DIAG = os.environ.get("DIAG", "0") == "1"
WS_DIAG = 0x3000000
PRIO = int(os.environ.get("PRIO", "3"))
PFD = int(os.environ.get("PFD", "3"))
_stamp = [0]

OACC = 192
QF = 160
SB = [96, 128]
PB = 80
POOL = 48
NPOOL = 8
LOOK = 6
LSUM = 32
ONES = 12
KAD = 16
VAD = 20
DK0, DK1, DV0, DV1 = 28, 29, 30, 31
MP, M0, M1 = 1, 2, 3
T0 = 4

S_L2E = 32
S_WAVE = 33
S_C = 34
S_KOFF, S_VOFF = 35, 36
S_M0K = [37, 38, 39]
S_M0V = [40, 41, 42]
S_CNT = 43

NSLOT = 3
KSLOT = [0, 16384, 32768]
VBASE = 49152
VSLOT = [0, 16384, 32768]
WQ_BASE = 98304


def stamp(a):
    if not DIAG:
        return
    i = _stamp[0]
    _stamp[0] += 1
    a("s_memtime s[%d:%d]" % (60 + 2 * i, 61 + 2 * i))


def rstamp(a, reg):
    if DIAG:
        a("s_memrealtime s[%d:%d]" % (reg, reg + 1))


def stamp_flush(a):
    if not DIAG:
        return
    rstamp(a, 92)
    a("s_waitcnt lgkmcnt(0) vmcnt(0)")
    a("s_add_u32 s56, s30, 0x%x" % WS_DIAG)
    a("s_addc_u32 s57, s31, 0")
    a("s_mov_b32 s58, 0x100000")
    a("s_mov_b32 s59, 0x00020000")
    a("s_lshl_b32 s54, s2, 3")
    a("s_add_u32 s54, s54, s%d" % S_WAVE)
    a("s_lshl_b32 s54, s54, 6")
    a("v_mov_b32 v4, s54")
    for i in range(_stamp[0]):
        a("v_mov_b32 v5, s%d" % (60 + 2 * i))
        a("buffer_store_dword v5, v4, s[56:59], 0 offen offset:%d" % (4 * i))
    for i, r in enumerate((90, 92)):
        a("v_mov_b32 v5, s%d" % r)
        a("buffer_store_dword v5, v4, s[56:59], 0 offen offset:%d" % (48 + 4 * i))


def mfma(d, fa, fb, c):
    cs = "0" if c is None else "v[%d:%d]" % (c, c + 3)
    return "v_mfma_f32_16x16x32_bf16 v[%d:%d], v[%d:%d], v[%d:%d], %s" % (d, d + 3, fa, fa + 3, fb, fb + 3, cs)


class Item:
    def __init__(self, reads, mf, guard=False):
        self.reads = reads
        self.mf = mf
        self.guard = guard
        self.before = []
        self.after = [[] for _ in mf]


class Stream:
    def __init__(self, a, pool, npool, look):
        self.a, self.pool, self.npool, self.look = a, pool, npool, look
        self.since_cvt = 99

    def emit(self, s):
        if s.endswith(":"):
            self.a.label(s[:-1])
            return
        self.a(s)
        if s.startswith("v_cvt_pk") and ", 0, " not in s:
            self.since_cvt = 0
        else:
            self.since_cvt += 1

    def run(self, items, preissued, nxt=None):
        rd = [it for it in items if it.reads]
        nrd = len(rd)
        assert nrd % self.npool == 0 or nxt is None
        seq = rd + ([it for it in nxt if it.reads][:self.look] if nxt else [])
        issued = []

        def fr_of(k):
            return self.pool + 4 * (k % self.npool)

        def issue(k):
            for r in seq[k].reads(fr_of(k)):
                self.emit(r)
                issued.append(k)
        if preissued:
            for k in range(min(self.look, nrd)):
                issued += [k] * len(seq[k].reads(fr_of(k)))
        else:
            for k in range(min(self.look, len(seq))):
                issue(k)
        k = 0
        for it in items:
            for s in it.before:
                self.emit(s)
            fr = None
            if it.reads:
                fr = fr_of(k)
                later = sum(1 for j in issued if j > k)
                self.emit("s_waitcnt lgkmcnt(%d)" % later)
            for m, (f, aft) in enumerate(zip(it.mf, it.after)):
                if it.guard and self.since_cvt < 2:
                    self.emit("s_nop %d" % (1 - self.since_cvt))
                self.emit(f(fr))
                if m == len(it.mf) - 1 and it.reads:
                    if k + self.look < len(seq):
                        issue(k + self.look)
                    k += 1
                for s in aft:
                    self.emit(s)


def qk_items(kslot, S):
    items = []
    for kt in range(4):
        for s in range(4):
            off = KSLOT[kslot] + kt * 4096
            def reads(fr, s=s, off=off):
                return ["ds_read_b128 v[%d:%d], v%d offset:%d" % (fr, fr + 3, KAD + s, off)]
            mfs = []
            for qt in range(2):
                d = S + 8 * kt + 4 * qt
                mfs.append(lambda fr, d=d, s=s, qt=qt: mfma(d, fr, QF + 16 * qt + 4 * s, None if s == 0 else d))
            items.append(Item(reads, mfs))
    return items


def pv_items(vslot):
    items = []
    for ks in range(2):
        for dt in range(8):
            off = VSLOT[vslot] + ks * 8192
            def reads(fr, dt=dt, off=off):
                return ["ds_read_b64_tr_b16 v[%d:%d], v%d offset:%d" % (fr, fr + 1, VAD + dt, off),
                        "ds_read_b64_tr_b16 v[%d:%d], v%d offset:%d" % (fr + 2, fr + 3, VAD + dt, off + 4096)]
            mfs = []
            for qt in range(2):
                d = OACC + 8 * dt + 4 * qt
                mfs.append(lambda fr, d=d, ks=ks, qt=qt: mfma(d, fr, PB + 8 * ks + 4 * qt, d))
            items.append(Item(reads, mfs, True))
        mfs = []
        for qt in range(2):
            d = LSUM + 4 * qt
            mfs.append(lambda fr, d=d, ks=ks, qt=qt: mfma(d, ONES, PB + 8 * ks + 4 * qt, d))
        items.append(Item(None, mfs, True))
    return items


def exp_ops(S):
    ops = []
    for kt in range(4):
        for qt in range(2):
            e = S + 8 * kt + 4 * qt
            m = M0 if qt == 0 else M1
            for j in range(4):
                ops.append("v_cvt_pk_bf16_f32 v%d, 0, v%d" % (e + j, e + j))
            for j in range(4):
                ops.append("v_mul_f32 v%d, s%d, v%d" % (e + j, S_C, e + j))
            for j in range(4):
                ops.append("v_cvt_pk_bf16_f32 v%d, 0, v%d" % (e + j, e + j))
            for j in range(4):
                ops.append("v_fma_f32 v%d, v%d, s%d, -v%d" % (e + j, e + j, S_L2E, m))
            for j in range(4):
                ops.append("v_exp_f32 v%d, v%d" % (e + j, e + j))
            p = PB + 8 * (kt >> 1) + 4 * qt + 2 * (kt & 1)
            ops.append("v_cvt_pk_bf16_f32 v%d, v%d, v%d" % (p, e, e + 1))
            ops.append("v_cvt_pk_bf16_f32 v%d, v%d, v%d" % (p + 1, e + 2, e + 3))
    return ops


def max_ops(S):
    ta, tb, t2 = T0, T0 + 1, T0 + 2
    chains = []
    for qt, t in ((0, ta), (1, tb)):
        v = [S + 8 * kt + 4 * qt + r for kt in range(4) for r in range(4)]
        c = ["v_max3_f32 v%d, v%d, v%d, v%d" % (t, v[0], v[1], v[2])]
        for i in range(6):
            c.append("v_max3_f32 v%d, v%d, v%d, v%d" % (t, t, v[3 + 2 * i], v[4 + 2 * i]))
        c.append("v_max_f32 v%d, v%d, v%d" % (t, t, v[15]))
        chains.append(c)
    ops = []
    for x, y in zip(*chains):
        ops += [x, y]
    ops.append("s_nop 1")
    ops.append("v_permlane32_swap_b32 v%d, v%d" % (ta, tb))
    ops.append("v_max_f32 v%d, v%d, v%d" % (ta, ta, tb))
    ops.append("v_mov_b32 v%d, v%d" % (t2, ta))
    ops.append("v_add_f32 v%d, 0x41000000, v%d" % (tb, MP))
    ops.append("s_nop 0")
    ops.append("v_permlane16_swap_b32 v%d, v%d" % (ta, t2))
    ops.append("v_max_f32 v%d, v%d, v%d" % (ta, ta, t2))
    ops.append("v_cvt_pk_bf16_f32 v%d, 0, v%d" % (ta, ta))
    ops.append("v_mul_f32 v%d, s%d, v%d" % (ta, S_C, ta))
    ops.append("v_cvt_pk_bf16_f32 v%d, 0, v%d" % (ta, ta))
    ops.append("v_mul_f32 v%d, s%d, v%d" % (ta, S_L2E, ta))
    return ops


_lbl = [0]


def rescale_check():
    _lbl[0] += 1
    lb = "L_k3_skip%d" % _lbl[0]
    f0, f1 = T0 + 1, T0 + 2
    o = []
    o.append("v_cmp_gt_f32 vcc, v%d, v%d" % (T0, T0 + 1))
    o.append("s_nop 1")
    o.append("s_cbranch_vccz %s" % lb)
    o.append("s_nop 15")
    o.append("v_max_f32 v%d, v%d, v%d" % (T0, T0, MP))
    o.append("v_sub_f32 v%d, v%d, v%d" % (f0, MP, T0))
    o.append("v_exp_f32 v%d, v%d" % (f0, f0))
    o.append("v_mov_b32 v%d, v%d" % (MP, T0))
    o.append("v_mov_b32 v%d, v%d" % (M0, T0))
    o.append("v_mov_b32 v%d, v%d" % (M1, T0))
    o.append("v_mov_b32 v%d, v%d" % (f1, f0))
    o.append("s_nop 1")
    o.append("v_permlane32_swap_b32 v%d, v%d" % (M0, M1))
    o.append("v_permlane32_swap_b32 v%d, v%d" % (f0, f1))
    o.append("s_nop 1")
    o.append("v_mul_f32 v%d, v%d, v%d" % (LSUM, LSUM, f0))
    o.append("v_mul_f32 v%d, v%d, v%d" % (LSUM + 4, LSUM + 4, f1))
    for dt in range(8):
        for qt in range(2):
            for r in range(4):
                x = OACC + 8 * dt + 4 * qt + r
                o.append("v_mul_f32 v%d, v%d, v%d" % (x, x, f0 if qt == 0 else f1))
    o.append("s_nop 1")
    o.append(lb + ":")
    return o


def dma_k(slot):
    return ["s_mov_b32 m0, s%d" % S_M0K[slot],
            "s_nop 0",
            "buffer_load_dwordx4 v%d, s[8:11], s%d offen lds" % (DK0, S_KOFF),
            "buffer_load_dwordx4 v%d, s[8:11], s%d offen offset:1024 lds" % (DK1, S_KOFF),
            "s_add_u32 s%d, s%d, 16384" % (S_KOFF, S_KOFF)]


def dma_v(slot):
    return ["s_mov_b32 m0, s%d" % S_M0V[slot],
            "s_nop 0",
            "buffer_load_dwordx4 v%d, s[12:15], s%d offen lds" % (DV0, S_VOFF),
            "buffer_load_dwordx4 v%d, s[12:15], s%d offen offset:1024 lds" % (DV1, S_VOFF),
            "s_add_u32 s%d, s%d, 16384" % (S_VOFF, S_VOFF)]


def slots_of(items):
    return [(it, m) for it in items for m in range(len(it.mf))]


def spread(slots, lo, hi, ops):
    n = hi - lo
    k = 0
    for g in range(n):
        k2 = (len(ops) * (g + 1) + n - 1) // n
        it, m = slots[lo + g]
        it.after[m] = it.after[m] + ops[k:k2]
        k = k2
    assert k == len(ops)


def iter_items(t, do_qk=True, do_dma_k=True, do_dma_v=True, safe=True):
    p = t & 1
    E = exp_ops(SB[p])
    if do_qk:
        items = qk_items((t + 1) % NSLOT, SB[1 - p]) + pv_items(t % NSLOT)
        sl = slots_of(items)
        assert len(sl) == 68
        items[0].before = ["s_waitcnt vmcnt(0)", "s_barrier"]
        spread(sl, 0, 49, E)
        if safe:
            spread(sl, 52, 68, max_ops(SB[1 - p]))
            it, m = sl[67]
            it.after[m] = it.after[m] + rescale_check()
        if PRIO == 3:
            for pr, sidx in ((3, 0), (2, 17), (1, 34), (0, 51)):
                it, m = sl[sidx]
                it.after[m] = ["s_setprio %d" % pr] + it.after[m]
        if PRIO == 2:
            for pr, sidx in ((1, 0), (0, 34)):
                it, m = sl[sidx]
                it.after[m] = ["s_setprio %d" % pr] + it.after[m]
        if do_dma_k:
            it, m = sl[2]
            it.after[m] = it.after[m] + dma_k(t % NSLOT)
        if do_dma_v:
            it, m = sl[6]
            it.after[m] = it.after[m] + dma_v((t + 2) % NSLOT)
    else:
        items = pv_items(t % NSLOT)
        sl = slots_of(items)
        items[0].before = E[:88]
        spread(sl, 0, 17, E[88:])
    return items


class VmTrack:
    def __init__(self):
        self.ops = []

    def add(self, tag, n=1):
        self.ops += [tag] * n

    def wait_for(self, tags):
        last = max(i for i, t in enumerate(self.ops) if t in tags)
        return len(self.ops) - 1 - last


def lds_tile_write(a, wreg, scale=None):
    for dt in range(8):
        a("v_xor_b32 v%d, %d, v%d" % (T0 + 4, dt << 5, wreg))
        for qt in range(2):
            x = OACC + 8 * dt + 4 * qt
            if scale is not None:
                for r in range(4):
                    a("v_mul_f32 v%d, v%d, v%d" % (x + r, x + r, scale[qt]))
            t = POOL + 4 * dt + 2 * qt
            a("v_cvt_pk_bf16_f32 v%d, v%d, v%d" % (t, x, x + 1))
            a("v_cvt_pk_bf16_f32 v%d, v%d, v%d" % (t + 1, x + 2, x + 3))
            a("ds_write_b64 v%d, v[%d:%d] offset:%d" % (T0 + 4, t, t + 1, qt * 4096))


def gen_attn(a):
    name = "k3_attn_kernel"
    kernel_header(a, name)
    a("s_cmp_ge_u32 s2, 256")
    a("s_cbranch_scc1 L_k3_done")
    stamp(a)
    rstamp(a, 90)
    a("s_load_dwordx4 s[4:7], s[0:1], %d" % KA["k"])
    a("s_load_dwordx2 s[28:29], s[0:1], %d" % KA["wq"])
    a("s_load_dwordx2 s[30:31], s[0:1], %d" % KA["ws"])
    a("s_load_dwordx2 s[80:81], s[0:1], %d" % KA["wo"])
    a("s_load_dwordx4 s[84:87], s[0:1], %d" % KA["wg"])
    a("s_load_dwordx2 s[88:89], s[0:1], %d" % KA["wd"])
    a("s_and_b32 s52, s2, 31")
    a("s_lshr_b32 s53, s2, 5")
    a("v_lshrrev_b32 v4, 6, v0")
    a("v_and_b32 v5, 63, v0")
    a("v_readfirstlane_b32 s%d, v4" % S_WAVE)
    a("v_and_b32 v8, 15, v5")
    a("v_lshrrev_b32 v9, 4, v5")
    a("s_waitcnt lgkmcnt(0)")
    a("s_lshl_b32 s44, s52, 19")
    a("s_add_u32 s8, s4, s44")
    a("s_addc_u32 s9, s5, 0")
    a("s_mov_b32 s10, 524288")
    a("s_mov_b32 s11, 0x00020000")
    a("s_add_u32 s12, s6, s44")
    a("s_addc_u32 s13, s7, 0")
    a("s_mov_b32 s14, 524288")
    a("s_mov_b32 s15, 0x00020000")
    a("s_lshl_b32 s44, s52, 8")
    a("s_add_u32 s16, s28, s44")
    a("s_addc_u32 s17, s29, 0")
    a("s_sub_u32 s18, %d, s44" % (512 * 8192))
    a("s_mov_b32 s19, 0x00020000")
    a("s_lshl_b32 s45, s53, 18")
    a("s_add_u32 s45, s45, 0x%x" % WS_H1)
    a("s_add_u32 s20, s30, s45")
    a("s_addc_u32 s21, s31, 0")
    a("s_mov_b32 s22, 262144")
    a("s_mov_b32 s23, 0x00020000")
    a("s_lshl_b32 s45, s53, 21")
    a("s_add_u32 s45, s45, s44")
    a("s_add_u32 s45, s45, 0x%x" % WS_O)
    a("s_add_u32 s24, s30, s45")
    a("s_addc_u32 s25, s31, 0")
    a("s_sub_u32 s26, %d, s44" % (256 * 8192))
    a("s_mov_b32 s27, 0x00020000")
    a("s_mov_b32 s%d, 0x3db504f3" % S_C)
    a("s_mov_b32 s%d, 0x3fb8aa3b" % S_L2E)
    a("s_lshl_b32 s46, s%d, 11" % S_WAVE)
    for sl in range(NSLOT):
        a("s_add_u32 s%d, s46, %d" % (S_M0K[sl], KSLOT[sl]))
        a("s_add_u32 s%d, s46, %d" % (S_M0V[sl], VBASE + VSLOT[sl]))
    a("s_mov_b32 s%d, 0" % S_KOFF)
    a("s_mov_b32 s%d, 0" % S_VOFF)
    a("v_xor_b32 v10, v9, v8")
    a("v_lshlrev_b32 v10, 4, v10")
    a("v_lshl_add_u32 v%d, v8, 8, v10" % KAD)
    for s in range(1, 4):
        a("v_xor_b32 v%d, %d, v%d" % (KAD + s, s << 6, KAD))
    a("v_lshrrev_b32 v10, 2, v8")
    a("v_lshl_add_u32 v11, v9, 2, v10")
    a("v_and_b32 v12, 7, v11")
    a("v_lshlrev_b32 v11, 8, v11")
    a("v_lshl_add_u32 v11, v12, 5, v11")
    a("v_and_b32 v12, 3, v8")
    a("v_lshl_add_u32 v%d, v12, 3, v11" % VAD)
    for dt in range(1, 8):
        a("v_xor_b32 v%d, %d, v%d" % (VAD + dt, dt << 5, VAD))
    a("s_lshl_b32 s47, s%d, 3" % S_WAVE)
    a("v_add_u32 v10, s47, v9")
    a("v_and_b32 v11, 15, v10")
    a("v_xor_b32 v11, v11, v8")
    a("v_lshlrev_b32 v11, 4, v11")
    a("v_lshl_add_u32 v%d, v10, 8, v11" % DK0)
    a("v_add_u32 v12, 4, v10")
    a("v_and_b32 v11, 15, v12")
    a("v_xor_b32 v11, v11, v8")
    a("v_lshlrev_b32 v11, 4, v11")
    a("v_lshl_add_u32 v%d, v10, 8, v11" % DK1)
    a("v_lshlrev_b32 v11, 1, v9")
    a("v_xor_b32 v11, v11, v8")
    a("v_lshlrev_b32 v11, 4, v11")
    a("v_xor_b32 v12, 0x80, v11")
    a("v_lshl_add_u32 v%d, v10, 8, v11" % DV0)
    a("v_lshl_add_u32 v%d, v10, 8, v12" % DV1)
    a("v_lshl_add_u32 v13, v10, 13, v11")
    a("v_lshl_add_u32 v14, v10, 13, v12")
    a("v_add_u32 v14, %d, v14" % (32768 - 1024))
    a("s_lshl_b32 s50, s%d, 15" % S_WAVE)
    a("v_lshlrev_b32 v15, 4, v5")
    a("v_add_u32 v15, s50, v15")
    a("v_lshrrev_b32 v10, 1, v9")
    a("v_xor_b32 v10, v10, v8")
    a("v_lshlrev_b32 v10, 4, v10")
    a("v_lshl_add_u32 v10, v8, 8, v10")
    a("v_and_b32 v11, 1, v9")
    a("v_lshl_add_u32 v10, v11, 3, v10")
    a("s_lshl_b32 s55, s%d, 13" % S_WAVE)
    a("s_add_u32 s55, s55, %d" % WQ_BASE)
    a("v_add_u32 v6, s55, v10")
    a("s_lshl_b32 s47, s%d, 5" % S_WAVE)
    a("v_add_u32 v0, s47, v9")
    a("v_lshlrev_b32 v0, 13, v0")
    a("v_lshl_add_u32 v0, v8, 4, v0")
    a("v_mov_b32 v7, v9")
    a("v_mov_b32 v5, v8")
    WA = 40
    H1F = 32
    WA = 4
    vm = VmTrack()

    def wq_dma(c):
        vm.add("W%d" % c, 2)
        return ["s_add_u32 s48, s46, %d" % (WQ_BASE + (c & 3) * 16384),
                "s_mov_b32 m0, s48",
                "s_mov_b32 s49, %d" % (c * 64 * 8192),
                "buffer_load_dwordx4 v13, s[16:19], s49 offen lds",
                "buffer_load_dwordx4 v14, s[16:19], s49 offen offset:1024 lds"]

    def h1_loads(c):
        vm.add("H%d" % c, 4)
        o = ["s_mov_b32 s51, %d" % (c * 4096)]
        for i in range(4):
            f = H1F + 16 * c + 4 * i
            o.append("buffer_load_dwordx4 v[%d:%d], v15, s[20:23], s51 offen offset:%d" % (f, f + 3, 1024 * i))
        return o

    def repack_loads():
        o = []
        o.append("s_lshl_b32 s47, s2, 3")
        o.append("s_add_u32 s47, s47, s%d" % S_WAVE)
        o.append("s_lshl_b32 s47, s47, 6")
        o.append("v_lshl_add_u32 v104, v7, 4, v5")
        o.append("v_add_u32 v104, s47, v104")
        o.append("s_mov_b32 s47, %d" % (149797 * 128))
        o.append("v_mul_hi_u32 v106, v104, s47")
        o.append("s_mov_b32 s47, 224")
        o.append("v_mul_lo_u32 v107, v106, s47")
        o.append("v_sub_u32 v107, v104, v107")
        o.append("v_lshrrev_b32 v105, 2, v107")
        o.append("v_and_b32 v107, 3, v107")
        o.append("v_lshlrev_b32 v105, 15, v105")
        o.append("v_lshl_add_u32 v105, v106, 6, v105")
        o.append("v_lshl_add_u32 v105, v107, 4, v105")
        o.append("v_mov_b32 v107, 0x7fffffff")
        o.append("v_cmp_gt_u32 vcc, 512, v106")
        o.append("v_lshlrev_b32 v104, 4, v104")
        o.append("v_cndmask_b32 v105, v107, v105, vcc")
        for i, base in enumerate((84, 86)):
            o.append("s_mov_b32 s56, s%d" % base)
            o.append("s_mov_b32 s57, s%d" % (base + 1))
            o.append("s_mov_b32 s58, %d" % (512 * 3584))
            o.append("s_mov_b32 s59, 0x00020000")
            o.append("buffer_load_dwordx4 v[%d:%d], v104, s[56:59], 0 offen" % (96 + 4 * i, 99 + 4 * i))
        vm.add("RP", 2)
        return o

    for dt in range(8):
        a("v_add_u32 v%d, %d, v%d" % (VAD + dt, WQ_BASE, VAD + dt))
    for c in range(3):
        for x in wq_dma(c) + h1_loads(c):
            a(x)
    stamp(a)
    a("s_waitcnt vmcnt(%d)" % vm.wait_for(["W0", "H0"]))
    a("s_barrier")
    stamp(a)
    stamp(a)
    stamp(a)
    allit = []
    for c in range(8):
        cb = (c & 3) * 16384
        items = []
        for s2 in range(2):
            for dt in range(8):
                s = 2 * c + s2
                def reads(fr, dt=dt, s2=s2, cb=cb):
                    return ["ds_read_b64_tr_b16 v[%d:%d], v%d offset:%d" % (fr, fr + 1, VAD + dt, cb + s2 * 8192),
                            "ds_read_b64_tr_b16 v[%d:%d], v%d offset:%d" % (fr + 2, fr + 3, VAD + dt, cb + s2 * 8192 + 4096)]
                mfs = []
                for qt in range(2):
                    d = OACC + 8 * dt + 4 * qt
                    mfs.append(lambda fr, d=d, s=s, qt=qt: mfma(d, fr, H1F + 8 * s + 4 * qt, None if s == 0 else d))
                items.append(Item(reads, mfs))
        if c < 7:
            bf = ["s_waitcnt vmcnt(%d)" % vm.wait_for(["W%d" % (c + 1), "H%d" % (c + 1)]), "s_barrier"]
            if c + 3 < 8:
                bf += wq_dma(c + 3) + h1_loads(c + 3)
            if c == 5:
                bf += dma_k(0) + dma_k(1) + dma_v(0)
                vm.add("KV", 6)
            if c == 6:
                bf += dma_k(2) + dma_v(1)
                vm.add("KV", 4)
                bf += repack_loads()
            items[4].before = bf
        allit += items
    st = Stream(a, QF, 8, 6)
    st.run(allit, False)
    a("s_nop 15")
    a("s_barrier")
    for dt in range(8):
        a("v_add_u32 v%d, %d, v%d" % (VAD + dt, VBASE - WQ_BASE, VAD + dt))
    a("v_mov_b32 v40, v6")
    a("v_mov_b32 v41, v7")
    a("v_mov_b32 v42, v5")
    lds_tile_write(a, 6)
    for s in range(4):
        a("v_add_u32 v%d, s55, v%d" % (T0 + 4 + s, KAD + s))
    a("s_waitcnt lgkmcnt(0)")
    for qt in range(2):
        for s in range(4):
            f = QF + 16 * qt + 4 * s
            a("ds_read_b128 v[%d:%d], v%d offset:%d" % (f, f + 3, T0 + 4 + s, qt * 4096))
    for i in range(4):
        a("v_mov_b32 v%d, 0x3f803f80" % (ONES + i))

    def main_part(safe, tag):
        for i in range(64):
            a("v_mov_b32 v%d, 0" % (OACC + i))
        for r in (MP, M0, M1):
            a("v_mov_b32 v%d, 0xff800000" % r)
        for i in range(8):
            a("v_mov_b32 v%d, 0" % (LSUM + i))
        if not safe:
            stamp(a)
        a("s_waitcnt vmcnt(0) lgkmcnt(0)")
        a("s_barrier")
        if not safe:
            for i, off in enumerate((WS_GP, WS_UP)):
                a("s_add_u32 s56, s30, 0x%x" % off)
                a("s_addc_u32 s57, s31, 0")
                a("s_mov_b32 s58, %d" % (512 * 3584))
                a("s_mov_b32 s59, 0x00020000")
                a("buffer_store_dwordx4 v[%d:%d], v105, s[56:59], 0 offen" % (96 + 4 * i, 99 + 4 * i))
        body = []
        for t in range(6):
            body += iter_items(t, safe=safe)
        st = Stream(a, POOL, NPOOL, LOOK)
        q0 = qk_items(0, SB[0])
        st.run(q0, False, body)
        a("s_nop 15")
        for s in max_ops(SB[0]) + rescale_check():
            st.emit(s)
        if not safe:
            stamp(a)
            a("s_lshl_b32 s47, s2, 3")
            a("s_add_u32 s47, s47, s%d" % S_WAVE)
            a("s_lshl_b32 s47, s47, 10")
            a("v_lshl_add_u32 v43, v42, 4, s47")
            a("v_lshl_add_u32 v43, v41, 8, v43")
            for base, nb, two in ((80, 4096 * 1024, True), (88, 1792 * 1024, False)):
                a("s_mov_b32 s56, s%d" % base)
                a("s_mov_b32 s57, s%d" % (base + 1))
                a("s_mov_b32 s58, %d" % nb)
                a("s_mov_b32 s59, 0x00020000")
                if two:
                    a("buffer_load_dwordx4 v[44:47], v43, s[56:59], 0 offen")
                    a("s_mov_b32 s47, %d" % (2048 * 1024))
                    a("buffer_load_dwordx4 v[44:47], v43, s[56:59], s47 offen")
                else:
                    a("buffer_load_dwordx4 v[44:47], v43, s[56:59], 0 offen")
        a("s_mov_b32 s%d, 5" % S_CNT)
        a.label("L_k3_loop" + tag)
        st.run(body, True, body)
        a("s_sub_u32 s%d, s%d, 1" % (S_CNT, S_CNT))
        a("s_cmp_lg_u32 s%d, 0" % S_CNT)
        a("s_cbranch_scc1 L_k3_loop" + tag)
        tail = iter_items(30, do_dma_k=False, do_dma_v=False, safe=safe) + iter_items(31, do_qk=False)
        st.run(tail, True)
        a("s_setprio 0")

    main_part(False, "f")
    a("s_nop 15")
    a("v_max_f32 v%d, v%d, v%d" % (T0, LSUM, LSUM + 4))
    a("v_mov_b32 v%d, 0x5f800000" % (T0 + 1))
    a("v_cmp_nlt_f32 vcc, v%d, v%d" % (LSUM, T0 + 1))
    a("v_cmp_nlt_f32 s[48:49], v%d, v%d" % (LSUM + 4, T0 + 1))
    a("s_nop 1")
    a("s_or_b64 s[48:49], s[48:49], vcc")
    a("s_cmp_lg_u64 s[48:49], 0")
    a("s_cselect_b32 s47, 1, 0")
    a("v_mov_b32 v%d, s47" % T0)
    a("s_lshl_b32 s47, s%d, 2" % S_WAVE)
    a("v_mov_b32 v%d, s47" % (T0 + 1))
    a("ds_write_b32 v%d, v%d offset:%d" % (T0 + 1, T0, KSLOT[2]))
    a("s_waitcnt lgkmcnt(0)")
    a("s_barrier")
    a("v_mov_b32 v%d, 0" % (T0 + 1))
    a("ds_read_b128 v[%d:%d], v%d offset:%d" % (POOL, POOL + 3, T0 + 1, KSLOT[2]))
    a("ds_read_b128 v[%d:%d], v%d offset:%d" % (POOL + 4, POOL + 7, T0 + 1, KSLOT[2] + 16))
    a("s_waitcnt lgkmcnt(0)")
    for i in range(1, 8):
        a("v_or_b32 v%d, v%d, v%d" % (POOL, POOL, POOL + i))
    a("s_nop 0")
    a("v_readfirstlane_b32 s47, v%d" % POOL)
    a("s_cmp_eq_u32 s47, 0")
    a("s_cbranch_scc1 L_k3_epi")
    a("s_barrier")
    a("s_mov_b32 s%d, 0" % S_KOFF)
    a("s_mov_b32 s%d, 0" % S_VOFF)
    for s in dma_k(0) + dma_k(1) + dma_v(0) + dma_k(2) + dma_v(1):
        a(s)
    main_part(True, "s")
    a.label("L_k3_epi")
    stamp(a)
    a("s_nop 15")
    a("v_rcp_f32 v%d, v%d" % (M0, LSUM))
    a("v_rcp_f32 v%d, v%d" % (M1, LSUM + 4))
    a("s_nop 0")
    lds_tile_write(a, 40, scale=(M0, M1))
    for i in range(4):
        a("v_add_u32 v%d, %d, v41" % (T0 + 4, 4 * i))
        a("v_xor_b32 v%d, v%d, v42" % (T0 + 5, T0 + 4))
        a("v_lshlrev_b32 v%d, 4, v%d" % (T0 + 5, T0 + 5))
        a("v_lshl_add_u32 v%d, v%d, 8, v%d" % (T0 + 5, T0 + 4, T0 + 5))
        a("v_add_u32 v%d, s55, v%d" % (KAD + i, T0 + 5))
    a("s_waitcnt lgkmcnt(0)")
    for i in range(8):
        f = SB[0] + 4 * i
        a("ds_read_b128 v[%d:%d], v%d offset:%d" % (f, f + 3, KAD + (i & 3), (i >> 2) * 4096))
    for i in range(8):
        f = SB[0] + 4 * i
        a("s_waitcnt lgkmcnt(%d)" % (7 - i))
        a("s_mov_b32 s47, %d" % (i * 4 * 8192))
        a("buffer_store_dwordx4 v[%d:%d], v0, s[24:27], s47 offen%s" % (f, f + 3, " sc1" if MERGE4 else ""))
    stamp(a)
    stamp_flush(a)
    if MERGE4:
        a("s_add_u32 s56, s30, 0x%x" % (WS_FLAG + FLAG_O_OFF))
        a("s_addc_u32 s57, s31, 0")
        a("s_mov_b32 s58, 1024")
        a("s_mov_b32 s59, 0x00020000")
        a("v_mbcnt_lo_u32_b32 v0, -1, 0")
        a("v_mbcnt_hi_u32_b32 v0, -1, v0")
        a("s_lshl_b32 s47, s%d, 6" % S_WAVE)
        a("v_add_u32 v0, s47, v0")
        a("s_waitcnt vmcnt(0) lgkmcnt(0)")
        a("s_barrier")
        a("v_mov_b32 v4, 1")
        a("s_lshl_b32 s47, s2, 2")
        a("v_mov_b32 v5, s47")
        a("v_cmp_eq_u32 vcc, 0, v0")
        a("s_and_saveexec_b64 s[48:49], vcc")
        a("buffer_store_dword v4, v5, s[56:59], 0 offen sc1")
        a("s_mov_b64 exec, s[48:49]")
        oproj.oproj_body(a, True)
    a.label("L_k3_done")
    a("s_endpgm")
    return name, 256
```

```python
from asmlib import *
import os
DIAG = os.environ.get("DIAG4", "0") == "1"
_n = [0]


def stamp(a):
    if DIAG:
        a("s_memrealtime s[%d:%d]" % (60 + 2 * _n[0], 61 + 2 * _n[0]))
        _n[0] += 1


def flush(a):
    if not DIAG:
        return
    a("s_waitcnt lgkmcnt(0) vmcnt(0)")
    stamp(a)
    a("s_waitcnt lgkmcnt(0)")
    a("s_add_u32 s56, s6, 0x3000000")
    a("s_addc_u32 s57, s7, 0")
    a("s_mov_b32 s58, 0x100000")
    a("s_mov_b32 s59, 0x00020000")
    a("s_lshl_b32 s54, s2, 3")
    a("s_add_u32 s54, s54, s31")
    a("s_lshl_b32 s54, s54, 6")
    a("v_mov_b32 v4, s54")
    for i in range(_n[0]):
        a("v_mov_b32 v5, s%d" % (60 + 2 * i))
        a("buffer_store_dword v5, v4, s[56:59], 0 offen offset:%d" % (4 * i))

ACC = 64
NST = 5
STAGE = 32768
FR = 32
NSET = 2


def gen_oproj(a):
    name = "k4_oproj_kernel"
    kernel_header(a, name)
    a("s_cmp_ge_u32 s2, 256")
    a("s_cbranch_scc1 L_k4_done")
    oproj_body(a, False)
    a.label("L_k4_done")
    a("s_endpgm")
    return name, 112


def oproj_body(a, merged):
    stamp(a)
    a("s_load_dwordx2 s[4:5], s[0:1], %d" % KA["wo"])
    a("s_load_dwordx2 s[6:7], s[0:1], %d" % KA["ws"])
    a("s_and_b32 s30, s2, 3")
    a("s_lshr_b32 s28, s2, 2")
    a("s_and_b32 s28, s28, 1")
    a("s_lshl_b32 s28, s28, 3")
    a("s_lshr_b32 s29, s2, 3")
    a("s_and_b32 s29, s29, 7")
    a("s_add_u32 s28, s28, s29")
    a("s_lshr_b32 s29, s2, 6")
    a("v_lshrrev_b32 v4, 6, v0")
    a("v_and_b32 v5, 63, v0")
    a("v_readfirstlane_b32 s31, v4")
    a("v_lshrrev_b32 v6, 5, v5")
    a("v_and_b32 v7, 31, v5")
    a("v_and_b32 v8, 15, v5")
    a("v_lshrrev_b32 v9, 4, v5")
    a("s_waitcnt lgkmcnt(0)")
    a("s_lshl_b32 s32, s28, 20")
    a("s_lshl_b32 s33, s30, 11")
    a("s_add_u32 s32, s32, s33")
    a("s_add_u32 s34, s32, 0x%x" % WS_O)
    a("s_add_u32 s8, s6, s34")
    a("s_addc_u32 s9, s7, 0")
    a("s_sub_u32 s10, %d, s33" % (128 * 8192))
    a("s_mov_b32 s11, 0x00020000")
    a("s_lshl_b32 s32, s30, 20")
    a("s_lshl_b32 s33, s29, 8")
    a("s_add_u32 s32, s32, s33")
    a("s_add_u32 s12, s4, s32")
    a("s_addc_u32 s13, s5, 0")
    a("s_sub_u32 s14, %d, s33" % (1024 * 1024))
    a("s_mov_b32 s15, 0x00020000")
    a("s_lshl_b32 s32, s30, 22")
    a("s_lshl_b32 s33, s28, 18")
    a("s_add_u32 s32, s32, s33")
    a("s_lshl_b32 s33, s29, 9")
    a("s_add_u32 s32, s32, s33")
    a("s_add_u32 s32, s32, 0x%x" % WS_PART)
    a("s_add_u32 s16, s6, s32")
    a("s_addc_u32 s17, s7, 0")
    a("s_sub_u32 s18, %d, s33" % (128 * 2048))
    a("s_mov_b32 s19, 0x00020000")
    a("s_and_b32 s35, s31, 1")
    a("s_lshr_b32 s36, s31, 1")
    a("v_lshrrev_b32 v10, 3, v5")
    a("s_lshl_b32 s37, s31, 4")
    a("v_add_u32 v10, s37, v10")
    a("v_and_b32 v11, 7, v5")
    for ii in range(2):
        a("v_add_u32 v12, %d, v10" % (8 * ii))
        a("v_lshrrev_b32 v13, 1, v12")
        a("v_and_b32 v13, 7, v13")
        a("v_xor_b32 v13, v13, v11")
        a("v_lshlrev_b32 v13, 4, v13")
        a("v_lshl_add_u32 v%d, v12, 13, v13" % (16 + ii))
    a("v_subrev_u32 v17, 1024, v17")
    a("s_lshl_b32 s37, s31, 3")
    a("v_add_u32 v10, s37, v9")
    a("v_lshlrev_b32 v11, 2, v9")
    a("v_xor_b32 v11, v11, v8")
    a("v_lshlrev_b32 v11, 4, v11")
    a("v_lshl_add_u32 v18, v10, 10, v11")
    a("v_add_u32 v19, %d, v18" % (4096 - 1024))
    a("s_lshl_b32 s37, s35, 6")
    a("v_add_u32 v10, s37, v7")
    a("v_lshrrev_b32 v11, 1, v10")
    a("v_and_b32 v11, 7, v11")
    a("v_xor_b32 v11, v11, v6")
    a("v_lshlrev_b32 v11, 4, v11")
    a("v_lshl_add_u32 v20, v10, 7, v11")
    for s in range(1, 4):
        a("v_xor_b32 v%d, %d, v20" % (20 + s, s << 5))
    a("v_lshrrev_b32 v10, 2, v8")
    a("v_lshl_add_u32 v11, v6, 3, v10")
    a("v_lshlrev_b32 v11, 8, v11")
    a("v_and_b32 v12, 1, v9")
    a("v_lshl_add_u32 v11, v12, 5, v11")
    a("v_and_b32 v12, 3, v8")
    a("v_lshl_add_u32 v11, v12, 3, v11")
    a("v_xor_b32 v12, s36, v10")
    a("v_lshl_add_u32 v24, v12, 6, v11")
    a("v_add_u32 v24, 16384, v24")
    for s in range(5):
        a("v_add_u32 v%d, 0x10000, v%d" % (25 + s, 20 + s))
        a("v_add_u32 v%d, 0x20000, v%d" % (104 + s, 20 + s))
    a("s_lshl_b32 s37, s35, 6")
    a("v_add_u32 v10, s37, v7")
    a("v_lshlrev_b32 v10, 11, v10")
    a("s_lshl_b32 s37, s36, 7")
    a("v_add_u32 v10, s37, v10")
    a("v_lshl_add_u32 v30, v6, 4, v10")
    a("v_add_u32 v31, %d, v30" % (32 * 2048))
    a("s_lshl_b32 s38, s31, 11")

    sc = " sc1" if (merged and os.environ.get("ASC1", "1") == "1") else ""
    vmo = []

    def dma_a(kstep):
        sb = (kstep % NST) * STAGE
        vmo.extend([kstep] * 2)
        return ["s_add_u32 s39, s38, %d" % sb,
                "s_mov_b32 m0, s39",
                "s_mov_b32 s40, %d" % (kstep * 128),
                "buffer_load_dwordx4 v16, s[8:11], s40 offen%s lds" % sc,
                "buffer_load_dwordx4 v17, s[8:11], s40 offen offset:1024%s lds" % sc]

    def dma_b(kstep):
        sb = (kstep % NST) * STAGE
        vmo.extend([kstep] * 2)
        return ["s_add_u32 s39, s38, %d" % (sb + 16384),
                "s_mov_b32 m0, s39",
                "s_mov_b32 s41, %d" % (kstep * 65536),
                "buffer_load_dwordx4 v18, s[12:15], s41 offen lds",
                "buffer_load_dwordx4 v19, s[12:15], s41 offen offset:1024 lds"]

    def dma(kstep):
        return dma_a(kstep) + dma_b(kstep)

    def vm_wait(upto):
        last = max(i for i, k in enumerate(vmo) if k <= upto)
        return len(vmo) - 1 - last

    if merged:
        for k in range(4):
            for x in dma_b(k):
                a(x)
        a("s_add_u32 s44, s6, 0x%x" % (WS_FLAG + FLAG_O_OFF))
        a("s_addc_u32 s45, s7, 0")
        a("s_mov_b32 s46, 1024")
        a("s_mov_b32 s47, 0x00020000")
        a("s_cmp_lg_u32 s31, 0")
        a("s_cbranch_scc1 L_k4_polldone")
        a("s_lshr_b32 s42, s28, 1")
        a("s_lshl_b32 s42, s42, 7")
        a("s_lshl_b32 s43, s30, 5")
        a("s_add_u32 s42, s42, s43")
        a("v_and_b32 v33, 7, v5")
        a("v_lshl_add_u32 v33, v33, 2, s42")
        a.label("L_k4_poll")
        a("buffer_load_dword v32, v33, s[44:47], 0 offen sc1")
        a("s_waitcnt vmcnt(0)")
        a("v_cmp_ne_u32 vcc, 1, v32")
        a("s_nop 1")
        a("s_cbranch_vccz L_k4_polldone")
        a("s_sleep 1")
        a("s_branch L_k4_poll")
        a.label("L_k4_polldone")
        a("s_barrier")
        for k in range(4):
            for x in dma_a(k):
                a(x)
    else:
        for k in range(4):
            for x in dma(k):
                a(x)
    NS = 3
    FS = 32
    ACCR = 72

    def reads(u):
        j, s = u >> 2, u & 3
        sb = (j % NST) * STAGE
        ba, aa = 20, 24
        if sb >= 131072:
            sb -= 131072
            ba, aa = 104, 108
        elif sb >= 65536:
            sb -= 65536
            ba, aa = 25, 29
        f = FS + 12 * (u % NS)
        return ["ds_read_b64_tr_b16 v[%d:%d], v%d offset:%d" % (f, f + 1, aa, sb + s * 4096),
                "ds_read_b64_tr_b16 v[%d:%d], v%d offset:%d" % (f + 2, f + 3, aa, sb + s * 4096 + 1024),
                "ds_read_b128 v[%d:%d], v%d offset:%d" % (f + 4, f + 7, ba + s, sb),
                "ds_read_b128 v[%d:%d], v%d offset:%d" % (f + 8, f + 11, ba + s, sb + 4096)]

    stamp(a)
    a("s_waitcnt vmcnt(%d)" % vm_wait(1))
    a("s_barrier")
    stamp(a)
    for r in reads(0) + reads(1):
        a(r)
    for u in range(64):
        j, s = u >> 2, u & 3
        if s == 0 and j > 0:
            a("s_waitcnt vmcnt(%d)" % vm_wait(min(15, j + 1)))
            a("s_barrier")
            if j in (4, 8, 12):
                stamp(a)
        if u + 2 < 64:
            for r in reads(u + 2):
                a(r)
            a("s_waitcnt lgkmcnt(8)")
        elif u + 1 < 64:
            a("s_waitcnt lgkmcnt(4)")
        else:
            a("s_waitcnt lgkmcnt(0)")
        f = FS + 12 * (u % NS)
        for mt2 in range(2):
            d = ACCR + 16 * mt2
            c = "0" if u == 0 else "v[%d:%d]" % (d, d + 15)
            a("v_mfma_f32_32x32x16_bf16 v[%d:%d], v[%d:%d], v[%d:%d], %s" % (
                d, d + 15, f, f + 3, f + 4 + 4 * mt2, f + 7 + 4 * mt2, c))
            if s == 0 and mt2 == 0 and j + 4 < 16:
                for x in dma(j + 4):
                    a(x)
    a("s_nop 15")
    a("s_nop 7")
    stamp(a)
    for mt2 in range(2):
        d = ACCR + 16 * mt2
        for q in range(4):
            a("buffer_store_dwordx4 v[%d:%d], v%d, s[16:19], 0 offen offset:%d %s" % (
                d + 4 * q, d + 4 * q + 3, 30 + mt2, q * 32, os.environ.get("K4ST", "")))
    flush(a)
```

```python
from asmlib import *
from small import *
import os
DIAG5 = os.environ.get("DIAG5", "0") == "1"
_n5 = [0]


def st5(a):
    if DIAG5:
        a("s_memrealtime s[%d:%d]" % (96 + 0, 97))
        a("s_waitcnt lgkmcnt(0)")
        a("v_mov_b32 v120, s96")
        a("s_lshl_b32 s98, s2, 3")
        a("s_add_u32 s98, s98, s52")
        a("s_lshl_b32 s98, s98, 6")
        a("s_add_u32 s98, s98, 0x%x" % (0x3000000 - WS_P6B + 4 * _n5[0]))
        a("v_mov_b32 v121, s98")
        a("s_mov_b32 s94, 0x7fffffff")
        a("buffer_store_dword v120, v121, s[92:95], 0 offen")
        _n5[0] += 1


def signal(a, srd, off, tmpv):
    a("s_waitcnt vmcnt(0) lgkmcnt(0)")
    a("s_barrier")
    a("v_mov_b32 v%d, 1" % tmpv)
    a("s_lshl_b32 s58, s2, 2")
    a("v_mov_b32 v%d, s58" % (tmpv + 1))
    a("v_cmp_eq_u32 vcc, 0, v0")
    a("s_and_saveexec_b64 s[48:49], vcc")
    a("buffer_store_dword v%d, v%d, s[%d:%d], 0 offen offset:%d sc1" % (tmpv, tmpv + 1, srd, srd + 3, off))
    a("s_mov_b64 exec, s[48:49]")


_wl = [0]


def wait_flags(a, srd, off, n, swave, tmpv):
    _wl[0] += 1
    lp, dn = "L_poll%d" % _wl[0], "L_polldone%d" % _wl[0]
    a("s_cmp_lg_u32 s%d, 0" % swave)
    a("s_cbranch_scc1 %s" % dn)
    if n == 256:
        a("v_lshlrev_b32 v%d, 4, v0" % (tmpv + 4))
    else:
        a("v_min_u32 v%d, %d, v0" % (tmpv + 4, n - 1))
        a("v_lshlrev_b32 v%d, 2, v%d" % (tmpv + 4, tmpv + 4))
    a.label(lp)
    if n == 256:
        a("buffer_load_dwordx4 v[%d:%d], v%d, s[%d:%d], 0 offen offset:%d sc1" % (tmpv, tmpv + 3, tmpv + 4, srd, srd + 3, off))
        a("s_waitcnt vmcnt(0)")
        a("v_and_b32 v%d, v%d, v%d" % (tmpv, tmpv, tmpv + 1))
        a("v_and_b32 v%d, v%d, v%d" % (tmpv + 2, tmpv + 2, tmpv + 3))
        a("v_and_b32 v%d, v%d, v%d" % (tmpv, tmpv, tmpv + 2))
    else:
        a("buffer_load_dword v%d, v%d, s[%d:%d], 0 offen offset:%d sc1" % (tmpv, tmpv + 4, srd, srd + 3, off))
        a("s_waitcnt vmcnt(0)")
    a("v_cmp_ne_u32 vcc, 1, v%d" % tmpv)
    a("s_nop 1")
    a("s_cbranch_vccz %s" % dn)
    a("s_sleep 1")
    a("s_branch %s" % lp)
    a.label(dn)
    a("s_barrier")


def gen_k12(a):
    name = "k1_modln_kernel"
    kernel_header(a, name)
    a("s_cmp_ge_u32 s2, 256")
    a("s_cbranch_scc1 L_k12_done")
    a("s_load_dwordx2 s[50:51], s[0:1], %d" % KA["x"])
    a("s_load_dwordx4 s[4:7], s[0:1], %d" % KA["c"])
    a("s_load_dwordx4 s[20:23], s[0:1], %d" % KA["dbg"])
    a("v_and_b32 v1, 63, v0")
    a("v_lshrrev_b32 v2, 6, v0")
    a("s_nop 0")
    a("v_readfirstlane_b32 s52, v2")
    a("s_waitcnt lgkmcnt(0)")
    srd_from(a, 8, 4, 0, 1024)
    srd_from(a, 12, 6, 0, 512 * 6144)
    srd_from(a, 16, 22, WS_MOD, 3072 * 4)
    srd_from(a, 24, 50, 0, 2048 * 1024)
    srd_from(a, 28, 22, WS_H1, 2048 * 1024)
    srd_from(a, 32, 20, 0, 256)
    a("s_lshl_b32 s53, s2, 13")
    a("v_lshlrev_b32 v3, 10, v2")
    a("v_lshlrev_b32 v4, 4, v1")
    a("v_add3_u32 v3, v3, v4, s53")
    a("buffer_load_dwordx4 v[108:111], v3, s[24:27], 0 offen")
    a("s_cmp_ge_u32 s2, 48")
    a("s_cbranch_scc1 L_k12_ln")
    a("s_cmp_ge_u32 s52, 4")
    a("s_cbranch_scc1 L_k12_gskip")
    a("v_and_b32 v5, 7, v0")
    a("v_lshrrev_b32 v6, 3, v0")
    a("v_lshlrev_b32 v7, 5, v6")
    a("buffer_load_dwordx4 v[8:11], v7, s[8:11], 0 offen")
    a("buffer_load_dwordx4 v[12:15], v7, s[8:11], 0 offen offset:16")
    a("s_mov_b32 s53, %d" % (16 * 6144))
    a("v_mul_lo_u32 v7, v6, s53")
    a("v_lshl_add_u32 v7, v5, 4, v7")
    a("s_lshl_b32 s53, s2, 7")
    a("v_add_u32 v7, s53, v7")
    for i in range(16):
        a("s_mov_b32 s54, %d" % (i * 6144))
        a("buffer_load_dwordx4 v[%d:%d], v7, s[12:15], s54 offen" % (32 + 4 * i, 35 + 4 * i))
    a("s_waitcnt vmcnt(16)")
    for i in range(8):
        unpack_bf16(a, 8 + i, 16 + 2 * i, 17 + 2 * i)
    for i in range(16):
        silu_reg(a, 16 + i, 104)
        round_bf16(a, 16 + i)
    for j in range(8):
        a("v_mov_b32 v%d, 0" % (96 + j))
    for i in range(16):
        a("s_waitcnt vmcnt(%d)" % (15 - i))
        for d in range(4):
            unpack_bf16(a, 32 + 4 * i + d, 104, 105)
            a("v_fmac_f32 v%d, v%d, v104" % (96 + 2 * d, 16 + i))
            a("v_fmac_f32 v%d, v%d, v105" % (97 + 2 * d, 16 + i))
    a("v_lshlrev_b32 v7, 8, v6")
    a("v_lshl_add_u32 v7, v5, 5, v7")
    a("ds_write_b128 v7, v[96:99]")
    a("ds_write_b128 v7, v[100:103] offset:16")
    a("s_waitcnt lgkmcnt(0)")
    a.label("L_k12_gskip")
    a("s_barrier")
    a("s_cmp_lg_u32 s52, 0")
    a("s_cbranch_scc1 L_k12_rskip")
    a("v_lshlrev_b32 v7, 2, v0")
    for g in range(32):
        a("ds_read_b32 v%d, v7 offset:%d" % (32 + g, g * 256))
    a("s_waitcnt lgkmcnt(0)")
    for g in range(1, 32):
        a("v_add_f32 v32, v32, v%d" % (32 + g))
    round_bf16(a, 32)
    a("s_lshl_b32 s53, s2, 8")
    a("v_add_u32 v7, s53, v7")
    a("buffer_store_dword v32, v7, s[16:19], 0 offen sc1")
    a.label("L_k12_rskip")
    signal(a, 32, 0, 5)
    a("s_cmp_lg_u32 s2, 0")
    a("s_cbranch_scc1 L_k12_ln")
    srd_from(a, 36, 22, WS_FLAG, 320 * 4)
    a("v_lshlrev_b32 v5, 2, v0")
    a("v_mov_b32 v6, 0")
    a("buffer_store_dword v6, v5, s[36:39], 0 offen")
    a.label("L_k12_ln")
    a("s_waitcnt vmcnt(0)")
    for i in range(4):
        unpack_bf16(a, 108 + i, 16 + 2 * i, 17 + 2 * i)
    layernorm8(a, 16, 40)
    wait_flags(a, 32, 0, 48, 52, 56)
    a("v_lshlrev_b32 v5, 5, v1")
    a("buffer_load_dwordx4 v[24:27], v5, s[16:19], 0 offen sc1")
    a("buffer_load_dwordx4 v[28:31], v5, s[16:19], 0 offen offset:16 sc1")
    a("buffer_load_dwordx4 v[32:35], v5, s[16:19], 0 offen offset:2048 sc1")
    a("buffer_load_dwordx4 v[36:39], v5, s[16:19], 0 offen offset:2064 sc1")
    a("s_lshl_b32 s53, s2, 3")
    a("v_add_u32 v40, s53, v2")
    a("v_lshrrev_b32 v41, 5, v40")
    a("v_lshlrev_b32 v41, 15, v41")
    a("v_lshrrev_b32 v42, 2, v1")
    a("v_lshl_add_u32 v41, v42, 11, v41")
    a("v_bfe_u32 v42, v40, 4, 1")
    a("v_lshl_add_u32 v41, v42, 10, v41")
    a("v_and_b32 v42, 1, v1")
    a("v_lshl_add_u32 v41, v42, 9, v41")
    a("v_and_b32 v42, 15, v40")
    a("v_lshl_add_u32 v41, v42, 4, v41")
    a("v_bfe_u32 v42, v1, 1, 1")
    a("v_lshl_add_u32 v41, v42, 3, v41")
    a("s_waitcnt vmcnt(0)")
    modulate8(a, 16, 32, 24, 44)
    pack8(a, 16, 8)
    a("buffer_store_dwordx2 v[8:9], v41, s[28:31], 0 offen")
    a("buffer_store_dwordx2 v[10:11], v41, s[28:31], 0 offen offset:256")
    a.label("L_k12_done")
    a("s_endpgm")
    return name, 112


def gen_tail(a, nsplit=4):
    name = "k5_tail_kernel"
    kernel_header(a, name)
    GB, UB, DB, XB = 8192, 40960, 73728, 0
    TK = XB + 4096
    GUB = XB + 6144
    a("s_cmp_ge_u32 s2, 256")
    a("s_cbranch_scc1 L_k5_done")
    a("s_load_dwordx2 s[4:5], s[0:1], %d" % KA["x"])
    a("s_load_dwordx4 s[60:63], s[0:1], %d" % KA["wr"])
    a("s_load_dwordx4 s[64:67], s[0:1], %d" % KA["wu"])
    a("s_load_dwordx2 s[68:69], s[0:1], %d" % KA["out"])
    a("s_load_dwordx4 s[20:23], s[0:1], %d" % KA["dbg"])
    a("v_and_b32 v1, 63, v0")
    a("v_lshrrev_b32 v2, 6, v0")
    a("s_nop 0")
    a("v_readfirstlane_b32 s52, v2")
    a("s_waitcnt lgkmcnt(0)")
    srd_from(a, 8, 4, 0, 2048 * 1024)
    srd_from(a, 12, 22, WS_MOD, 3072 * 4)
    srd_from(a, 16, 22, WS_PART, nsplit * 2048 * 2048)
    srd_from(a, 24, 60, 0, 1024)
    srd_from(a, 28, 68, 0, 2048 * 1024)
    srd_from(a, 32, 22, WS_X1, 2048 * 1024)
    srd_from(a, 36, 22, WS_H2, 2048 * 1024)
    srd_from(a, 72, 22, WS_R, 2048 * 4)
    srd_from(a, 76, 22, WS_FLAG, 320 * 4)
    srd_from(a, 80, 22, WS_GP, 512 * 3584)
    srd_from(a, 84, 22, WS_UP, 512 * 3584)
    srd_from(a, 88, 66, 0, 1792 * 1024)
    srd_from(a, 92, 22, WS_P6B, 56 * 8 * 512 * 4)
    a("s_cmp_lt_u32 s52, 8")
    a("s_cbranch_scc1 L_k5_rows")
    a("s_cmp_ge_u32 s2, 56")
    a("s_cbranch_scc1 L_k5_done")
    a("s_sub_u32 s59, s52, 8")
    a("v_lshlrev_b32 v112, 4, v1")
    a("s_lshl_b32 s56, s59, 14")
    a("s_lshl_b32 s53, s2, 15")
    a("s_add_u32 s53, s53, s56")
    for mat, base in ((80, GB), (84, UB)):
        for i in range(16):
            a("s_add_u32 s54, s56, %d" % (base + i * 1024))
            a("s_mov_b32 m0, s54")
            a("s_add_u32 s55, s53, %d" % (i * 1024))
            a("buffer_load_dwordx4 v112, s[%d:%d], s55 offen lds" % (mat, mat + 3))
    a("s_mul_i32 s57, s59, %d" % (16 * 1056))
    for i in range(16):
        a("s_add_u32 s54, s57, %d" % (DB + i * 1056))
        a("s_mov_b32 m0, s54")
        a("s_add_u32 s55, s53, %d" % (i * 1024))
        a("buffer_load_dwordx4 v112, s[88:91], s55 offen lds")
    a("s_barrier")
    a("s_waitcnt vmcnt(0)")
    a("s_barrier")
    a("s_branch L_k5_done")
    a.label("L_k5_rows")
    st5(a)
    a("s_lshl_b32 s53, s2, 13")
    a("v_lshlrev_b32 v3, 10, v2")
    a("v_lshlrev_b32 v4, 4, v1")
    a("v_add3_u32 v3, v3, v4, s53")
    a("v_lshlrev_b32 v6, 1, v3")
    a("buffer_load_dwordx4 v[8:11], v3, s[8:11], 0 offen")
    for p in range(nsplit):
        a("s_mov_b32 s53, 0x%x" % (p * 2048 * 2048))
        a("buffer_load_dwordx4 v[%d:%d], v6, s[16:19], s53 offen" % (64 + 8 * p, 67 + 8 * p))
        a("buffer_load_dwordx4 v[%d:%d], v6, s[16:19], s53 offen offset:16" % (68 + 8 * p, 71 + 8 * p))
    a("v_lshlrev_b32 v5, 5, v1")
    for j, base in ((2, 24), (3, 32), (4, 40), (5, 48)):
        a("s_mov_b32 s53, %d" % (j * 2048))
        a("buffer_load_dwordx4 v[%d:%d], v5, s[12:15], s53 offen" % (base, base + 3))
        a("buffer_load_dwordx4 v[%d:%d], v5, s[12:15], s53 offen offset:16" % (base + 4, base + 7))
    a("buffer_load_dwordx4 v[12:15], v4, s[24:27], 0 offen")
    a("s_waitcnt vmcnt(0)")
    a.label("L_k5_p1")
    st5(a)
    for i in range(4):
        unpack_bf16(a, 8 + i, 16 + 2 * i, 17 + 2 * i)
    for p in range(1, nsplit):
        for i in range(8):
            a("v_add_f32 v%d, v%d, v%d" % (64 + i, 64 + i, 64 + 8 * p + i))
    T = 100
    for i in range(0, 8, 2):
        round_bf16_pair(a, 64 + i, 65 + i, T)
        a("v_mul_f32 v%d, v%d, v%d" % (64 + i, 64 + i, 24 + i))
        a("v_mul_f32 v%d, v%d, v%d" % (65 + i, 65 + i, 25 + i))
        round_bf16_pair(a, 64 + i, 65 + i, T)
        a("v_add_f32 v%d, v%d, v%d" % (16 + i, 16 + i, 64 + i))
        a("v_add_f32 v%d, v%d, v%d" % (17 + i, 17 + i, 65 + i))
        round_bf16_pair(a, 16 + i, 17 + i, T)
    for i in range(8):
        a("v_mov_b32 v%d, v%d" % (72 + i, 16 + i))
    pack8(a, 16, 8)
    a("buffer_store_dwordx4 v[8:11], v3, s[32:35], 0 offen sc1")
    layernorm8(a, 16, T)
    modulate8(a, 16, 40, 32, T)
    pack8(a, 16, 84)
    a("buffer_store_dwordx4 v[84:87], v3, s[36:39], 0 offen sc1")
    for i in range(4):
        unpack_bf16(a, 12 + i, 88 + 2 * i, 89 + 2 * i)
    a("v_mul_f32 v%d, v16, v88" % T)
    for i in range(1, 8):
        a("v_fmac_f32 v%d, v%d, v%d" % (T, 16 + i, 88 + i))
    wave_allreduce(a, T, T + 1)
    round_bf16(a, T)
    a("v_lshrrev_b32 v7, 8, v3")
    a("v_cmp_eq_u32 vcc, 0, v1")
    a("s_and_saveexec_b64 s[48:49], vcc")
    a("buffer_store_dword v%d, v7, s[72:75], 0 offen sc1" % T)
    a("s_mov_b64 exec, s[48:49]")
    for i in range(0, 8, 2):
        a("v_mul_f32 v%d, v%d, v%d" % (16 + i, 16 + i, 48 + i))
        a("v_mul_f32 v%d, v%d, v%d" % (17 + i, 17 + i, 49 + i))
        round_bf16_pair(a, 16 + i, 17 + i, T)
        a("v_add_f32 v%d, v%d, v%d" % (16 + i, 16 + i, 72 + i))
        a("v_add_f32 v%d, v%d, v%d" % (17 + i, 17 + i, 73 + i))
    pack8(a, 16, 92)
    a("buffer_store_dwordx4 v[92:95], v3, s[28:31], 0 offen sc1")
    st5(a)
    signal(a, 76, 0, 5)
    st5(a)
    a("s_cmp_ge_u32 s2, 56")
    a("s_cbranch_scc1 L_k5_done")
    a("s_cmp_ge_u32 s52, 4")
    a("s_cbranch_scc1 L_k5_done")
    a.label("L_k5_p2")
    a("v_mov_b32 v5, v1")
    a("v_and_b32 v6, 15, v5")
    a("v_lshrrev_b32 v7, 4, v5")
    wait_flags(a, 76, 0, 256, 52, 28)
    st5(a)
    K, T = 8, 16
    a("v_lshlrev_b32 v%d, 5, v0" % T)
    a("buffer_load_dwordx4 v[%d:%d], v%d, s[72:75], 0 offen sc1" % (K, K + 3, T))
    a("buffer_load_dwordx4 v[%d:%d], v%d, s[72:75], 0 offen offset:16 sc1" % (K + 4, K + 7, T))
    a("v_lshlrev_b32 v%d, 3, v0" % (T + 1))
    a("v_sub_u32 v%d, 2047, v%d" % (T + 1, T + 1))
    a("v_lshrrev_b32 v%d, 6, v0" % (T + 4))
    a("v_lshlrev_b32 v%d, 2, v%d" % (T + 4, T + 4))
    a("s_waitcnt vmcnt(0)")
    st5(a)
    topk8_compute(a, TK, K, T, 40)
    st5(a)
    a("v_and_b32 v16, 7, v6")
    a("v_mov_b32 v17, s40")
    for j in range(1, 8):
        a("v_mov_b32 v18, s%d" % (40 + j))
        a("v_cmp_eq_u32 vcc, %d, v16" % j)
        a("s_nop 1")
        a("v_cndmask_b32 v17, v17, v18, vcc")
    a("v_lshlrev_b32 v17, 10, v17")
    a("v_lshl_add_u32 v17, v7, 4, v17")
    XF = 64
    for st in range(16):
        a("buffer_load_dwordx4 v[%d:%d], v17, s[36:39], 0 offen offset:%d sc1" % (XF + 4 * st, XF + 4 * st + 3, 64 * st))
    a("v_lshrrev_b32 v18, 2, v6")
    a("v_lshl_add_u32 v18, v7, 3, v18")
    a("v_lshlrev_b32 v19, 6, v18")
    a("v_and_b32 v20, 3, v6")
    a("v_lshl_add_u32 v19, v20, 3, v19")
    a("s_and_b32 s54, s52, 1")
    a("s_lshl_b32 s54, s54, 5")
    a("s_lshr_b32 s55, s52, 1")
    a("s_lshl_b32 s55, s55, 15")
    a("s_add_u32 s54, s54, s55")
    a("v_add_u32 v19, s54, v19")
    AF = 32
    for st in range(16):
        f = AF + 4 * (st & 7)
        a("ds_read_b64_tr_b16 v[%d:%d], v19 offset:%d" % (f, f + 1, GB + st * 2048))
        a("ds_read_b64_tr_b16 v[%d:%d], v19 offset:%d" % (f + 2, f + 3, GB + st * 2048 + 256))
        if (st & 3) == 3:
            a("s_waitcnt lgkmcnt(0) vmcnt(%d)" % (15 - st))
            for s2 in range(st - 3, st + 1):
                f2 = AF + 4 * (s2 & 7)
                c = "0" if s2 == 0 else "v[28:31]"
                a("v_mfma_f32_16x16x32_bf16 v[28:31], v[%d:%d], v[%d:%d], %s" % (
                    f2, f2 + 3, XF + 4 * s2, XF + 4 * s2 + 3, c))
    a("s_nop 15")
    st5(a)
    a("v_lshlrev_b32 v20, 7, v6")
    a("v_lshl_add_u32 v20, v7, 4, v20")
    a("s_and_b32 s54, s52, 1")
    a("s_lshl_b32 s54, s54, 6")
    a("s_lshr_b32 s55, s52, 1")
    a("s_lshl_b32 s55, s55, 11")
    a("s_add_u32 s54, s54, s55")
    a("v_add_u32 v20, s54, v20")
    a("ds_write_b128 v20, v[28:31] offset:%d" % XB)
    a("s_waitcnt lgkmcnt(0)")
    a("s_barrier")
    a("v_lshlrev_b32 v20, 2, v0")
    a("ds_read_b32 v21, v20 offset:%d" % XB)
    a("ds_read_b32 v22, v20 offset:%d" % (XB + 2048))
    a("s_waitcnt lgkmcnt(0)")
    round_bf16_pair(a, 21, 22, 24)
    silu_reg(a, 21, 24)
    round_bf16(a, 21)
    a("v_mul_f32 v21, v21, v22")
    a("v_cvt_pk_bf16_f32 v21, v21, v21")
    a("v_lshlrev_b32 v20, 1, v0")
    a("ds_write_b16 v20, v21 offset:%d" % GUB)
    a("s_waitcnt lgkmcnt(0)")
    a("s_barrier")
    a("v_lshlrev_b32 v20, 6, v16")
    a("v_lshl_add_u32 v20, v7, 4, v20")
    a("ds_read_b128 v[24:27], v20 offset:%d" % GUB)
    a("s_mov_b32 s53, 1056")
    a("v_mul_lo_u32 v21, v18, s53")
    a("v_and_b32 v22, 3, v6")
    a("v_lshl_add_u32 v21, v22, 3, v21")
    a("s_lshl_b32 s54, s52, 8")
    a("s_add_u32 s54, s54, %d" % DB)
    a("v_add_u32 v21, s54, v21")
    for tl in range(8):
        f = AF + 4 * tl
        a("ds_read_b64_tr_b16 v[%d:%d], v21 offset:%d" % (f, f + 1, tl * 32))
        a("ds_read_b64_tr_b16 v[%d:%d], v21 offset:%d" % (f + 2, f + 3, tl * 32 + 4 * 1056))
        if tl == 3:
            a("s_waitcnt lgkmcnt(0)")
    a("s_waitcnt lgkmcnt(0)")
    for tl in range(8):
        f = AF + 4 * tl
        d = XF + 4 * tl
        a("v_mfma_f32_16x16x32_bf16 v[%d:%d], v[%d:%d], v[24:27], 0" % (d, d + 3, f, f + 3))
    a("v_lshlrev_b32 v20, 11, v6")
    a("v_lshl_add_u32 v20, v7, 4, v20")
    a("s_lshl_b32 s54, s2, 14")
    a("s_lshl_b32 s55, s52, 9")
    a("s_add_u32 s54, s54, s55")
    a("v_add_u32 v20, s54, v20")
    a("v_cmp_gt_u32 vcc, 8, v6")
    a("s_nop 7")
    a("s_and_saveexec_b64 s[48:49], vcc")
    for tl in range(8):
        d = XF + 4 * tl
        a("buffer_store_dwordx4 v[%d:%d], v20, s[92:95], 0 offen offset:%d sc1" % (d, d + 3, tl * 64))
    a("s_mov_b64 exec, s[48:49]")
    st5(a)
    signal(a, 76, 1024, 5)
    st5(a)
    a("s_cmp_ge_u32 s2, 16")
    a("s_cbranch_scc1 L_k5_done")
    a("s_lshr_b32 s53, s2, 1")
    a("s_mov_b32 s54, s40")
    for j in range(1, 8):
        a("s_cmp_eq_u32 s53, %d" % j)
        a("s_cselect_b32 s54, s%d, s54" % (40 + j))
    a("s_lshl_b32 s53, s2, 8")
    a("v_add_u32 v1, s53, v0")
    a("v_lshlrev_b32 v2, 2, v1")
    a("v_and_b32 v3, 511, v1")
    a("s_lshl_b32 s55, s54, 10")
    a("v_lshl_add_u32 v4, v3, 1, s55")
    a("s_lshl_b32 s55, s54, 2")
    a("v_mov_b32 v5, s55")
    a("v_lshlrev_b32 v6, 2, v3")
    a("v_and_b32 v7, 0xfffffffc, v4")
    a("buffer_load_dword v67, v7, s[36:39], 0 offen sc1")
    a("buffer_load_dword v68, v7, s[32:35], 0 offen sc1")
    a("buffer_load_dword v69, v5, s[72:75], 0 offen sc1")
    a("s_mov_b32 s53, %d" % (5 * 2048))
    a("buffer_load_dword v70, v6, s[12:15], s53 offen")
    wait_flags(a, 76, 1024, 56, 52, 72)
    st5(a)
    for b in range(56):
        a("s_mov_b32 s53, %d" % (b * 16384))
        a("buffer_load_dword v%d, v2, s[92:95], s53 offen sc1" % (8 + b))
    a("s_waitcnt vmcnt(56)")
    a("v_and_b32 v7, 1, v3")
    a("v_lshlrev_b32 v7, 4, v7")
    a("v_lshrrev_b32 v67, v7, v67")
    a("v_lshrrev_b32 v68, v7, v68")
    a("v_lshlrev_b32 v67, 16, v67")
    a("v_lshlrev_b32 v68, 16, v68")
    a("v_mul_f32 v71, %s, v69" % NLOG2E)
    a("v_exp_f32 v71, v71")
    a("s_nop 0")
    a("v_add_f32 v71, 1.0, v71")
    a("v_rcp_f32 v71, v71")
    a("s_nop 0")
    round_bf16(a, 71)
    a("s_waitcnt vmcnt(0)")
    regs = list(range(8, 64))
    while len(regs) > 1:
        nxt = []
        for i in range(0, len(regs) - 1, 2):
            a("v_add_f32 v%d, v%d, v%d" % (regs[i], regs[i], regs[i + 1]))
            nxt.append(regs[i])
        if len(regs) & 1:
            nxt.append(regs[-1])
        regs = nxt
    y = regs[0]
    round_bf16(a, y)
    a("v_mul_f32 v%d, v%d, v71" % (y, y))
    round_bf16(a, y)
    a("v_add_f32 v%d, v%d, v67" % (y, y))
    round_bf16(a, y)
    a("v_mul_f32 v%d, v%d, v70" % (y, y))
    round_bf16(a, y)
    a("v_add_f32 v%d, v%d, v68" % (y, y))
    a("v_cvt_pk_bf16_f32 v%d, v%d, v%d" % (y, y, y))
    a("buffer_store_short v%d, v4, s[28:31], 0 offen sc1" % y)
    a("s_waitcnt vmcnt(0)")
    st5(a)
    a.label("L_k5_done")
    a("s_endpgm")
    return name, 128
```

```python
from asmlib import *
import os
import oproj
MERGE4 = os.environ.get("MERGE4", "1") == "1"
MERGE2 = os.environ.get("MERGE2", "1") == "1"
import small
DIAG = os.environ.get("DIAG", "0") == "1"
WS_DIAG = 0x3000000
PRIO = int(os.environ.get("PRIO", "3"))
PFD = int(os.environ.get("PFD", "3"))
_stamp = [0]

OACC = 192
QF = 160
SB = [96, 128]
PB = 80
POOL = 48
NPOOL = 8
LOOK = 6
LSUM = 32
ONES = 12
KAD = 16
VAD = 20
DK0, DK1, DV0, DV1 = 28, 29, 30, 31
MP, M0, M1 = 1, 2, 3
T0 = 4

S_L2E = 32
S_WAVE = 33
S_C = 34
S_KOFF, S_VOFF = 35, 36
S_M0K = [37, 38, 39]
S_M0V = [40, 41, 42]
S_CNT = 43

NSLOT = 3
KSLOT = [0, 16384, 32768]
VBASE = 49152
VSLOT = [0, 16384, 32768]
WQ_BASE = 98304


def stamp(a):
    if not DIAG:
        return
    i = _stamp[0]
    _stamp[0] += 1
    a("s_memtime s[%d:%d]" % (60 + 2 * i, 61 + 2 * i))


def rstamp(a, reg):
    if DIAG:
        a("s_memrealtime s[%d:%d]" % (reg, reg + 1))


def stamp_flush(a):
    if not DIAG:
        return
    rstamp(a, 92)
    a("s_waitcnt lgkmcnt(0) vmcnt(0)")
    a("s_add_u32 s56, s30, 0x%x" % WS_DIAG)
    a("s_addc_u32 s57, s31, 0")
    a("s_mov_b32 s58, 0x100000")
    a("s_mov_b32 s59, 0x00020000")
    a("s_lshl_b32 s54, s2, 3")
    a("s_add_u32 s54, s54, s%d" % S_WAVE)
    a("s_lshl_b32 s54, s54, 6")
    a("v_mov_b32 v4, s54")
    for i in range(_stamp[0]):
        a("v_mov_b32 v5, s%d" % (60 + 2 * i))
        a("buffer_store_dword v5, v4, s[56:59], 0 offen offset:%d" % (4 * i))
    for i, r in enumerate((90, 92)):
        a("v_mov_b32 v5, s%d" % r)
        a("buffer_store_dword v5, v4, s[56:59], 0 offen offset:%d" % (48 + 4 * i))


def mfma(d, fa, fb, c):
    cs = "0" if c is None else "v[%d:%d]" % (c, c + 3)
    return "v_mfma_f32_16x16x32_bf16 v[%d:%d], v[%d:%d], v[%d:%d], %s" % (d, d + 3, fa, fa + 3, fb, fb + 3, cs)


class Item:
    def __init__(self, reads, mf, guard=False):
        self.reads = reads
        self.mf = mf
        self.guard = guard
        self.before = []
        self.after = [[] for _ in mf]


class Stream:
    def __init__(self, a, pool, npool, look):
        self.a, self.pool, self.npool, self.look = a, pool, npool, look
        self.since_cvt = 99

    def emit(self, s):
        if s.endswith(":"):
            self.a.label(s[:-1])
            return
        self.a(s)
        if s.startswith("v_cvt_pk") and ", 0, " not in s:
            self.since_cvt = 0
        else:
            self.since_cvt += 1

    def run(self, items, preissued, nxt=None):
        rd = [it for it in items if it.reads]
        nrd = len(rd)
        assert nrd % self.npool == 0 or nxt is None
        seq = rd + ([it for it in nxt if it.reads][:self.look] if nxt else [])
        issued = []

        def fr_of(k):
            return self.pool + 4 * (k % self.npool)

        def issue(k):
            for r in seq[k].reads(fr_of(k)):
                self.emit(r)
                issued.append(k)
        if preissued:
            for k in range(min(self.look, nrd)):
                issued += [k] * len(seq[k].reads(fr_of(k)))
        else:
            for k in range(min(self.look, len(seq))):
                issue(k)
        k = 0
        for it in items:
            for s in it.before:
                self.emit(s)
            fr = None
            if it.reads:
                fr = fr_of(k)
                later = sum(1 for j in issued if j > k)
                self.emit("s_waitcnt lgkmcnt(%d)" % later)
            for m, (f, aft) in enumerate(zip(it.mf, it.after)):
                if it.guard and self.since_cvt < 2:
                    self.emit("s_nop %d" % (1 - self.since_cvt))
                self.emit(f(fr))
                if m == len(it.mf) - 1 and it.reads:
                    if k + self.look < len(seq):
                        issue(k + self.look)
                    k += 1
                for s in aft:
                    self.emit(s)


def qk_items(kslot, S):
    items = []
    for kt in range(4):
        for s in range(4):
            off = KSLOT[kslot] + kt * 4096
            def reads(fr, s=s, off=off):
                return ["ds_read_b128 v[%d:%d], v%d offset:%d" % (fr, fr + 3, KAD + s, off)]
            mfs = []
            for qt in range(2):
                d = S + 8 * kt + 4 * qt
                mfs.append(lambda fr, d=d, s=s, qt=qt: mfma(d, fr, QF + 16 * qt + 4 * s, None if s == 0 else d))
            items.append(Item(reads, mfs))
    return items


def pv_items(vslot):
    items = []
    for ks in range(2):
        for dt in range(8):
            off = VSLOT[vslot] + ks * 8192
            def reads(fr, dt=dt, off=off):
                return ["ds_read_b64_tr_b16 v[%d:%d], v%d offset:%d" % (fr, fr + 1, VAD + dt, off),
                        "ds_read_b64_tr_b16 v[%d:%d], v%d offset:%d" % (fr + 2, fr + 3, VAD + dt, off + 4096)]
            mfs = []
            for qt in range(2):
                d = OACC + 8 * dt + 4 * qt
                mfs.append(lambda fr, d=d, ks=ks, qt=qt: mfma(d, fr, PB + 8 * ks + 4 * qt, d))
            items.append(Item(reads, mfs, True))
        mfs = []
        for qt in range(2):
            d = LSUM + 4 * qt
            mfs.append(lambda fr, d=d, ks=ks, qt=qt: mfma(d, ONES, PB + 8 * ks + 4 * qt, d))
        items.append(Item(None, mfs, True))
    return items


def exp_ops(S):
    ops = []
    for kt in range(4):
        for qt in range(2):
            e = S + 8 * kt + 4 * qt
            m = M0 if qt == 0 else M1
            for j in range(4):
                ops.append("v_cvt_pk_bf16_f32 v%d, 0, v%d" % (e + j, e + j))
            for j in range(4):
                ops.append("v_mul_f32 v%d, s%d, v%d" % (e + j, S_C, e + j))
            for j in range(4):
                ops.append("v_cvt_pk_bf16_f32 v%d, 0, v%d" % (e + j, e + j))
            for j in range(4):
                ops.append("v_fma_f32 v%d, v%d, s%d, -v%d" % (e + j, e + j, S_L2E, m))
            for j in range(4):
                ops.append("v_exp_f32 v%d, v%d" % (e + j, e + j))
            p = PB + 8 * (kt >> 1) + 4 * qt + 2 * (kt & 1)
            ops.append("v_cvt_pk_bf16_f32 v%d, v%d, v%d" % (p, e, e + 1))
            ops.append("v_cvt_pk_bf16_f32 v%d, v%d, v%d" % (p + 1, e + 2, e + 3))
    return ops


def max_ops(S):
    ta, tb, t2 = T0, T0 + 1, T0 + 2
    chains = []
    for qt, t in ((0, ta), (1, tb)):
        v = [S + 8 * kt + 4 * qt + r for kt in range(4) for r in range(4)]
        c = ["v_max3_f32 v%d, v%d, v%d, v%d" % (t, v[0], v[1], v[2])]
        for i in range(6):
            c.append("v_max3_f32 v%d, v%d, v%d, v%d" % (t, t, v[3 + 2 * i], v[4 + 2 * i]))
        c.append("v_max_f32 v%d, v%d, v%d" % (t, t, v[15]))
        chains.append(c)
    ops = []
    for x, y in zip(*chains):
        ops += [x, y]
    ops.append("s_nop 1")
    ops.append("v_permlane32_swap_b32 v%d, v%d" % (ta, tb))
    ops.append("v_max_f32 v%d, v%d, v%d" % (ta, ta, tb))
    ops.append("v_mov_b32 v%d, v%d" % (t2, ta))
    ops.append("v_add_f32 v%d, 0x41000000, v%d" % (tb, MP))
    ops.append("s_nop 0")
    ops.append("v_permlane16_swap_b32 v%d, v%d" % (ta, t2))
    ops.append("v_max_f32 v%d, v%d, v%d" % (ta, ta, t2))
    ops.append("v_cvt_pk_bf16_f32 v%d, 0, v%d" % (ta, ta))
    ops.append("v_mul_f32 v%d, s%d, v%d" % (ta, S_C, ta))
    ops.append("v_cvt_pk_bf16_f32 v%d, 0, v%d" % (ta, ta))
    ops.append("v_mul_f32 v%d, s%d, v%d" % (ta, S_L2E, ta))
    return ops


_lbl = [0]


def rescale_check():
    _lbl[0] += 1
    lb = "L_k3_skip%d" % _lbl[0]
    f0, f1 = T0 + 1, T0 + 2
    o = []
    o.append("v_cmp_gt_f32 vcc, v%d, v%d" % (T0, T0 + 1))
    o.append("s_nop 1")
    o.append("s_cbranch_vccz %s" % lb)
    o.append("s_nop 15")
    o.append("v_max_f32 v%d, v%d, v%d" % (T0, T0, MP))
    o.append("v_sub_f32 v%d, v%d, v%d" % (f0, MP, T0))
    o.append("v_exp_f32 v%d, v%d" % (f0, f0))
    o.append("v_mov_b32 v%d, v%d" % (MP, T0))
    o.append("v_mov_b32 v%d, v%d" % (M0, T0))
    o.append("v_mov_b32 v%d, v%d" % (M1, T0))
    o.append("v_mov_b32 v%d, v%d" % (f1, f0))
    o.append("s_nop 1")
    o.append("v_permlane32_swap_b32 v%d, v%d" % (M0, M1))
    o.append("v_permlane32_swap_b32 v%d, v%d" % (f0, f1))
    o.append("s_nop 1")
    o.append("v_mul_f32 v%d, v%d, v%d" % (LSUM, LSUM, f0))
    o.append("v_mul_f32 v%d, v%d, v%d" % (LSUM + 4, LSUM + 4, f1))
    for dt in range(8):
        for qt in range(2):
            for r in range(4):
                x = OACC + 8 * dt + 4 * qt + r
                o.append("v_mul_f32 v%d, v%d, v%d" % (x, x, f0 if qt == 0 else f1))
    o.append("s_nop 1")
    o.append(lb + ":")
    return o


def dma_k(slot):
    return ["s_mov_b32 m0, s%d" % S_M0K[slot],
            "s_nop 0",
            "buffer_load_dwordx4 v%d, s[8:11], s%d offen lds" % (DK0, S_KOFF),
            "buffer_load_dwordx4 v%d, s[8:11], s%d offen offset:1024 lds" % (DK1, S_KOFF),
            "s_add_u32 s%d, s%d, 16384" % (S_KOFF, S_KOFF)]


def dma_v(slot):
    return ["s_mov_b32 m0, s%d" % S_M0V[slot],
            "s_nop 0",
            "buffer_load_dwordx4 v%d, s[12:15], s%d offen lds" % (DV0, S_VOFF),
            "buffer_load_dwordx4 v%d, s[12:15], s%d offen offset:1024 lds" % (DV1, S_VOFF),
            "s_add_u32 s%d, s%d, 16384" % (S_VOFF, S_VOFF)]


def slots_of(items):
    return [(it, m) for it in items for m in range(len(it.mf))]


def spread(slots, lo, hi, ops):
    n = hi - lo
    k = 0
    for g in range(n):
        k2 = (len(ops) * (g + 1) + n - 1) // n
        it, m = slots[lo + g]
        it.after[m] = it.after[m] + ops[k:k2]
        k = k2
    assert k == len(ops)


def iter_items(t, do_qk=True, do_dma_k=True, do_dma_v=True, safe=True):
    p = t & 1
    E = exp_ops(SB[p])
    if do_qk:
        items = qk_items((t + 1) % NSLOT, SB[1 - p]) + pv_items(t % NSLOT)
        sl = slots_of(items)
        assert len(sl) == 68
        items[0].before = ["s_waitcnt vmcnt(0)", "s_barrier"]
        spread(sl, 0, 49, E)
        if safe:
            spread(sl, 52, 68, max_ops(SB[1 - p]))
            it, m = sl[67]
            it.after[m] = it.after[m] + rescale_check()
        if PRIO == 3:
            for pr, sidx in ((3, 0), (2, 17), (1, 34), (0, 51)):
                it, m = sl[sidx]
                it.after[m] = ["s_setprio %d" % pr] + it.after[m]
        if PRIO == 2:
            for pr, sidx in ((1, 0), (0, 34)):
                it, m = sl[sidx]
                it.after[m] = ["s_setprio %d" % pr] + it.after[m]
        if do_dma_k:
            it, m = sl[2]
            it.after[m] = it.after[m] + dma_k(t % NSLOT)
        if do_dma_v:
            it, m = sl[6]
            it.after[m] = it.after[m] + dma_v((t + 2) % NSLOT)
    else:
        items = pv_items(t % NSLOT)
        sl = slots_of(items)
        items[0].before = E[:88]
        spread(sl, 0, 17, E[88:])
    return items


class VmTrack:
    def __init__(self):
        self.ops = []

    def add(self, tag, n=1):
        self.ops += [tag] * n

    def wait_for(self, tags):
        last = max(i for i, t in enumerate(self.ops) if t in tags)
        return len(self.ops) - 1 - last


def lds_tile_write(a, wreg, scale=None):
    for dt in range(8):
        a("v_xor_b32 v%d, %d, v%d" % (T0 + 4, dt << 5, wreg))
        for qt in range(2):
            x = OACC + 8 * dt + 4 * qt
            if scale is not None:
                for r in range(4):
                    a("v_mul_f32 v%d, v%d, v%d" % (x + r, x + r, scale[qt]))
            t = POOL + 4 * dt + 2 * qt
            a("v_cvt_pk_bf16_f32 v%d, v%d, v%d" % (t, x, x + 1))
            a("v_cvt_pk_bf16_f32 v%d, v%d, v%d" % (t + 1, x + 2, x + 3))
            a("ds_write_b64 v%d, v[%d:%d] offset:%d" % (T0 + 4, t, t + 1, qt * 4096))


def gen_attn(a):
    name = "k3_attn_kernel"
    kernel_header(a, name)
    a("s_cmp_ge_u32 s2, 256")
    a("s_cbranch_scc1 L_k3_done")
    stamp(a)
    rstamp(a, 90)
    a("s_load_dwordx4 s[4:7], s[0:1], %d" % KA["k"])
    a("s_load_dwordx2 s[28:29], s[0:1], %d" % KA["wq"])
    a("s_load_dwordx2 s[30:31], s[0:1], %d" % KA["ws"])
    a("s_load_dwordx2 s[80:81], s[0:1], %d" % KA["wo"])
    a("s_load_dwordx4 s[84:87], s[0:1], %d" % KA["wg"])
    a("s_load_dwordx2 s[88:89], s[0:1], %d" % KA["wd"])
    a("s_load_dwordx2 s[82:83], s[0:1], %d" % KA["x"])
    a("s_and_b32 s52, s2, 31")
    a("s_lshr_b32 s53, s2, 5")
    a("v_lshrrev_b32 v4, 6, v0")
    a("v_and_b32 v5, 63, v0")
    a("v_readfirstlane_b32 s%d, v4" % S_WAVE)
    a("v_and_b32 v8, 15, v5")
    a("v_lshrrev_b32 v9, 4, v5")
    a("s_waitcnt lgkmcnt(0)")
    a("s_lshl_b32 s44, s52, 19")
    a("s_add_u32 s8, s4, s44")
    a("s_addc_u32 s9, s5, 0")
    a("s_mov_b32 s10, 524288")
    a("s_mov_b32 s11, 0x00020000")
    a("s_add_u32 s12, s6, s44")
    a("s_addc_u32 s13, s7, 0")
    a("s_mov_b32 s14, 524288")
    a("s_mov_b32 s15, 0x00020000")
    a("s_lshl_b32 s44, s52, 8")
    a("s_add_u32 s16, s28, s44")
    a("s_addc_u32 s17, s29, 0")
    a("s_sub_u32 s18, %d, s44" % (512 * 8192))
    a("s_mov_b32 s19, 0x00020000")
    a("s_lshl_b32 s45, s53, 18")
    a("s_add_u32 s45, s45, 0x%x" % WS_H1)
    a("s_add_u32 s20, s30, s45")
    a("s_addc_u32 s21, s31, 0")
    a("s_mov_b32 s22, 262144")
    a("s_mov_b32 s23, 0x00020000")
    a("s_lshl_b32 s45, s53, 21")
    a("s_add_u32 s45, s45, s44")
    a("s_add_u32 s45, s45, 0x%x" % WS_O)
    a("s_add_u32 s24, s30, s45")
    a("s_addc_u32 s25, s31, 0")
    a("s_sub_u32 s26, %d, s44" % (256 * 8192))
    a("s_mov_b32 s27, 0x00020000")
    a("s_mov_b32 s%d, 0x3db504f3" % S_C)
    a("s_mov_b32 s%d, 0x3fb8aa3b" % S_L2E)
    a("s_lshl_b32 s46, s%d, 11" % S_WAVE)
    for sl in range(NSLOT):
        a("s_add_u32 s%d, s46, %d" % (S_M0K[sl], KSLOT[sl]))
        a("s_add_u32 s%d, s46, %d" % (S_M0V[sl], VBASE + VSLOT[sl]))
    a("s_mov_b32 s%d, 0" % S_KOFF)
    a("s_mov_b32 s%d, 0" % S_VOFF)
    a("v_xor_b32 v10, v9, v8")
    a("v_lshlrev_b32 v10, 4, v10")
    a("v_lshl_add_u32 v%d, v8, 8, v10" % KAD)
    for s in range(1, 4):
        a("v_xor_b32 v%d, %d, v%d" % (KAD + s, s << 6, KAD))
    a("v_lshrrev_b32 v10, 2, v8")
    a("v_lshl_add_u32 v11, v9, 2, v10")
    a("v_and_b32 v12, 7, v11")
    a("v_lshlrev_b32 v11, 8, v11")
    a("v_lshl_add_u32 v11, v12, 5, v11")
    a("v_and_b32 v12, 3, v8")
    a("v_lshl_add_u32 v%d, v12, 3, v11" % VAD)
    for dt in range(1, 8):
        a("v_xor_b32 v%d, %d, v%d" % (VAD + dt, dt << 5, VAD))
    a("s_lshl_b32 s47, s%d, 3" % S_WAVE)
    a("v_add_u32 v10, s47, v9")
    a("v_and_b32 v11, 15, v10")
    a("v_xor_b32 v11, v11, v8")
    a("v_lshlrev_b32 v11, 4, v11")
    a("v_lshl_add_u32 v%d, v10, 8, v11" % DK0)
    a("v_add_u32 v12, 4, v10")
    a("v_and_b32 v11, 15, v12")
    a("v_xor_b32 v11, v11, v8")
    a("v_lshlrev_b32 v11, 4, v11")
    a("v_lshl_add_u32 v%d, v10, 8, v11" % DK1)
    a("v_lshlrev_b32 v11, 1, v9")
    a("v_xor_b32 v11, v11, v8")
    a("v_lshlrev_b32 v11, 4, v11")
    a("v_xor_b32 v12, 0x80, v11")
    a("v_lshl_add_u32 v%d, v10, 8, v11" % DV0)
    a("v_lshl_add_u32 v%d, v10, 8, v12" % DV1)
    a("v_lshl_add_u32 v13, v10, 13, v11")
    a("v_lshl_add_u32 v14, v10, 13, v12")
    a("v_add_u32 v14, %d, v14" % (32768 - 1024))
    a("s_lshl_b32 s50, s%d, 15" % S_WAVE)
    a("v_lshlrev_b32 v15, 4, v5")
    a("v_add_u32 v15, s50, v15")
    a("v_lshrrev_b32 v10, 1, v9")
    a("v_xor_b32 v10, v10, v8")
    a("v_lshlrev_b32 v10, 4, v10")
    a("v_lshl_add_u32 v10, v8, 8, v10")
    a("v_and_b32 v11, 1, v9")
    a("v_lshl_add_u32 v10, v11, 3, v10")
    a("s_lshl_b32 s55, s%d, 13" % S_WAVE)
    a("s_add_u32 s55, s55, %d" % WQ_BASE)
    a("v_add_u32 v6, s55, v10")
    a("s_lshl_b32 s47, s%d, 5" % S_WAVE)
    a("v_add_u32 v0, s47, v9")
    a("v_lshlrev_b32 v0, 13, v0")
    a("v_lshl_add_u32 v0, v8, 4, v0")
    a("v_mov_b32 v7, v9")
    a("v_mov_b32 v5, v8")
    WA = 40
    H1F = 32
    WA = 4
    vm = VmTrack()

    def wq_dma(c):
        vm.add("W%d" % c, 2)
        return ["s_add_u32 s48, s46, %d" % (WQ_BASE + (c & 3) * 16384),
                "s_mov_b32 m0, s48",
                "s_mov_b32 s49, %d" % (c * 64 * 8192),
                "buffer_load_dwordx4 v13, s[16:19], s49 offen lds",
                "buffer_load_dwordx4 v14, s[16:19], s49 offen offset:1024 lds"]

    def h1_loads(c):
        vm.add("H%d" % c, 4)
        o = ["s_mov_b32 s51, %d" % (c * 4096)]
        for i in range(4):
            f = H1F + 16 * c + 4 * i
            o.append("buffer_load_dwordx4 v[%d:%d], v15, s[20:23], s51 offen offset:%d" % (f, f + 3, 1024 * i))
        return o

    def repack_loads():
        o = []
        o.append("s_lshl_b32 s47, s2, 3")
        o.append("s_add_u32 s47, s47, s%d" % S_WAVE)
        o.append("s_lshl_b32 s47, s47, 6")
        o.append("v_lshl_add_u32 v104, v7, 4, v5")
        o.append("v_add_u32 v104, s47, v104")
        o.append("s_mov_b32 s47, %d" % (149797 * 128))
        o.append("v_mul_hi_u32 v106, v104, s47")
        o.append("s_mov_b32 s47, 224")
        o.append("v_mul_lo_u32 v107, v106, s47")
        o.append("v_sub_u32 v107, v104, v107")
        o.append("v_lshrrev_b32 v105, 2, v107")
        o.append("v_and_b32 v107, 3, v107")
        o.append("v_lshlrev_b32 v105, 15, v105")
        o.append("v_lshl_add_u32 v105, v106, 6, v105")
        o.append("v_lshl_add_u32 v105, v107, 4, v105")
        o.append("v_mov_b32 v107, 0x7fffffff")
        o.append("v_cmp_gt_u32 vcc, 512, v106")
        o.append("v_lshlrev_b32 v104, 4, v104")
        o.append("v_cndmask_b32 v105, v107, v105, vcc")
        for i, base in enumerate((84, 86)):
            o.append("s_mov_b32 s56, s%d" % base)
            o.append("s_mov_b32 s57, s%d" % (base + 1))
            o.append("s_mov_b32 s58, %d" % (512 * 3584))
            o.append("s_mov_b32 s59, 0x00020000")
            o.append("buffer_load_dwordx4 v[%d:%d], v104, s[56:59], 0 offen" % (96 + 4 * i, 99 + 4 * i))
        vm.add("RP", 2)
        return o

    for dt in range(8):
        a("v_add_u32 v%d, %d, v%d" % (VAD + dt, WQ_BASE, VAD + dt))
    if MERGE2:
        B = 160
        a("s_mov_b32 s56, s82")
        a("s_mov_b32 s57, s83")
        a("s_mov_b32 s58, %d" % (2048 * 1024))
        a("s_mov_b32 s59, 0x00020000")
        a("s_lshl_b32 s47, s2, 3")
        a("s_add_u32 s47, s47, s%d" % S_WAVE)
        a("s_lshl_b32 s48, s47, 10")
        a("v_lshl_add_u32 v%d, v7, 4, v5" % (B + 1))
        a("v_lshlrev_b32 v%d, 4, v%d" % (B + 3, B + 1))
        a("buffer_load_dwordx4 v[%d:%d], v%d, s[56:59], s48 offen" % (B + 8, B + 11, B + 3))
        a("s_add_u32 s56, s30, 0x%x" % WS_MOD)
        a("s_addc_u32 s57, s31, 0")
        a("s_mov_b32 s58, %d" % (3072 * 4))
        a("v_lshlrev_b32 v%d, 5, v%d" % (B + 5, B + 1))
        a("buffer_load_dwordx4 v[%d:%d], v%d, s[56:59], 0 offen" % (B + 24, B + 27, B + 5))
        a("buffer_load_dwordx4 v[%d:%d], v%d, s[56:59], 0 offen offset:16" % (B + 28, B + 31, B + 5))
        a("buffer_load_dwordx4 v[%d:%d], v%d, s[56:59], 0 offen offset:2048" % (B + 32, B + 35, B + 5))
        a("buffer_load_dwordx4 v[%d:%d], v%d, s[56:59], 0 offen offset:2064" % (B + 36, B + 39, B + 5))
        for c in range(3):
            for x in wq_dma(c):
                a(x)
        a("s_waitcnt vmcnt(10)")
        for i in range(4):
            unpack_bf16(a, B + 8 + i, B + 16 + 2 * i, B + 17 + 2 * i)
        small.layernorm8(a, B + 16, B + 40)
        a("s_waitcnt vmcnt(6)")
        small.modulate8(a, B + 16, B + 32, B + 24, B + 40)
        small.pack8(a, B + 16, B + 8)
        a("s_lshr_b32 s48, s47, 5")
        a("s_lshl_b32 s48, s48, 15")
        a("s_bfe_u32 s49, s47, 0x10004")
        a("s_lshl_b32 s49, s49, 10")
        a("s_add_u32 s48, s48, s49")
        a("s_and_b32 s49, s47, 15")
        a("s_lshl_b32 s49, s49, 4")
        a("s_add_u32 s48, s48, s49")
        a("v_lshrrev_b32 v%d, 2, v%d" % (B + 41, B + 1))
        a("v_lshlrev_b32 v%d, 11, v%d" % (B + 41, B + 41))
        a("v_and_b32 v%d, 1, v%d" % (B + 42, B + 1))
        a("v_lshl_add_u32 v%d, v%d, 9, v%d" % (B + 41, B + 42, B + 41))
        a("v_bfe_u32 v%d, v%d, 1, 1" % (B + 42, B + 1))
        a("v_lshl_add_u32 v%d, v%d, 3, v%d" % (B + 41, B + 42, B + 41))
        a("s_add_u32 s56, s30, 0x%x" % WS_H1)
        a("s_addc_u32 s57, s31, 0")
        a("s_mov_b32 s58, %d" % (2048 * 1024))
        a("buffer_store_dwordx2 v[%d:%d], v%d, s[56:59], s48 offen sc1" % (B + 8, B + 9, B + 41))
        a("buffer_store_dwordx2 v[%d:%d], v%d, s[56:59], s48 offen offset:256 sc1" % (B + 10, B + 11, B + 41))
        a("s_add_u32 s56, s30, 0x%x" % (WS_FLAG + FLAG_H_OFF))
        a("s_addc_u32 s57, s31, 0")
        a("s_mov_b32 s58, 1024")
        a("s_waitcnt vmcnt(0)")
        a("s_barrier")
        a("s_cmp_lg_u32 s%d, 0" % S_WAVE)
        a("s_cbranch_scc1 L_k3_hdone")
        a("v_mov_b32 v%d, 1" % (B + 2))
        a("s_lshl_b32 s47, s2, 2")
        a("v_mov_b32 v%d, s47" % (B + 3))
        a("v_cmp_eq_u32 vcc, 0, v%d" % (B + 1))
        a("s_and_saveexec_b64 s[48:49], vcc")
        a("buffer_store_dword v%d, v%d, s[56:59], 0 offen sc1" % (B + 2, B + 3))
        a("s_mov_b64 exec, s[48:49]")
        a("s_lshl_b32 s47, s53, 7")
        a("v_and_b32 v%d, 31, v%d" % (B + 3, B + 1))
        a("v_lshl_add_u32 v%d, v%d, 2, s47" % (B + 3, B + 3))
        a.label("L_k3_hpoll")
        a("buffer_load_dword v%d, v%d, s[56:59], 0 offen sc1" % (B + 2, B + 3))
        a("s_waitcnt vmcnt(0)")
        a("v_cmp_ne_u32 vcc, 1, v%d" % (B + 2))
        a("s_nop 1")
        a("s_cbranch_vccz L_k3_hgot")
        a("s_sleep 1")
        a("s_branch L_k3_hpoll")
        a.label("L_k3_hgot")
        a("buffer_inv sc1")
        a("s_waitcnt vmcnt(0)")
        a.label("L_k3_hdone")
        a("s_barrier")
        vm.ops = []
        vm.add("W0"); vm.add("W1"); vm.add("W2")
        for c in range(3):
            for x in h1_loads(c):
                a(x)
    else:
        for c in range(3):
            for x in wq_dma(c) + h1_loads(c):
                a(x)
    stamp(a)
    a("s_waitcnt vmcnt(%d)" % vm.wait_for(["W0", "H0"]))
    a("s_barrier")
    stamp(a)
    stamp(a)
    stamp(a)
    allit = []
    for c in range(8):
        cb = (c & 3) * 16384
        items = []
        for s2 in range(2):
            for dt in range(8):
                s = 2 * c + s2
                def reads(fr, dt=dt, s2=s2, cb=cb):
                    return ["ds_read_b64_tr_b16 v[%d:%d], v%d offset:%d" % (fr, fr + 1, VAD + dt, cb + s2 * 8192),
                            "ds_read_b64_tr_b16 v[%d:%d], v%d offset:%d" % (fr + 2, fr + 3, VAD + dt, cb + s2 * 8192 + 4096)]
                mfs = []
                for qt in range(2):
                    d = OACC + 8 * dt + 4 * qt
                    mfs.append(lambda fr, d=d, s=s, qt=qt: mfma(d, fr, H1F + 8 * s + 4 * qt, None if s == 0 else d))
                items.append(Item(reads, mfs))
        if c < 7:
            bf = ["s_waitcnt vmcnt(%d)" % vm.wait_for(["W%d" % (c + 1), "H%d" % (c + 1)]), "s_barrier"]
            if c + 3 < 8:
                bf += wq_dma(c + 3) + h1_loads(c + 3)
            if c == 5:
                bf += dma_k(0) + dma_k(1) + dma_v(0)
                vm.add("KV", 6)
            if c == 6:
                bf += dma_k(2) + dma_v(1)
                vm.add("KV", 4)
                bf += repack_loads()
            items[4].before = bf
        allit += items
    st = Stream(a, QF, 8, 6)
    st.run(allit, False)
    a("s_nop 15")
    a("s_barrier")
    for dt in range(8):
        a("v_add_u32 v%d, %d, v%d" % (VAD + dt, VBASE - WQ_BASE, VAD + dt))
    a("v_mov_b32 v40, v6")
    a("v_mov_b32 v41, v7")
    a("v_mov_b32 v42, v5")
    lds_tile_write(a, 6)
    for s in range(4):
        a("v_add_u32 v%d, s55, v%d" % (T0 + 4 + s, KAD + s))
    a("s_waitcnt lgkmcnt(0)")
    for qt in range(2):
        for s in range(4):
            f = QF + 16 * qt + 4 * s
            a("ds_read_b128 v[%d:%d], v%d offset:%d" % (f, f + 3, T0 + 4 + s, qt * 4096))
    for i in range(4):
        a("v_mov_b32 v%d, 0x3f803f80" % (ONES + i))

    def main_part(safe, tag):
        for i in range(64):
            a("v_mov_b32 v%d, 0" % (OACC + i))
        for r in (MP, M0, M1):
            a("v_mov_b32 v%d, 0xff800000" % r)
        for i in range(8):
            a("v_mov_b32 v%d, 0" % (LSUM + i))
        if not safe:
            stamp(a)
        a("s_waitcnt vmcnt(0) lgkmcnt(0)")
        a("s_barrier")
        if not safe:
            for i, off in enumerate((WS_GP, WS_UP)):
                a("s_add_u32 s56, s30, 0x%x" % off)
                a("s_addc_u32 s57, s31, 0")
                a("s_mov_b32 s58, %d" % (512 * 3584))
                a("s_mov_b32 s59, 0x00020000")
                a("buffer_store_dwordx4 v[%d:%d], v105, s[56:59], 0 offen" % (96 + 4 * i, 99 + 4 * i))
        body = []
        for t in range(6):
            body += iter_items(t, safe=safe)
        st = Stream(a, POOL, NPOOL, LOOK)
        q0 = qk_items(0, SB[0])
        st.run(q0, False, body)
        a("s_nop 15")
        for s in max_ops(SB[0]) + rescale_check():
            st.emit(s)
        if not safe:
            stamp(a)
            a("s_lshl_b32 s47, s2, 3")
            a("s_add_u32 s47, s47, s%d" % S_WAVE)
            a("s_lshl_b32 s47, s47, 10")
            a("v_lshl_add_u32 v43, v42, 4, s47")
            a("v_lshl_add_u32 v43, v41, 8, v43")
            for base, nb, two in ((80, 4096 * 1024, True), (88, 1792 * 1024, False)):
                a("s_mov_b32 s56, s%d" % base)
                a("s_mov_b32 s57, s%d" % (base + 1))
                a("s_mov_b32 s58, %d" % nb)
                a("s_mov_b32 s59, 0x00020000")
                if two:
                    a("buffer_load_dwordx4 v[44:47], v43, s[56:59], 0 offen")
                    a("s_mov_b32 s47, %d" % (2048 * 1024))
                    a("buffer_load_dwordx4 v[44:47], v43, s[56:59], s47 offen")
                else:
                    a("buffer_load_dwordx4 v[44:47], v43, s[56:59], 0 offen")
        a("s_mov_b32 s%d, 5" % S_CNT)
        a.label("L_k3_loop" + tag)
        st.run(body, True, body)
        a("s_sub_u32 s%d, s%d, 1" % (S_CNT, S_CNT))
        a("s_cmp_lg_u32 s%d, 0" % S_CNT)
        a("s_cbranch_scc1 L_k3_loop" + tag)
        tail = iter_items(30, do_dma_k=False, do_dma_v=False, safe=safe) + iter_items(31, do_qk=False)
        st.run(tail, True)
        a("s_setprio 0")

    main_part(False, "f")
    a("s_nop 15")
    a("v_max_f32 v%d, v%d, v%d" % (T0, LSUM, LSUM + 4))
    a("v_mov_b32 v%d, 0x5f800000" % (T0 + 1))
    a("v_cmp_nlt_f32 vcc, v%d, v%d" % (LSUM, T0 + 1))
    a("v_cmp_nlt_f32 s[48:49], v%d, v%d" % (LSUM + 4, T0 + 1))
    a("s_nop 1")
    a("s_or_b64 s[48:49], s[48:49], vcc")
    a("s_cmp_lg_u64 s[48:49], 0")
    a("s_cselect_b32 s47, 1, 0")
    a("v_mov_b32 v%d, s47" % T0)
    a("s_lshl_b32 s47, s%d, 2" % S_WAVE)
    a("v_mov_b32 v%d, s47" % (T0 + 1))
    a("ds_write_b32 v%d, v%d offset:%d" % (T0 + 1, T0, KSLOT[2]))
    a("s_waitcnt lgkmcnt(0)")
    a("s_barrier")
    a("v_mov_b32 v%d, 0" % (T0 + 1))
    a("ds_read_b128 v[%d:%d], v%d offset:%d" % (POOL, POOL + 3, T0 + 1, KSLOT[2]))
    a("ds_read_b128 v[%d:%d], v%d offset:%d" % (POOL + 4, POOL + 7, T0 + 1, KSLOT[2] + 16))
    a("s_waitcnt lgkmcnt(0)")
    for i in range(1, 8):
        a("v_or_b32 v%d, v%d, v%d" % (POOL, POOL, POOL + i))
    a("s_nop 0")
    a("v_readfirstlane_b32 s47, v%d" % POOL)
    a("s_cmp_eq_u32 s47, 0")
    a("s_cbranch_scc1 L_k3_epi")
    a("s_barrier")
    a("s_mov_b32 s%d, 0" % S_KOFF)
    a("s_mov_b32 s%d, 0" % S_VOFF)
    for s in dma_k(0) + dma_k(1) + dma_v(0) + dma_k(2) + dma_v(1):
        a(s)
    main_part(True, "s")
    a.label("L_k3_epi")
    stamp(a)
    a("s_nop 15")
    a("v_rcp_f32 v%d, v%d" % (M0, LSUM))
    a("v_rcp_f32 v%d, v%d" % (M1, LSUM + 4))
    a("s_nop 0")
    lds_tile_write(a, 40, scale=(M0, M1))
    for i in range(4):
        a("v_add_u32 v%d, %d, v41" % (T0 + 4, 4 * i))
        a("v_xor_b32 v%d, v%d, v42" % (T0 + 5, T0 + 4))
        a("v_lshlrev_b32 v%d, 4, v%d" % (T0 + 5, T0 + 5))
        a("v_lshl_add_u32 v%d, v%d, 8, v%d" % (T0 + 5, T0 + 4, T0 + 5))
        a("v_add_u32 v%d, s55, v%d" % (KAD + i, T0 + 5))
    a("s_waitcnt lgkmcnt(0)")
    for i in range(8):
        f = SB[0] + 4 * i
        a("ds_read_b128 v[%d:%d], v%d offset:%d" % (f, f + 3, KAD + (i & 3), (i >> 2) * 4096))
    for i in range(8):
        f = SB[0] + 4 * i
        a("s_waitcnt lgkmcnt(%d)" % (7 - i))
        a("s_mov_b32 s47, %d" % (i * 4 * 8192))
        a("buffer_store_dwordx4 v[%d:%d], v0, s[24:27], s47 offen%s" % (f, f + 3, " sc1" if MERGE4 else ""))
    stamp(a)
    stamp_flush(a)
    if MERGE4:
        a("s_add_u32 s56, s30, 0x%x" % (WS_FLAG + FLAG_O_OFF))
        a("s_addc_u32 s57, s31, 0")
        a("s_mov_b32 s58, 1024")
        a("s_mov_b32 s59, 0x00020000")
        a("v_mbcnt_lo_u32_b32 v0, -1, 0")
        a("v_mbcnt_hi_u32_b32 v0, -1, v0")
        a("s_lshl_b32 s47, s%d, 6" % S_WAVE)
        a("v_add_u32 v0, s47, v0")
        a("s_waitcnt vmcnt(0) lgkmcnt(0)")
        a("s_barrier")
        a("v_mov_b32 v4, 1")
        a("s_lshl_b32 s47, s2, 2")
        a("v_mov_b32 v5, s47")
        a("v_cmp_eq_u32 vcc, 0, v0")
        a("s_and_saveexec_b64 s[48:49], vcc")
        a("buffer_store_dword v4, v5, s[56:59], 0 offen sc1")
        a("s_mov_b64 exec, s[48:49]")
        oproj.oproj_body(a, True)
    a.label("L_k3_done")
    a("s_endpgm")
    return name, 256
```

```python
from asmlib import *
import os
import oproj
MERGE4 = os.environ.get("MERGE4", "1") == "1"
MERGE2 = os.environ.get("MERGE2", "0") == "1"
import small
DIAG = os.environ.get("DIAG", "0") == "1"
WS_DIAG = 0x3000000
PRIO = int(os.environ.get("PRIO", "3"))
PFD = int(os.environ.get("PFD", "3"))
_stamp = [0]

OACC = 192
QF = 160
SB = [96, 128]
PB = 80
POOL = 48
NPOOL = 8
LOOK = int(os.environ.get("LOOK", "6"))
VCONST = os.environ.get("VCONST", "0") == "1"
VC, VL = 10, 11
EARLY = 44
LSUM = 32
ONES = 12
KAD = 16
VAD = 20
DK0, DK1, DV0, DV1 = 28, 29, 30, 31
MP, M0, M1 = 1, 2, 3
T0 = 4

S_L2E = 32
S_WAVE = 33
S_C = 34
S_KOFF, S_VOFF = 35, 36
S_M0K = [37, 38, 39]
S_M0V = [40, 41, 42]
S_CNT = 43

NSLOT = 3
KSLOT = [0, 16384, 32768]
VBASE = 49152
VSLOT = [0, 16384, 32768]
WQ_BASE = 98304


def stamp(a):
    if not DIAG:
        return
    i = _stamp[0]
    _stamp[0] += 1
    a("s_memtime s[%d:%d]" % (60 + 2 * i, 61 + 2 * i))


def rstamp(a, reg):
    if DIAG:
        a("s_memrealtime s[%d:%d]" % (reg, reg + 1))


def stamp_flush(a):
    if not DIAG:
        return
    rstamp(a, 92)
    a("s_waitcnt lgkmcnt(0) vmcnt(0)")
    a("s_add_u32 s56, s30, 0x%x" % WS_DIAG)
    a("s_addc_u32 s57, s31, 0")
    a("s_mov_b32 s58, 0x100000")
    a("s_mov_b32 s59, 0x00020000")
    a("s_lshl_b32 s54, s2, 3")
    a("s_add_u32 s54, s54, s%d" % S_WAVE)
    a("s_lshl_b32 s54, s54, 6")
    a("v_mov_b32 v4, s54")
    for i in range(_stamp[0]):
        a("v_mov_b32 v5, s%d" % (60 + 2 * i))
        a("buffer_store_dword v5, v4, s[56:59], 0 offen offset:%d" % (4 * i))
    for i, r in enumerate((90, 92)):
        a("v_mov_b32 v5, s%d" % r)
        a("buffer_store_dword v5, v4, s[56:59], 0 offen offset:%d" % (48 + 4 * i))


def mfma(d, fa, fb, c):
    cs = "0" if c is None else "v[%d:%d]" % (c, c + 3)
    return "v_mfma_f32_16x16x32_bf16 v[%d:%d], v[%d:%d], v[%d:%d], %s" % (d, d + 3, fa, fa + 3, fb, fb + 3, cs)


class Item:
    def __init__(self, reads, mf, guard=False):
        self.reads = reads
        self.mf = mf
        self.guard = guard
        self.before = []
        self.after = [[] for _ in mf]


class Stream:
    def __init__(self, a, pool, npool, look):
        self.a, self.pool, self.npool, self.look = a, pool, npool, look
        self.since_cvt = 99

    def emit(self, s):
        if s.endswith(":"):
            self.a.label(s[:-1])
            return
        self.a(s)
        if s.startswith("v_cvt_pk") and ", 0, " not in s:
            self.since_cvt = 0
        else:
            self.since_cvt += 1

    def run(self, items, preissued, nxt=None):
        rd = [it for it in items if it.reads]
        nrd = len(rd)
        assert nrd % self.npool == 0 or nxt is None
        seq = rd + ([it for it in nxt if it.reads][:self.look] if nxt else [])
        issued = []

        def fr_of(k):
            return self.pool + 4 * (k % self.npool)

        def issue(k):
            for r in seq[k].reads(fr_of(k)):
                self.emit(r)
                issued.append(k)
        if preissued:
            for k in range(min(self.look, nrd)):
                issued += [k] * len(seq[k].reads(fr_of(k)))
        else:
            for k in range(min(self.look, len(seq))):
                issue(k)
        k = 0
        for it in items:
            for s in it.before:
                self.emit(s)
            fr = None
            if it.reads:
                fr = fr_of(k)
                later = sum(1 for j in issued if j > k)
                self.emit("s_waitcnt lgkmcnt(%d)" % later)
            for m, (f, aft) in enumerate(zip(it.mf, it.after)):
                if it.guard and self.since_cvt < 2:
                    self.emit("s_nop %d" % (1 - self.since_cvt))
                self.emit(f(fr))
                if m == len(it.mf) - 1 and it.reads:
                    if k + self.look < len(seq):
                        issue(k + self.look)
                    k += 1
                for s in aft:
                    self.emit(s)


def qk_items(kslot, S):
    items = []
    for kt in range(4):
        for s in range(4):
            off = KSLOT[kslot] + kt * 4096
            def reads(fr, s=s, off=off):
                return ["ds_read_b128 v[%d:%d], v%d offset:%d" % (fr, fr + 3, KAD + s, off)]
            mfs = []
            for qt in range(2):
                d = S + 8 * kt + 4 * qt
                mfs.append(lambda fr, d=d, s=s, qt=qt: mfma(d, fr, QF + 16 * qt + 4 * s, None if s == 0 else d))
            items.append(Item(reads, mfs))
    return items


def pv_items(vslot):
    items = []
    for ks in range(2):
        for dt in range(8):
            off = VSLOT[vslot] + ks * 8192
            def reads(fr, dt=dt, off=off):
                return ["ds_read_b64_tr_b16 v[%d:%d], v%d offset:%d" % (fr, fr + 1, VAD + dt, off),
                        "ds_read_b64_tr_b16 v[%d:%d], v%d offset:%d" % (fr + 2, fr + 3, VAD + dt, off + 4096)]
            mfs = []
            for qt in range(2):
                d = OACC + 8 * dt + 4 * qt
                mfs.append(lambda fr, d=d, ks=ks, qt=qt: mfma(d, fr, PB + 8 * ks + 4 * qt, d))
            items.append(Item(reads, mfs, True))
        mfs = []
        for qt in range(2):
            d = LSUM + 4 * qt
            mfs.append(lambda fr, d=d, ks=ks, qt=qt: mfma(d, ONES, PB + 8 * ks + 4 * qt, d))
        items.append(Item(None, mfs, True))
    return items


def exp_ops(S):
    ops = []
    for kt in range(4):
        for qt in range(2):
            e = S + 8 * kt + 4 * qt
            m = M0 if qt == 0 else M1
            for j in range(4):
                ops.append("v_cvt_pk_bf16_f32 v%d, 0, v%d" % (e + j, e + j))
            for j in range(4):
                if VCONST:
                    ops.append("v_mul_f32 v%d, v%d, v%d" % (e + j, VC, e + j))
                else:
                    ops.append("v_mul_f32 v%d, s%d, v%d" % (e + j, S_C, e + j))
            for j in range(4):
                ops.append("v_cvt_pk_bf16_f32 v%d, 0, v%d" % (e + j, e + j))
            for j in range(4):
                if VCONST:
                    ops.append("v_fma_f32 v%d, v%d, v%d, -v%d" % (e + j, e + j, VL, m))
                else:
                    ops.append("v_fma_f32 v%d, v%d, s%d, -v%d" % (e + j, e + j, S_L2E, m))
            for j in range(4):
                ops.append("v_exp_f32 v%d, v%d" % (e + j, e + j))
            p = PB + 8 * (kt >> 1) + 4 * qt + 2 * (kt & 1)
            ops.append("v_cvt_pk_bf16_f32 v%d, v%d, v%d" % (p, e, e + 1))
            ops.append("v_cvt_pk_bf16_f32 v%d, v%d, v%d" % (p + 1, e + 2, e + 3))
    return ops


def max_ops(S):
    ta, tb, t2 = T0, T0 + 1, T0 + 2
    chains = []
    for qt, t in ((0, ta), (1, tb)):
        v = [S + 8 * kt + 4 * qt + r for kt in range(4) for r in range(4)]
        c = ["v_max3_f32 v%d, v%d, v%d, v%d" % (t, v[0], v[1], v[2])]
        for i in range(6):
            c.append("v_max3_f32 v%d, v%d, v%d, v%d" % (t, t, v[3 + 2 * i], v[4 + 2 * i]))
        c.append("v_max_f32 v%d, v%d, v%d" % (t, t, v[15]))
        chains.append(c)
    ops = []
    for x, y in zip(*chains):
        ops += [x, y]
    ops.append("s_nop 1")
    ops.append("v_permlane32_swap_b32 v%d, v%d" % (ta, tb))
    ops.append("v_max_f32 v%d, v%d, v%d" % (ta, ta, tb))
    ops.append("v_mov_b32 v%d, v%d" % (t2, ta))
    ops.append("v_add_f32 v%d, 0x41000000, v%d" % (tb, MP))
    ops.append("s_nop 0")
    ops.append("v_permlane16_swap_b32 v%d, v%d" % (ta, t2))
    ops.append("v_max_f32 v%d, v%d, v%d" % (ta, ta, t2))
    ops.append("v_cvt_pk_bf16_f32 v%d, 0, v%d" % (ta, ta))
    ops.append("v_mul_f32 v%d, s%d, v%d" % (ta, S_C, ta))
    ops.append("v_cvt_pk_bf16_f32 v%d, 0, v%d" % (ta, ta))
    ops.append("v_mul_f32 v%d, s%d, v%d" % (ta, S_L2E, ta))
    return ops


_lbl = [0]


def rescale_check():
    _lbl[0] += 1
    lb = "L_k3_skip%d" % _lbl[0]
    f0, f1 = T0 + 1, T0 + 2
    o = []
    o.append("v_cmp_gt_f32 vcc, v%d, v%d" % (T0, T0 + 1))
    o.append("s_nop 1")
    o.append("s_cbranch_vccz %s" % lb)
    o.append("s_nop 15")
    o.append("v_max_f32 v%d, v%d, v%d" % (T0, T0, MP))
    o.append("v_sub_f32 v%d, v%d, v%d" % (f0, MP, T0))
    o.append("v_exp_f32 v%d, v%d" % (f0, f0))
    o.append("v_mov_b32 v%d, v%d" % (MP, T0))
    o.append("v_mov_b32 v%d, v%d" % (M0, T0))
    o.append("v_mov_b32 v%d, v%d" % (M1, T0))
    o.append("v_mov_b32 v%d, v%d" % (f1, f0))
    o.append("s_nop 1")
    o.append("v_permlane32_swap_b32 v%d, v%d" % (M0, M1))
    o.append("v_permlane32_swap_b32 v%d, v%d" % (f0, f1))
    o.append("s_nop 1")
    o.append("v_mul_f32 v%d, v%d, v%d" % (LSUM, LSUM, f0))
    o.append("v_mul_f32 v%d, v%d, v%d" % (LSUM + 4, LSUM + 4, f1))
    for dt in range(8):
        for qt in range(2):
            for r in range(4):
                x = OACC + 8 * dt + 4 * qt + r
                o.append("v_mul_f32 v%d, v%d, v%d" % (x, x, f0 if qt == 0 else f1))
    o.append("s_nop 1")
    o.append(lb + ":")
    return o


def dma_k(slot):
    return ["s_mov_b32 m0, s%d" % S_M0K[slot],
            "s_nop 0",
            "buffer_load_dwordx4 v%d, s[8:11], s%d offen lds" % (DK0, S_KOFF),
            "buffer_load_dwordx4 v%d, s[8:11], s%d offen offset:1024 lds" % (DK1, S_KOFF),
            "s_add_u32 s%d, s%d, 16384" % (S_KOFF, S_KOFF)]


def dma_v(slot):
    return ["s_mov_b32 m0, s%d" % S_M0V[slot],
            "s_nop 0",
            "buffer_load_dwordx4 v%d, s[12:15], s%d offen lds" % (DV0, S_VOFF),
            "buffer_load_dwordx4 v%d, s[12:15], s%d offen offset:1024 lds" % (DV1, S_VOFF),
            "s_add_u32 s%d, s%d, 16384" % (S_VOFF, S_VOFF)]


def slots_of(items):
    return [(it, m) for it in items for m in range(len(it.mf))]


def spread(slots, lo, hi, ops):
    n = hi - lo
    k = 0
    for g in range(n):
        k2 = (len(ops) * (g + 1) + n - 1) // n
        it, m = slots[lo + g]
        it.after[m] = it.after[m] + ops[k:k2]
        k = k2
    assert k == len(ops)


def iter_items(t, do_qk=True, do_dma_k=True, do_dma_v=True, safe=True):
    p = t & 1
    E = exp_ops(SB[p])
    if do_qk:
        items = qk_items((t + 1) % NSLOT, SB[1 - p]) + pv_items(t % NSLOT)
        sl = slots_of(items)
        assert len(sl) == 68
        items[0].before = ["s_waitcnt vmcnt(0)", "s_barrier"]
        if safe:
            spread(sl, 0, 49, E)
        else:
            spread(sl, 0, 50, E[EARLY:])
            spread(sl, 50, 68, exp_ops(SB[1 - p])[:EARLY])
        if safe:
            spread(sl, 52, 68, max_ops(SB[1 - p]))
            it, m = sl[67]
            it.after[m] = it.after[m] + rescale_check()
        if PRIO == 3:
            for pr, sidx in ((3, 0), (2, 17), (1, 34), (0, 51)):
                it, m = sl[sidx]
                it.after[m] = ["s_setprio %d" % pr] + it.after[m]
        if PRIO == 2:
            for pr, sidx in ((1, 0), (0, 34)):
                it, m = sl[sidx]
                it.after[m] = ["s_setprio %d" % pr] + it.after[m]
        if do_dma_k:
            it, m = sl[2]
            it.after[m] = it.after[m] + dma_k(t % NSLOT)
        if do_dma_v:
            it, m = sl[6]
            it.after[m] = it.after[m] + dma_v((t + 2) % NSLOT)
    else:
        items = pv_items(t % NSLOT)
        sl = slots_of(items)
        items[0].before = E[:88] if safe else E[EARLY:88]
        spread(sl, 0, 17, E[88:])
    return items


class VmTrack:
    def __init__(self):
        self.ops = []

    def add(self, tag, n=1):
        self.ops += [tag] * n

    def wait_for(self, tags):
        last = max(i for i, t in enumerate(self.ops) if t in tags)
        return len(self.ops) - 1 - last


def lds_tile_write(a, wreg, scale=None):
    for dt in range(8):
        a("v_xor_b32 v%d, %d, v%d" % (T0 + 4, dt << 5, wreg))
        for qt in range(2):
            x = OACC + 8 * dt + 4 * qt
            if scale is not None:
                for r in range(4):
                    a("v_mul_f32 v%d, v%d, v%d" % (x + r, x + r, scale[qt]))
            t = POOL + 4 * dt + 2 * qt
            a("v_cvt_pk_bf16_f32 v%d, v%d, v%d" % (t, x, x + 1))
            a("v_cvt_pk_bf16_f32 v%d, v%d, v%d" % (t + 1, x + 2, x + 3))
            a("ds_write_b64 v%d, v[%d:%d] offset:%d" % (T0 + 4, t, t + 1, qt * 4096))


def gen_attn(a):
    name = "k3_attn_kernel"
    kernel_header(a, name)
    a("s_cmp_ge_u32 s2, 256")
    a("s_cbranch_scc1 L_k3_done")
    stamp(a)
    rstamp(a, 90)
    a("s_load_dwordx4 s[4:7], s[0:1], %d" % KA["k"])
    a("s_load_dwordx2 s[28:29], s[0:1], %d" % KA["wq"])
    a("s_load_dwordx2 s[30:31], s[0:1], %d" % KA["ws"])
    a("s_load_dwordx2 s[80:81], s[0:1], %d" % KA["wo"])
    a("s_load_dwordx4 s[84:87], s[0:1], %d" % KA["wg"])
    a("s_load_dwordx2 s[88:89], s[0:1], %d" % KA["wd"])
    a("s_load_dwordx2 s[82:83], s[0:1], %d" % KA["x"])
    a("s_and_b32 s52, s2, 31")
    a("s_lshr_b32 s53, s2, 5")
    a("v_lshrrev_b32 v4, 6, v0")
    a("v_and_b32 v5, 63, v0")
    a("v_readfirstlane_b32 s%d, v4" % S_WAVE)
    a("v_and_b32 v8, 15, v5")
    a("v_lshrrev_b32 v9, 4, v5")
    a("s_waitcnt lgkmcnt(0)")
    a("s_lshl_b32 s44, s52, 19")
    a("s_add_u32 s8, s4, s44")
    a("s_addc_u32 s9, s5, 0")
    a("s_mov_b32 s10, 524288")
    a("s_mov_b32 s11, 0x00020000")
    a("s_add_u32 s12, s6, s44")
    a("s_addc_u32 s13, s7, 0")
    a("s_mov_b32 s14, 524288")
    a("s_mov_b32 s15, 0x00020000")
    a("s_lshl_b32 s44, s52, 8")
    a("s_add_u32 s16, s28, s44")
    a("s_addc_u32 s17, s29, 0")
    a("s_sub_u32 s18, %d, s44" % (512 * 8192))
    a("s_mov_b32 s19, 0x00020000")
    a("s_lshl_b32 s45, s53, 18")
    a("s_add_u32 s45, s45, 0x%x" % WS_H1)
    a("s_add_u32 s20, s30, s45")
    a("s_addc_u32 s21, s31, 0")
    a("s_mov_b32 s22, 262144")
    a("s_mov_b32 s23, 0x00020000")
    a("s_lshl_b32 s45, s53, 21")
    a("s_add_u32 s45, s45, s44")
    a("s_add_u32 s45, s45, 0x%x" % WS_O)
    a("s_add_u32 s24, s30, s45")
    a("s_addc_u32 s25, s31, 0")
    a("s_sub_u32 s26, %d, s44" % (256 * 8192))
    a("s_mov_b32 s27, 0x00020000")
    a("s_mov_b32 s%d, 0x3db504f3" % S_C)
    a("s_mov_b32 s%d, 0x3fb8aa3b" % S_L2E)
    a("s_lshl_b32 s46, s%d, 11" % S_WAVE)
    for sl in range(NSLOT):
        a("s_add_u32 s%d, s46, %d" % (S_M0K[sl], KSLOT[sl]))
        a("s_add_u32 s%d, s46, %d" % (S_M0V[sl], VBASE + VSLOT[sl]))
    a("s_mov_b32 s%d, 0" % S_KOFF)
    a("s_mov_b32 s%d, 0" % S_VOFF)
    a("v_xor_b32 v10, v9, v8")
    a("v_lshlrev_b32 v10, 4, v10")
    a("v_lshl_add_u32 v%d, v8, 8, v10" % KAD)
    for s in range(1, 4):
        a("v_xor_b32 v%d, %d, v%d" % (KAD + s, s << 6, KAD))
    a("v_lshrrev_b32 v10, 2, v8")
    a("v_lshl_add_u32 v11, v9, 2, v10")
    a("v_and_b32 v12, 7, v11")
    a("v_lshlrev_b32 v11, 8, v11")
    a("v_lshl_add_u32 v11, v12, 5, v11")
    a("v_and_b32 v12, 3, v8")
    a("v_lshl_add_u32 v%d, v12, 3, v11" % VAD)
    for dt in range(1, 8):
        a("v_xor_b32 v%d, %d, v%d" % (VAD + dt, dt << 5, VAD))
    a("s_lshl_b32 s47, s%d, 3" % S_WAVE)
    a("v_add_u32 v10, s47, v9")
    a("v_and_b32 v11, 15, v10")
    a("v_xor_b32 v11, v11, v8")
    a("v_lshlrev_b32 v11, 4, v11")
    a("v_lshl_add_u32 v%d, v10, 8, v11" % DK0)
    a("v_add_u32 v12, 4, v10")
    a("v_and_b32 v11, 15, v12")
    a("v_xor_b32 v11, v11, v8")
    a("v_lshlrev_b32 v11, 4, v11")
    a("v_lshl_add_u32 v%d, v10, 8, v11" % DK1)
    a("v_lshlrev_b32 v11, 1, v9")
    a("v_xor_b32 v11, v11, v8")
    a("v_lshlrev_b32 v11, 4, v11")
    a("v_xor_b32 v12, 0x80, v11")
    a("v_lshl_add_u32 v%d, v10, 8, v11" % DV0)
    a("v_lshl_add_u32 v%d, v10, 8, v12" % DV1)
    a("v_lshl_add_u32 v13, v10, 13, v11")
    a("v_lshl_add_u32 v14, v10, 13, v12")
    a("v_add_u32 v14, %d, v14" % (32768 - 1024))
    a("s_lshl_b32 s50, s%d, 15" % S_WAVE)
    a("v_lshlrev_b32 v15, 4, v5")
    a("v_add_u32 v15, s50, v15")
    a("v_lshrrev_b32 v10, 1, v9")
    a("v_xor_b32 v10, v10, v8")
    a("v_lshlrev_b32 v10, 4, v10")
    a("v_lshl_add_u32 v10, v8, 8, v10")
    a("v_and_b32 v11, 1, v9")
    a("v_lshl_add_u32 v10, v11, 3, v10")
    a("s_lshl_b32 s55, s%d, 13" % S_WAVE)
    a("s_add_u32 s55, s55, %d" % WQ_BASE)
    a("v_add_u32 v6, s55, v10")
    a("s_lshl_b32 s47, s%d, 5" % S_WAVE)
    a("v_add_u32 v0, s47, v9")
    a("v_lshlrev_b32 v0, 13, v0")
    a("v_lshl_add_u32 v0, v8, 4, v0")
    a("v_mov_b32 v7, v9")
    a("v_mov_b32 v5, v8")
    WA = 40
    H1F = 32
    WA = 4
    vm = VmTrack()

    def wq_dma(c):
        vm.add("W%d" % c, 2)
        return ["s_add_u32 s48, s46, %d" % (WQ_BASE + (c & 3) * 16384),
                "s_mov_b32 m0, s48",
                "s_mov_b32 s49, %d" % (c * 64 * 8192),
                "buffer_load_dwordx4 v13, s[16:19], s49 offen lds",
                "buffer_load_dwordx4 v14, s[16:19], s49 offen offset:1024 lds"]

    def h1_loads(c):
        vm.add("H%d" % c, 4)
        o = ["s_mov_b32 s51, %d" % (c * 4096)]
        for i in range(4):
            f = H1F + 16 * c + 4 * i
            o.append("buffer_load_dwordx4 v[%d:%d], v15, s[20:23], s51 offen offset:%d" % (f, f + 3, 1024 * i))
        return o

    def repack_loads():
        o = []
        o.append("s_lshl_b32 s47, s2, 3")
        o.append("s_add_u32 s47, s47, s%d" % S_WAVE)
        o.append("s_lshl_b32 s47, s47, 6")
        o.append("v_lshl_add_u32 v104, v7, 4, v5")
        o.append("v_add_u32 v104, s47, v104")
        o.append("s_mov_b32 s47, %d" % (149797 * 128))
        o.append("v_mul_hi_u32 v106, v104, s47")
        o.append("s_mov_b32 s47, 224")
        o.append("v_mul_lo_u32 v107, v106, s47")
        o.append("v_sub_u32 v107, v104, v107")
        o.append("v_lshrrev_b32 v105, 2, v107")
        o.append("v_and_b32 v107, 3, v107")
        o.append("v_lshlrev_b32 v105, 15, v105")
        o.append("v_lshl_add_u32 v105, v106, 6, v105")
        o.append("v_lshl_add_u32 v105, v107, 4, v105")
        o.append("v_mov_b32 v107, 0x7fffffff")
        o.append("v_cmp_gt_u32 vcc, 512, v106")
        o.append("v_lshlrev_b32 v104, 4, v104")
        o.append("v_cndmask_b32 v105, v107, v105, vcc")
        for i, base in enumerate((84, 86)):
            o.append("s_mov_b32 s56, s%d" % base)
            o.append("s_mov_b32 s57, s%d" % (base + 1))
            o.append("s_mov_b32 s58, %d" % (512 * 3584))
            o.append("s_mov_b32 s59, 0x00020000")
            o.append("buffer_load_dwordx4 v[%d:%d], v104, s[56:59], 0 offen" % (96 + 4 * i, 99 + 4 * i))
        vm.add("RP", 2)
        return o

    for dt in range(8):
        a("v_add_u32 v%d, %d, v%d" % (VAD + dt, WQ_BASE, VAD + dt))
    if MERGE2:
        B = 160
        a("s_mov_b32 s56, s82")
        a("s_mov_b32 s57, s83")
        a("s_mov_b32 s58, %d" % (2048 * 1024))
        a("s_mov_b32 s59, 0x00020000")
        a("s_lshl_b32 s47, s2, 3")
        a("s_add_u32 s47, s47, s%d" % S_WAVE)
        a("s_lshl_b32 s48, s47, 10")
        a("v_lshl_add_u32 v%d, v7, 4, v5" % (B + 1))
        a("v_lshlrev_b32 v%d, 4, v%d" % (B + 3, B + 1))
        a("buffer_load_dwordx4 v[%d:%d], v%d, s[56:59], s48 offen" % (B + 8, B + 11, B + 3))
        a("s_add_u32 s56, s30, 0x%x" % WS_MOD)
        a("s_addc_u32 s57, s31, 0")
        a("s_mov_b32 s58, %d" % (3072 * 4))
        a("v_lshlrev_b32 v%d, 5, v%d" % (B + 5, B + 1))
        a("buffer_load_dwordx4 v[%d:%d], v%d, s[56:59], 0 offen" % (B + 24, B + 27, B + 5))
        a("buffer_load_dwordx4 v[%d:%d], v%d, s[56:59], 0 offen offset:16" % (B + 28, B + 31, B + 5))
        a("buffer_load_dwordx4 v[%d:%d], v%d, s[56:59], 0 offen offset:2048" % (B + 32, B + 35, B + 5))
        a("buffer_load_dwordx4 v[%d:%d], v%d, s[56:59], 0 offen offset:2064" % (B + 36, B + 39, B + 5))
        for c in range(3):
            for x in wq_dma(c):
                a(x)
        a("s_waitcnt vmcnt(10)")
        for i in range(4):
            unpack_bf16(a, B + 8 + i, B + 16 + 2 * i, B + 17 + 2 * i)
        small.layernorm8(a, B + 16, B + 40)
        a("s_waitcnt vmcnt(6)")
        small.modulate8(a, B + 16, B + 32, B + 24, B + 40)
        small.pack8(a, B + 16, B + 8)
        a("s_lshr_b32 s48, s47, 5")
        a("s_lshl_b32 s48, s48, 15")
        a("s_bfe_u32 s49, s47, 0x10004")
        a("s_lshl_b32 s49, s49, 10")
        a("s_add_u32 s48, s48, s49")
        a("s_and_b32 s49, s47, 15")
        a("s_lshl_b32 s49, s49, 4")
        a("s_add_u32 s48, s48, s49")
        a("v_lshrrev_b32 v%d, 2, v%d" % (B + 41, B + 1))
        a("v_lshlrev_b32 v%d, 11, v%d" % (B + 41, B + 41))
        a("v_and_b32 v%d, 1, v%d" % (B + 42, B + 1))
        a("v_lshl_add_u32 v%d, v%d, 9, v%d" % (B + 41, B + 42, B + 41))
        a("v_bfe_u32 v%d, v%d, 1, 1" % (B + 42, B + 1))
        a("v_lshl_add_u32 v%d, v%d, 3, v%d" % (B + 41, B + 42, B + 41))
        a("s_add_u32 s56, s30, 0x%x" % WS_H1)
        a("s_addc_u32 s57, s31, 0")
        a("s_mov_b32 s58, %d" % (2048 * 1024))
        a("buffer_store_dwordx2 v[%d:%d], v%d, s[56:59], s48 offen sc1" % (B + 8, B + 9, B + 41))
        a("buffer_store_dwordx2 v[%d:%d], v%d, s[56:59], s48 offen offset:256 sc1" % (B + 10, B + 11, B + 41))
        a("s_add_u32 s56, s30, 0x%x" % (WS_FLAG + FLAG_H_OFF))
        a("s_addc_u32 s57, s31, 0")
        a("s_mov_b32 s58, 1024")
        a("s_waitcnt vmcnt(0)")
        a("s_barrier")
        a("s_cmp_lg_u32 s%d, 0" % S_WAVE)
        a("s_cbranch_scc1 L_k3_hdone")
        a("v_mov_b32 v%d, 1" % (B + 2))
        a("s_lshl_b32 s47, s2, 2")
        a("v_mov_b32 v%d, s47" % (B + 3))
        a("v_cmp_eq_u32 vcc, 0, v%d" % (B + 1))
        a("s_and_saveexec_b64 s[48:49], vcc")
        a("buffer_store_dword v%d, v%d, s[56:59], 0 offen sc1" % (B + 2, B + 3))
        a("s_mov_b64 exec, s[48:49]")
        a("s_lshl_b32 s47, s53, 7")
        a("v_and_b32 v%d, 31, v%d" % (B + 3, B + 1))
        a("v_lshl_add_u32 v%d, v%d, 2, s47" % (B + 3, B + 3))
        a.label("L_k3_hpoll")
        a("buffer_load_dword v%d, v%d, s[56:59], 0 offen sc1" % (B + 2, B + 3))
        a("s_waitcnt vmcnt(0)")
        a("v_cmp_ne_u32 vcc, 1, v%d" % (B + 2))
        a("s_nop 1")
        a("s_cbranch_vccz L_k3_hgot")
        a("s_sleep 1")
        a("s_branch L_k3_hpoll")
        a.label("L_k3_hgot")
        a("buffer_inv sc1")
        a("s_waitcnt vmcnt(0)")
        a.label("L_k3_hdone")
        a("s_barrier")
        vm.ops = []
        vm.add("W0"); vm.add("W1"); vm.add("W2")
        for c in range(3):
            for x in h1_loads(c):
                a(x)
    else:
        for c in range(3):
            for x in wq_dma(c) + h1_loads(c):
                a(x)
    stamp(a)
    a("s_waitcnt vmcnt(%d)" % vm.wait_for(["W0", "H0"]))
    a("s_barrier")
    stamp(a)
    stamp(a)
    stamp(a)
    allit = []
    for c in range(8):
        cb = (c & 3) * 16384
        items = []
        for s2 in range(2):
            for dt in range(8):
                s = 2 * c + s2
                def reads(fr, dt=dt, s2=s2, cb=cb):
                    return ["ds_read_b64_tr_b16 v[%d:%d], v%d offset:%d" % (fr, fr + 1, VAD + dt, cb + s2 * 8192),
                            "ds_read_b64_tr_b16 v[%d:%d], v%d offset:%d" % (fr + 2, fr + 3, VAD + dt, cb + s2 * 8192 + 4096)]
                mfs = []
                for qt in range(2):
                    d = OACC + 8 * dt + 4 * qt
                    mfs.append(lambda fr, d=d, s=s, qt=qt: mfma(d, fr, H1F + 8 * s + 4 * qt, None if s == 0 else d))
                items.append(Item(reads, mfs))
        if c < 7:
            bf = ["s_waitcnt vmcnt(%d)" % vm.wait_for(["W%d" % (c + 1), "H%d" % (c + 1)]), "s_barrier"]
            if c + 3 < 8:
                bf += wq_dma(c + 3) + h1_loads(c + 3)
            if c == 5:
                bf += dma_k(0) + dma_k(1) + dma_v(0)
                vm.add("KV", 6)
            if c == 6:
                bf += dma_k(2) + dma_v(1)
                vm.add("KV", 4)
                bf += repack_loads()
            items[4].before = bf
        allit += items
    st = Stream(a, QF, 8, 6)
    st.run(allit, False)
    a("s_nop 15")
    a("s_barrier")
    for dt in range(8):
        a("v_add_u32 v%d, %d, v%d" % (VAD + dt, VBASE - WQ_BASE, VAD + dt))
    a("v_mov_b32 v40, v6")
    a("v_mov_b32 v41, v7")
    a("v_mov_b32 v42, v5")
    lds_tile_write(a, 6)
    for s in range(4):
        a("v_add_u32 v%d, s55, v%d" % (T0 + 4 + s, KAD + s))
    a("s_waitcnt lgkmcnt(0)")
    for qt in range(2):
        for s in range(4):
            f = QF + 16 * qt + 4 * s
            a("ds_read_b128 v[%d:%d], v%d offset:%d" % (f, f + 3, T0 + 4 + s, qt * 4096))
    for i in range(4):
        a("v_mov_b32 v%d, 0x3f803f80" % (ONES + i))

    def main_part(safe, tag):
        for i in range(64):
            a("v_mov_b32 v%d, 0" % (OACC + i))
        for r in (MP, M0, M1):
            a("v_mov_b32 v%d, 0xff800000" % r)
        for i in range(8):
            a("v_mov_b32 v%d, 0" % (LSUM + i))
        a("v_mov_b32 v%d, s%d" % (VC, S_C))
        a("v_mov_b32 v%d, s%d" % (VL, S_L2E))
        if not safe:
            stamp(a)
        a("s_waitcnt vmcnt(0) lgkmcnt(0)")
        a("s_barrier")
        if not safe:
            for i, off in enumerate((WS_GP, WS_UP)):
                a("s_add_u32 s56, s30, 0x%x" % off)
                a("s_addc_u32 s57, s31, 0")
                a("s_mov_b32 s58, %d" % (512 * 3584))
                a("s_mov_b32 s59, 0x00020000")
                a("buffer_store_dwordx4 v[%d:%d], v105, s[56:59], 0 offen" % (96 + 4 * i, 99 + 4 * i))
        body = []
        for t in range(6):
            body += iter_items(t, safe=safe)
        st = Stream(a, POOL, NPOOL, LOOK)
        q0 = qk_items(0, SB[0])
        st.run(q0, False, body)
        a("s_nop 15")
        for s in max_ops(SB[0]) + rescale_check():
            st.emit(s)
        if not safe:
            for s in exp_ops(SB[0])[:EARLY]:
                st.emit(s)
        if not safe:
            stamp(a)
            a("s_lshl_b32 s47, s2, 3")
            a("s_add_u32 s47, s47, s%d" % S_WAVE)
            a("s_lshl_b32 s47, s47, 10")
            a("v_lshl_add_u32 v43, v42, 4, s47")
            a("v_lshl_add_u32 v43, v41, 8, v43")
            for base, nb, two in ((80, 4096 * 1024, True), (88, 1792 * 1024, False)):
                a("s_mov_b32 s56, s%d" % base)
                a("s_mov_b32 s57, s%d" % (base + 1))
                a("s_mov_b32 s58, %d" % nb)
                a("s_mov_b32 s59, 0x00020000")
                if two:
                    a("buffer_load_dwordx4 v[44:47], v43, s[56:59], 0 offen")
                    a("s_mov_b32 s47, %d" % (2048 * 1024))
                    a("buffer_load_dwordx4 v[44:47], v43, s[56:59], s47 offen")
                else:
                    a("buffer_load_dwordx4 v[44:47], v43, s[56:59], 0 offen")
        a("s_mov_b32 s%d, 5" % S_CNT)
        a.label("L_k3_loop" + tag)
        st.run(body, True, body)
        a("s_sub_u32 s%d, s%d, 1" % (S_CNT, S_CNT))
        a("s_cmp_lg_u32 s%d, 0" % S_CNT)
        a("s_cbranch_scc1 L_k3_loop" + tag)
        tail = iter_items(30, do_dma_k=False, do_dma_v=False, safe=safe) + iter_items(31, do_qk=False, safe=safe)
        st.run(tail, True)
        a("s_setprio 0")

    main_part(False, "f")
    a("s_nop 15")
    a("v_max_f32 v%d, v%d, v%d" % (T0, LSUM, LSUM + 4))
    a("v_mov_b32 v%d, 0x5f800000" % (T0 + 1))
    a("v_cmp_nlt_f32 vcc, v%d, v%d" % (LSUM, T0 + 1))
    a("v_cmp_nlt_f32 s[48:49], v%d, v%d" % (LSUM + 4, T0 + 1))
    a("s_nop 1")
    a("s_or_b64 s[48:49], s[48:49], vcc")
    a("s_cmp_lg_u64 s[48:49], 0")
    a("s_cselect_b32 s47, 1, 0")
    a("v_mov_b32 v%d, s47" % T0)
    a("s_lshl_b32 s47, s%d, 2" % S_WAVE)
    a("v_mov_b32 v%d, s47" % (T0 + 1))
    a("ds_write_b32 v%d, v%d offset:%d" % (T0 + 1, T0, KSLOT[2]))
    a("s_waitcnt lgkmcnt(0)")
    a("s_barrier")
    a("v_mov_b32 v%d, 0" % (T0 + 1))
    a("ds_read_b128 v[%d:%d], v%d offset:%d" % (POOL, POOL + 3, T0 + 1, KSLOT[2]))
    a("ds_read_b128 v[%d:%d], v%d offset:%d" % (POOL + 4, POOL + 7, T0 + 1, KSLOT[2] + 16))
    a("s_waitcnt lgkmcnt(0)")
    for i in range(1, 8):
        a("v_or_b32 v%d, v%d, v%d" % (POOL, POOL, POOL + i))
    a("s_nop 0")
    a("v_readfirstlane_b32 s47, v%d" % POOL)
    a("s_cmp_eq_u32 s47, 0")
    a("s_cbranch_scc1 L_k3_epi")
    a("s_barrier")
    a("s_mov_b32 s%d, 0" % S_KOFF)
    a("s_mov_b32 s%d, 0" % S_VOFF)
    for s in dma_k(0) + dma_k(1) + dma_v(0) + dma_k(2) + dma_v(1):
        a(s)
    main_part(True, "s")
    a.label("L_k3_epi")
    stamp(a)
    a("s_nop 15")
    a("v_rcp_f32 v%d, v%d" % (M0, LSUM))
    a("v_rcp_f32 v%d, v%d" % (M1, LSUM + 4))
    a("s_nop 0")
    lds_tile_write(a, 40, scale=(M0, M1))
    for i in range(4):
        a("v_add_u32 v%d, %d, v41" % (T0 + 4, 4 * i))
        a("v_xor_b32 v%d, v%d, v42" % (T0 + 5, T0 + 4))
        a("v_lshlrev_b32 v%d, 4, v%d" % (T0 + 5, T0 + 5))
        a("v_lshl_add_u32 v%d, v%d, 8, v%d" % (T0 + 5, T0 + 4, T0 + 5))
        a("v_add_u32 v%d, s55, v%d" % (KAD + i, T0 + 5))
    a("s_waitcnt lgkmcnt(0)")
    for i in range(8):
        f = SB[0] + 4 * i
        a("ds_read_b128 v[%d:%d], v%d offset:%d" % (f, f + 3, KAD + (i & 3), (i >> 2) * 4096))
    for i in range(8):
        f = SB[0] + 4 * i
        a("s_waitcnt lgkmcnt(%d)" % (7 - i))
        a("s_mov_b32 s47, %d" % (i * 4 * 8192))
        a("buffer_store_dwordx4 v[%d:%d], v0, s[24:27], s47 offen%s" % (f, f + 3, " sc1" if MERGE4 else ""))
    stamp(a)
    stamp_flush(a)
    if MERGE4:
        a("s_add_u32 s56, s30, 0x%x" % (WS_FLAG + FLAG_O_OFF))
        a("s_addc_u32 s57, s31, 0")
        a("s_mov_b32 s58, 16384")
        a("s_mov_b32 s59, 0x00020000")
        a("v_mbcnt_lo_u32_b32 v0, -1, 0")
        a("v_mbcnt_hi_u32_b32 v0, -1, v0")
        a("s_lshl_b32 s47, s%d, 6" % S_WAVE)
        a("v_add_u32 v0, s47, v0")
        a("s_waitcnt vmcnt(0) lgkmcnt(0)")
        a("s_barrier")
        a("v_mov_b32 v4, 1")
        a("s_lshl_b32 s47, s2, 6")
        a("v_mov_b32 v5, s47")
        a("v_cmp_eq_u32 vcc, 0, v0")
        a("s_and_saveexec_b64 s[48:49], vcc")
        a("buffer_store_dword v4, v5, s[56:59], 0 offen sc1")
        a("s_mov_b64 exec, s[48:49]")
        oproj.oproj_body(a, True)
    a.label("L_k3_done")
    a("s_endpgm")
    return name, 256
```

```python
class Asm:
    def __init__(self):
        self.lines = []

    def __call__(self, s):
        for ln in s.strip("\n").split("\n"):
            self.lines.append("    " + ln.strip())

    def label(self, name):
        self.lines.append(name + ":")

    def raw(self, s):
        self.lines.append(s)

    def comment(self, s):
        self.lines.append("    ; " + s)

    def text(self):
        return "\n".join(self.lines) + "\n"


def vr(a, n=None):
    if n is None or n == 1:
        return "v%d" % a
    return "v[%d:%d]" % (a, a + n - 1)


def sr(a, n=None):
    if n is None or n == 1:
        return "s%d" % a
    return "s[%d:%d]" % (a, a + n - 1)


KA = dict(x=0, k=8, v=16, wq=24, wo=32, bx=40, wr=48, wg=56, wu=64, wd=72, c=80, wmod=88,
          out=96, dbg=104, ws=112)

WS_MOD = 0x0
WS_R = 0x10000
WS_GU = 0x20000
WS_IDX = 0x30000
WS_FLAG = 0x40000
FLAG_O_OFF = 20480
FLAG_H_OFF = 36864
FLAG_1_OFF = 16384
FLAG_BYTES = 36864
WS_H1 = 0x100000
WS_X1 = 0x300000
WS_H2 = 0x500000
WS_O = 0x800000
WS_PART = 0x1800000
WS_P6B = 0x2900000
WS_GP = 0x2A00000
WS_UP = 0x2C00000


def srd_from(a, d, base_s, off, nbytes):
    if off:
        a("s_add_u32 s%d, s%d, 0x%x" % (d, base_s, off))
        a("s_addc_u32 s%d, s%d, 0" % (d + 1, base_s + 1))
    else:
        a("s_mov_b32 s%d, s%d" % (d, base_s))
        a("s_mov_b32 s%d, s%d" % (d + 1, base_s + 1))
    a("s_mov_b32 s%d, 0x%x" % (d + 2, nbytes))
    a("s_mov_b32 s%d, 0x00020000" % (d + 3))


def kernel_header(a, name):
    a.raw(".globl %s" % name)
    a.raw(".p2align 8")
    a.raw(".type %s,@function" % name)
    a.label(name)


def kernel_desc(name, vgpr, sgpr=102):
    acc = (vgpr + 3) // 4 * 4
    return """.amdhsa_kernel %s
  .amdhsa_next_free_vgpr %d
  .amdhsa_next_free_sgpr %d
  .amdhsa_accum_offset %d
  .amdhsa_group_segment_fixed_size 0
  .amdhsa_kernarg_size 120
  .amdhsa_user_sgpr_count 2
  .amdhsa_user_sgpr_kernarg_segment_ptr 1
  .amdhsa_system_sgpr_workgroup_id_x 1
.end_amdhsa_kernel
""" % (name, vgpr, sgpr, acc)


def wave_allreduce(a, v, t, op="v_add_f32"):
    dpp = ["quad_perm:[1,0,3,2]", "quad_perm:[2,3,0,1]", "row_half_mirror", "row_mirror"]
    for d in dpp:
        a("s_nop 1")
        a("%s_dpp v%d, v%d, v%d %s row_mask:0xf bank_mask:0xf" % (op, t, v, v, d))
        a("v_mov_b32 v%d, v%d" % (v, t))
    a("ds_swizzle_b32 v%d, v%d offset:0x401F" % (t, v))
    a("s_waitcnt lgkmcnt(0)")
    a("%s v%d, v%d, v%d" % (op, v, v, t))
    a("v_mov_b32 v%d, v%d" % (t, v))
    a("s_nop 1")
    a("v_permlane32_swap_b32 v%d, v%d" % (v, t))
    a("s_nop 1")
    a("%s v%d, v%d, v%d" % (op, v, v, t))


def round_bf16(a, v, t=None):
    a("v_cvt_pk_bf16_f32 v%d, v%d, v%d" % (v, v, v))
    a("v_lshlrev_b32 v%d, 16, v%d" % (v, v))


def round_bf16_pair(a, v0, v1, t):
    a("v_cvt_pk_bf16_f32 v%d, v%d, v%d" % (t, v0, v1))
    a("v_lshlrev_b32 v%d, 16, v%d" % (v0, t))
    a("v_and_b32 v%d, 0xffff0000, v%d" % (v1, t))


def unpack_bf16(a, src, lo, hi):
    a("v_lshlrev_b32 v%d, 16, v%d" % (lo, src))
    a("v_and_b32 v%d, 0xffff0000, v%d" % (hi, src))
```

```python
from asmlib import *
from small import *
import os
DIAG5 = os.environ.get("DIAG5", "0") == "1"
_n5 = [0]


def st5(a):
    if DIAG5:
        a("s_memrealtime s[%d:%d]" % (96 + 0, 97))
        a("s_waitcnt lgkmcnt(0)")
        a("v_mov_b32 v120, s96")
        a("s_lshl_b32 s98, s2, 3")
        a("s_add_u32 s98, s98, s52")
        a("s_lshl_b32 s98, s98, 6")
        a("s_add_u32 s98, s98, 0x%x" % (0x3000000 - WS_P6B + 4 * _n5[0]))
        a("v_mov_b32 v121, s98")
        a("s_mov_b32 s94, 0x7fffffff")
        a("buffer_store_dword v120, v121, s[92:95], 0 offen")
        _n5[0] += 1


def signal(a, srd, off, tmpv):
    a("s_waitcnt vmcnt(0) lgkmcnt(0)")
    a("s_barrier")
    a("v_mov_b32 v%d, 1" % tmpv)
    a("s_lshl_b32 s58, s2, 6")
    a("s_add_u32 s58, s58, %d" % off)
    a("v_mov_b32 v%d, s58" % (tmpv + 1))
    a("v_cmp_eq_u32 vcc, 0, v0")
    a("s_and_saveexec_b64 s[48:49], vcc")
    a("buffer_store_dword v%d, v%d, s[%d:%d], 0 offen sc1" % (tmpv, tmpv + 1, srd, srd + 3))
    a("s_mov_b64 exec, s[48:49]")


_wl = [0]


def wait_flags(a, srd, off, n, swave, tmpv):
    _wl[0] += 1
    lp, dn = "L_poll%d" % _wl[0], "L_polldone%d" % _wl[0]
    a("s_cmp_lg_u32 s%d, 0" % swave)
    a("s_cbranch_scc1 %s" % dn)
    if n == 256:
        a("v_lshlrev_b32 v%d, 6, v0" % (tmpv + 4))
    else:
        a("v_min_u32 v%d, %d, v0" % (tmpv + 4, n - 1))
        a("v_lshlrev_b32 v%d, 6, v%d" % (tmpv + 4, tmpv + 4))
    a("v_add_u32 v%d, %d, v%d" % (tmpv + 4, off, tmpv + 4))
    a.label(lp)
    if n == 256:
        for i in range(4):
            a("s_mov_b32 s58, %d" % (i * 4096))
            a("buffer_load_dword v%d, v%d, s[%d:%d], s58 offen sc1" % (tmpv + i, tmpv + 4, srd, srd + 3))
        a("s_waitcnt vmcnt(0)")
        a("v_and_b32 v%d, v%d, v%d" % (tmpv, tmpv, tmpv + 1))
        a("v_and_b32 v%d, v%d, v%d" % (tmpv + 2, tmpv + 2, tmpv + 3))
        a("v_and_b32 v%d, v%d, v%d" % (tmpv, tmpv, tmpv + 2))
    else:
        a("buffer_load_dword v%d, v%d, s[%d:%d], 0 offen sc1" % (tmpv, tmpv + 4, srd, srd + 3))
        a("s_waitcnt vmcnt(0)")
    a("v_cmp_ne_u32 vcc, 1, v%d" % tmpv)
    a("s_nop 1")
    a("s_cbranch_vccz %s" % dn)
    a("s_sleep 1")
    a("s_branch %s" % lp)
    a.label(dn)
    a("s_barrier")


def gen_k12(a):
    name = "k1_modln_kernel"
    kernel_header(a, name)
    a("s_cmp_ge_u32 s2, 256")
    a("s_cbranch_scc1 L_k12_done")
    a("s_load_dwordx2 s[50:51], s[0:1], %d" % KA["x"])
    a("s_load_dwordx4 s[4:7], s[0:1], %d" % KA["c"])
    a("s_load_dwordx4 s[20:23], s[0:1], %d" % KA["dbg"])
    a("v_and_b32 v1, 63, v0")
    a("v_lshrrev_b32 v2, 6, v0")
    a("s_nop 0")
    a("v_readfirstlane_b32 s52, v2")
    a("s_waitcnt lgkmcnt(0)")
    srd_from(a, 8, 4, 0, 1024)
    srd_from(a, 12, 6, 0, 512 * 6144)
    srd_from(a, 16, 22, WS_MOD, 3072 * 4)
    srd_from(a, 24, 50, 0, 2048 * 1024)
    srd_from(a, 28, 22, WS_H1, 2048 * 1024)
    srd_from(a, 32, 20, 0, 256)
    a("s_lshl_b32 s53, s2, 13")
    a("v_lshlrev_b32 v3, 10, v2")
    a("v_lshlrev_b32 v4, 4, v1")
    a("v_add3_u32 v3, v3, v4, s53")
    a("buffer_load_dwordx4 v[108:111], v3, s[24:27], 0 offen")
    a("s_cmp_ge_u32 s2, 48")
    a("s_cbranch_scc1 L_k12_ln")
    a("s_cmp_ge_u32 s52, 4")
    a("s_cbranch_scc1 L_k12_gskip")
    a("v_and_b32 v5, 7, v0")
    a("v_lshrrev_b32 v6, 3, v0")
    a("v_lshlrev_b32 v7, 5, v6")
    a("buffer_load_dwordx4 v[8:11], v7, s[8:11], 0 offen")
    a("buffer_load_dwordx4 v[12:15], v7, s[8:11], 0 offen offset:16")
    a("s_mov_b32 s53, %d" % (16 * 6144))
    a("v_mul_lo_u32 v7, v6, s53")
    a("v_lshl_add_u32 v7, v5, 4, v7")
    a("s_lshl_b32 s53, s2, 7")
    a("v_add_u32 v7, s53, v7")
    for i in range(16):
        a("s_mov_b32 s54, %d" % (i * 6144))
        a("buffer_load_dwordx4 v[%d:%d], v7, s[12:15], s54 offen" % (32 + 4 * i, 35 + 4 * i))
    a("s_waitcnt vmcnt(16)")
    for i in range(8):
        unpack_bf16(a, 8 + i, 16 + 2 * i, 17 + 2 * i)
    for i in range(16):
        silu_reg(a, 16 + i, 104)
        round_bf16(a, 16 + i)
    for j in range(8):
        a("v_mov_b32 v%d, 0" % (96 + j))
    for i in range(16):
        a("s_waitcnt vmcnt(%d)" % (15 - i))
        for d in range(4):
            unpack_bf16(a, 32 + 4 * i + d, 104, 105)
            a("v_fmac_f32 v%d, v%d, v104" % (96 + 2 * d, 16 + i))
            a("v_fmac_f32 v%d, v%d, v105" % (97 + 2 * d, 16 + i))
    a("v_lshlrev_b32 v7, 8, v6")
    a("v_lshl_add_u32 v7, v5, 5, v7")
    a("ds_write_b128 v7, v[96:99]")
    a("ds_write_b128 v7, v[100:103] offset:16")
    a("s_waitcnt lgkmcnt(0)")
    a.label("L_k12_gskip")
    a("s_barrier")
    a("s_cmp_lg_u32 s52, 0")
    a("s_cbranch_scc1 L_k12_rskip")
    a("v_lshlrev_b32 v7, 2, v0")
    for g in range(32):
        a("ds_read_b32 v%d, v7 offset:%d" % (32 + g, g * 256))
    a("s_waitcnt lgkmcnt(0)")
    for g in range(1, 32):
        a("v_add_f32 v32, v32, v%d" % (32 + g))
    round_bf16(a, 32)
    a("s_lshl_b32 s53, s2, 8")
    a("v_add_u32 v7, s53, v7")
    a("buffer_store_dword v32, v7, s[16:19], 0 offen sc1")
    a.label("L_k12_rskip")
    signal(a, 32, 0, 5)
    a("s_cmp_lg_u32 s2, 0")
    a("s_cbranch_scc1 L_k12_ln")
    srd_from(a, 36, 22, WS_FLAG, 320 * 4)
    a("v_lshlrev_b32 v5, 2, v0")
    a("v_mov_b32 v6, 0")
    a("buffer_store_dword v6, v5, s[36:39], 0 offen")
    a.label("L_k12_ln")
    a("s_waitcnt vmcnt(0)")
    for i in range(4):
        unpack_bf16(a, 108 + i, 16 + 2 * i, 17 + 2 * i)
    layernorm8(a, 16, 40)
    wait_flags(a, 32, 0, 48, 52, 56)
    a("v_lshlrev_b32 v5, 5, v1")
    a("buffer_load_dwordx4 v[24:27], v5, s[16:19], 0 offen sc1")
    a("buffer_load_dwordx4 v[28:31], v5, s[16:19], 0 offen offset:16 sc1")
    a("buffer_load_dwordx4 v[32:35], v5, s[16:19], 0 offen offset:2048 sc1")
    a("buffer_load_dwordx4 v[36:39], v5, s[16:19], 0 offen offset:2064 sc1")
    a("s_lshl_b32 s53, s2, 3")
    a("v_add_u32 v40, s53, v2")
    a("v_lshrrev_b32 v41, 5, v40")
    a("v_lshlrev_b32 v41, 15, v41")
    a("v_lshrrev_b32 v42, 2, v1")
    a("v_lshl_add_u32 v41, v42, 11, v41")
    a("v_bfe_u32 v42, v40, 4, 1")
    a("v_lshl_add_u32 v41, v42, 10, v41")
    a("v_and_b32 v42, 1, v1")
    a("v_lshl_add_u32 v41, v42, 9, v41")
    a("v_and_b32 v42, 15, v40")
    a("v_lshl_add_u32 v41, v42, 4, v41")
    a("v_bfe_u32 v42, v1, 1, 1")
    a("v_lshl_add_u32 v41, v42, 3, v41")
    a("s_waitcnt vmcnt(0)")
    modulate8(a, 16, 32, 24, 44)
    pack8(a, 16, 8)
    a("buffer_store_dwordx2 v[8:9], v41, s[28:31], 0 offen")
    a("buffer_store_dwordx2 v[10:11], v41, s[28:31], 0 offen offset:256")
    a.label("L_k12_done")
    a("s_endpgm")
    return name, 112


def gen_tail(a, nsplit=4):
    name = "k5_tail_kernel"
    kernel_header(a, name)
    GB, UB, DB, XB = 8192, 40960, 73728, 0
    TK = XB + 4096
    GUB = XB + 6144
    a("s_cmp_ge_u32 s2, 256")
    a("s_cbranch_scc1 L_k5_done")
    a("s_load_dwordx2 s[4:5], s[0:1], %d" % KA["x"])
    a("s_load_dwordx4 s[60:63], s[0:1], %d" % KA["wr"])
    a("s_load_dwordx4 s[64:67], s[0:1], %d" % KA["wu"])
    a("s_load_dwordx2 s[68:69], s[0:1], %d" % KA["out"])
    a("s_load_dwordx4 s[20:23], s[0:1], %d" % KA["dbg"])
    a("v_and_b32 v1, 63, v0")
    a("v_lshrrev_b32 v2, 6, v0")
    a("s_nop 0")
    a("v_readfirstlane_b32 s52, v2")
    a("s_waitcnt lgkmcnt(0)")
    srd_from(a, 8, 4, 0, 2048 * 1024)
    srd_from(a, 12, 22, WS_MOD, 3072 * 4)
    srd_from(a, 16, 22, WS_PART, nsplit * 2048 * 2048)
    srd_from(a, 24, 60, 0, 1024)
    srd_from(a, 28, 68, 0, 2048 * 1024)
    srd_from(a, 32, 22, WS_X1, 2048 * 1024)
    srd_from(a, 36, 22, WS_H2, 2048 * 1024)
    srd_from(a, 72, 22, WS_R, 2048 * 4)
    srd_from(a, 76, 22, WS_FLAG, FLAG_BYTES)
    srd_from(a, 80, 22, WS_GP, 512 * 3584)
    srd_from(a, 84, 22, WS_UP, 512 * 3584)
    srd_from(a, 88, 66, 0, 1792 * 1024)
    srd_from(a, 92, 22, WS_P6B, 56 * 8 * 512 * 4)
    a("s_cmp_lt_u32 s52, 8")
    a("s_cbranch_scc1 L_k5_rows")
    a("s_cmp_ge_u32 s2, 56")
    a("s_cbranch_scc1 L_k5_done")
    a("s_sub_u32 s59, s52, 8")
    a("v_lshlrev_b32 v112, 4, v1")
    a("s_lshl_b32 s56, s59, 14")
    a("s_lshl_b32 s53, s2, 15")
    a("s_add_u32 s53, s53, s56")
    for mat, base in ((80, GB), (84, UB)):
        for i in range(16):
            a("s_add_u32 s54, s56, %d" % (base + i * 1024))
            a("s_mov_b32 m0, s54")
            a("s_add_u32 s55, s53, %d" % (i * 1024))
            a("buffer_load_dwordx4 v112, s[%d:%d], s55 offen lds" % (mat, mat + 3))
    a("s_mul_i32 s57, s59, %d" % (16 * 1056))
    for i in range(16):
        a("s_add_u32 s54, s57, %d" % (DB + i * 1056))
        a("s_mov_b32 m0, s54")
        a("s_add_u32 s55, s53, %d" % (i * 1024))
        a("buffer_load_dwordx4 v112, s[88:91], s55 offen lds")
    a("s_barrier")
    a("s_waitcnt vmcnt(0)")
    a("s_barrier")
    a("s_branch L_k5_done")
    a.label("L_k5_rows")
    st5(a)
    a("s_lshl_b32 s53, s2, 13")
    a("v_lshlrev_b32 v3, 10, v2")
    a("v_lshlrev_b32 v4, 4, v1")
    a("v_add3_u32 v3, v3, v4, s53")
    a("v_lshlrev_b32 v6, 1, v3")
    a("buffer_load_dwordx4 v[8:11], v3, s[8:11], 0 offen")
    for p in range(nsplit):
        a("s_mov_b32 s53, 0x%x" % (p * 2048 * 2048))
        a("buffer_load_dwordx4 v[%d:%d], v6, s[16:19], s53 offen" % (64 + 8 * p, 67 + 8 * p))
        a("buffer_load_dwordx4 v[%d:%d], v6, s[16:19], s53 offen offset:16" % (68 + 8 * p, 71 + 8 * p))
    a("v_lshlrev_b32 v5, 5, v1")
    for j, base in ((2, 24), (3, 32), (4, 40), (5, 48)):
        a("s_mov_b32 s53, %d" % (j * 2048))
        a("buffer_load_dwordx4 v[%d:%d], v5, s[12:15], s53 offen" % (base, base + 3))
        a("buffer_load_dwordx4 v[%d:%d], v5, s[12:15], s53 offen offset:16" % (base + 4, base + 7))
    a("buffer_load_dwordx4 v[12:15], v4, s[24:27], 0 offen")
    a("s_waitcnt vmcnt(0)")
    a.label("L_k5_p1")
    st5(a)
    for i in range(4):
        unpack_bf16(a, 8 + i, 16 + 2 * i, 17 + 2 * i)
    for p in range(1, nsplit):
        for i in range(8):
            a("v_add_f32 v%d, v%d, v%d" % (64 + i, 64 + i, 64 + 8 * p + i))
    T = 100
    for i in range(0, 8, 2):
        round_bf16_pair(a, 64 + i, 65 + i, T)
        a("v_mul_f32 v%d, v%d, v%d" % (64 + i, 64 + i, 24 + i))
        a("v_mul_f32 v%d, v%d, v%d" % (65 + i, 65 + i, 25 + i))
        round_bf16_pair(a, 64 + i, 65 + i, T)
        a("v_add_f32 v%d, v%d, v%d" % (16 + i, 16 + i, 64 + i))
        a("v_add_f32 v%d, v%d, v%d" % (17 + i, 17 + i, 65 + i))
        round_bf16_pair(a, 16 + i, 17 + i, T)
    for i in range(8):
        a("v_mov_b32 v%d, v%d" % (72 + i, 16 + i))
    pack8(a, 16, 8)
    a("buffer_store_dwordx4 v[8:11], v3, s[32:35], 0 offen sc1")
    layernorm8(a, 16, T)
    modulate8(a, 16, 40, 32, T)
    pack8(a, 16, 84)
    a("buffer_store_dwordx4 v[84:87], v3, s[36:39], 0 offen sc1")
    for i in range(4):
        unpack_bf16(a, 12 + i, 88 + 2 * i, 89 + 2 * i)
    a("v_mul_f32 v%d, v16, v88" % T)
    for i in range(1, 8):
        a("v_fmac_f32 v%d, v%d, v%d" % (T, 16 + i, 88 + i))
    wave_allreduce(a, T, T + 1)
    round_bf16(a, T)
    a("v_lshrrev_b32 v7, 8, v3")
    a("v_cmp_eq_u32 vcc, 0, v1")
    a("s_and_saveexec_b64 s[48:49], vcc")
    a("buffer_store_dword v%d, v7, s[72:75], 0 offen sc1" % T)
    a("s_mov_b64 exec, s[48:49]")
    for i in range(0, 8, 2):
        a("v_mul_f32 v%d, v%d, v%d" % (16 + i, 16 + i, 48 + i))
        a("v_mul_f32 v%d, v%d, v%d" % (17 + i, 17 + i, 49 + i))
        round_bf16_pair(a, 16 + i, 17 + i, T)
        a("v_add_f32 v%d, v%d, v%d" % (16 + i, 16 + i, 72 + i))
        a("v_add_f32 v%d, v%d, v%d" % (17 + i, 17 + i, 73 + i))
    pack8(a, 16, 92)
    a("buffer_store_dwordx4 v[92:95], v3, s[28:31], 0 offen sc1")
    st5(a)
    signal(a, 76, 0, 5)
    st5(a)
    a("s_cmp_ge_u32 s2, 56")
    a("s_cbranch_scc1 L_k5_done")
    a("s_cmp_ge_u32 s52, 4")
    a("s_cbranch_scc1 L_k5_done")
    a.label("L_k5_p2")
    a("v_mov_b32 v5, v1")
    a("v_and_b32 v6, 15, v5")
    a("v_lshrrev_b32 v7, 4, v5")
    wait_flags(a, 76, 0, 256, 52, 28)
    st5(a)
    K, T = 8, 16
    a("v_lshlrev_b32 v%d, 5, v0" % T)
    a("buffer_load_dwordx4 v[%d:%d], v%d, s[72:75], 0 offen sc1" % (K, K + 3, T))
    a("buffer_load_dwordx4 v[%d:%d], v%d, s[72:75], 0 offen offset:16 sc1" % (K + 4, K + 7, T))
    a("v_lshlrev_b32 v%d, 3, v0" % (T + 1))
    a("v_sub_u32 v%d, 2047, v%d" % (T + 1, T + 1))
    a("v_lshrrev_b32 v%d, 6, v0" % (T + 4))
    a("v_lshlrev_b32 v%d, 2, v%d" % (T + 4, T + 4))
    a("s_waitcnt vmcnt(0)")
    st5(a)
    topk8_fast(a, TK, K, T, 40, 32)
    st5(a)
    a("v_and_b32 v16, 7, v6")
    a("v_mov_b32 v17, s40")
    for j in range(1, 8):
        a("v_mov_b32 v18, s%d" % (40 + j))
        a("v_cmp_eq_u32 vcc, %d, v16" % j)
        a("s_nop 1")
        a("v_cndmask_b32 v17, v17, v18, vcc")
    a("v_lshlrev_b32 v17, 10, v17")
    a("v_lshl_add_u32 v17, v7, 4, v17")
    XF = 64
    for st in range(16):
        a("buffer_load_dwordx4 v[%d:%d], v17, s[36:39], 0 offen offset:%d sc1" % (XF + 4 * st, XF + 4 * st + 3, 64 * st))
    a("v_lshrrev_b32 v18, 2, v6")
    a("v_lshl_add_u32 v18, v7, 3, v18")
    a("v_lshlrev_b32 v19, 6, v18")
    a("v_and_b32 v20, 3, v6")
    a("v_lshl_add_u32 v19, v20, 3, v19")
    a("s_and_b32 s54, s52, 1")
    a("s_lshl_b32 s54, s54, 5")
    a("s_lshr_b32 s55, s52, 1")
    a("s_lshl_b32 s55, s55, 15")
    a("s_add_u32 s54, s54, s55")
    a("v_add_u32 v19, s54, v19")
    AF = 32
    for st in range(16):
        f = AF + 4 * (st & 7)
        a("ds_read_b64_tr_b16 v[%d:%d], v19 offset:%d" % (f, f + 1, GB + st * 2048))
        a("ds_read_b64_tr_b16 v[%d:%d], v19 offset:%d" % (f + 2, f + 3, GB + st * 2048 + 256))
        if (st & 3) == 3:
            a("s_waitcnt lgkmcnt(0) vmcnt(%d)" % (15 - st))
            for s2 in range(st - 3, st + 1):
                f2 = AF + 4 * (s2 & 7)
                c = "0" if s2 == 0 else "v[28:31]"
                a("v_mfma_f32_16x16x32_bf16 v[28:31], v[%d:%d], v[%d:%d], %s" % (
                    f2, f2 + 3, XF + 4 * s2, XF + 4 * s2 + 3, c))
    a("s_nop 15")
    st5(a)
    a("v_lshlrev_b32 v20, 7, v6")
    a("v_lshl_add_u32 v20, v7, 4, v20")
    a("s_and_b32 s54, s52, 1")
    a("s_lshl_b32 s54, s54, 6")
    a("s_lshr_b32 s55, s52, 1")
    a("s_lshl_b32 s55, s55, 11")
    a("s_add_u32 s54, s54, s55")
    a("v_add_u32 v20, s54, v20")
    a("ds_write_b128 v20, v[28:31] offset:%d" % XB)
    a("s_waitcnt lgkmcnt(0)")
    a("s_barrier")
    a("v_lshlrev_b32 v20, 2, v0")
    a("ds_read_b32 v21, v20 offset:%d" % XB)
    a("ds_read_b32 v22, v20 offset:%d" % (XB + 2048))
    a("s_waitcnt lgkmcnt(0)")
    round_bf16_pair(a, 21, 22, 24)
    silu_reg(a, 21, 24)
    round_bf16(a, 21)
    a("v_mul_f32 v21, v21, v22")
    a("v_cvt_pk_bf16_f32 v21, v21, v21")
    a("v_lshlrev_b32 v20, 1, v0")
    a("ds_write_b16 v20, v21 offset:%d" % GUB)
    a("s_waitcnt lgkmcnt(0)")
    a("s_barrier")
    a("v_lshlrev_b32 v20, 6, v16")
    a("v_lshl_add_u32 v20, v7, 4, v20")
    a("ds_read_b128 v[24:27], v20 offset:%d" % GUB)
    a("s_mov_b32 s53, 1056")
    a("v_mul_lo_u32 v21, v18, s53")
    a("v_and_b32 v22, 3, v6")
    a("v_lshl_add_u32 v21, v22, 3, v21")
    a("s_lshl_b32 s54, s52, 8")
    a("s_add_u32 s54, s54, %d" % DB)
    a("v_add_u32 v21, s54, v21")
    for tl in range(8):
        f = AF + 4 * tl
        a("ds_read_b64_tr_b16 v[%d:%d], v21 offset:%d" % (f, f + 1, tl * 32))
        a("ds_read_b64_tr_b16 v[%d:%d], v21 offset:%d" % (f + 2, f + 3, tl * 32 + 4 * 1056))
        if tl == 3:
            a("s_waitcnt lgkmcnt(0)")
    a("s_waitcnt lgkmcnt(0)")
    for tl in range(8):
        f = AF + 4 * tl
        d = XF + 4 * tl
        a("v_mfma_f32_16x16x32_bf16 v[%d:%d], v[%d:%d], v[24:27], 0" % (d, d + 3, f, f + 3))
    a("v_lshlrev_b32 v20, 11, v6")
    a("v_lshl_add_u32 v20, v7, 4, v20")
    a("s_lshl_b32 s54, s2, 14")
    a("s_lshl_b32 s55, s52, 9")
    a("s_add_u32 s54, s54, s55")
    a("v_add_u32 v20, s54, v20")
    a("v_cmp_gt_u32 vcc, 8, v6")
    a("s_nop 7")
    a("s_and_saveexec_b64 s[48:49], vcc")
    for tl in range(8):
        d = XF + 4 * tl
        a("buffer_store_dwordx4 v[%d:%d], v20, s[92:95], 0 offen offset:%d sc1" % (d, d + 3, tl * 64))
    a("s_mov_b64 exec, s[48:49]")
    st5(a)
    signal(a, 76, FLAG_1_OFF, 5)
    st5(a)
    a("s_cmp_ge_u32 s2, 16")
    a("s_cbranch_scc1 L_k5_done")
    a("s_lshr_b32 s53, s2, 1")
    a("s_mov_b32 s54, s40")
    for j in range(1, 8):
        a("s_cmp_eq_u32 s53, %d" % j)
        a("s_cselect_b32 s54, s%d, s54" % (40 + j))
    a("s_lshl_b32 s53, s2, 8")
    a("v_add_u32 v1, s53, v0")
    a("v_lshlrev_b32 v2, 2, v1")
    a("v_and_b32 v3, 511, v1")
    a("s_lshl_b32 s55, s54, 10")
    a("v_lshl_add_u32 v4, v3, 1, s55")
    a("s_lshl_b32 s55, s54, 2")
    a("v_mov_b32 v5, s55")
    a("v_lshlrev_b32 v6, 2, v3")
    a("v_and_b32 v7, 0xfffffffc, v4")
    a("buffer_load_dword v67, v7, s[36:39], 0 offen sc1")
    a("buffer_load_dword v68, v7, s[32:35], 0 offen sc1")
    a("buffer_load_dword v69, v5, s[72:75], 0 offen sc1")
    a("s_mov_b32 s53, %d" % (5 * 2048))
    a("buffer_load_dword v70, v6, s[12:15], s53 offen")
    wait_flags(a, 76, FLAG_1_OFF, 56, 52, 72)
    st5(a)
    for b in range(56):
        a("s_mov_b32 s53, %d" % (b * 16384))
        a("buffer_load_dword v%d, v2, s[92:95], s53 offen sc1" % (8 + b))
    a("s_waitcnt vmcnt(56)")
    a("v_and_b32 v7, 1, v3")
    a("v_lshlrev_b32 v7, 4, v7")
    a("v_lshrrev_b32 v67, v7, v67")
    a("v_lshrrev_b32 v68, v7, v68")
    a("v_lshlrev_b32 v67, 16, v67")
    a("v_lshlrev_b32 v68, 16, v68")
    a("v_mul_f32 v71, %s, v69" % NLOG2E)
    a("v_exp_f32 v71, v71")
    a("s_nop 0")
    a("v_add_f32 v71, 1.0, v71")
    a("v_rcp_f32 v71, v71")
    a("s_nop 0")
    round_bf16(a, 71)
    a("s_waitcnt vmcnt(0)")
    regs = list(range(8, 64))
    while len(regs) > 1:
        nxt = []
        for i in range(0, len(regs) - 1, 2):
            a("v_add_f32 v%d, v%d, v%d" % (regs[i], regs[i], regs[i + 1]))
            nxt.append(regs[i])
        if len(regs) & 1:
            nxt.append(regs[-1])
        regs = nxt
    y = regs[0]
    round_bf16(a, y)
    a("v_mul_f32 v%d, v%d, v71" % (y, y))
    round_bf16(a, y)
    a("v_add_f32 v%d, v%d, v67" % (y, y))
    round_bf16(a, y)
    a("v_mul_f32 v%d, v%d, v70" % (y, y))
    round_bf16(a, y)
    a("v_add_f32 v%d, v%d, v68" % (y, y))
    a("v_cvt_pk_bf16_f32 v%d, v%d, v%d" % (y, y, y))
    a("buffer_store_short v%d, v4, s[28:31], 0 offen sc1" % y)
    a("s_waitcnt vmcnt(0)")
    st5(a)
    a.label("L_k5_done")
    a("s_endpgm")
    return name, 128
```

```python
from asmlib import *
import os
DIAG = os.environ.get("DIAG4", "0") == "1"
_n = [0]


def stamp(a):
    if DIAG:
        a("s_memrealtime s[%d:%d]" % (60 + 2 * _n[0], 61 + 2 * _n[0]))
        _n[0] += 1


def flush(a):
    if not DIAG:
        return
    a("s_waitcnt lgkmcnt(0) vmcnt(0)")
    stamp(a)
    a("s_waitcnt lgkmcnt(0)")
    a("s_add_u32 s56, s6, 0x3000000")
    a("s_addc_u32 s57, s7, 0")
    a("s_mov_b32 s58, 0x100000")
    a("s_mov_b32 s59, 0x00020000")
    a("s_lshl_b32 s54, s2, 3")
    a("s_add_u32 s54, s54, s31")
    a("s_lshl_b32 s54, s54, 6")
    a("v_mov_b32 v4, s54")
    for i in range(_n[0]):
        a("v_mov_b32 v5, s%d" % (60 + 2 * i))
        a("buffer_store_dword v5, v4, s[56:59], 0 offen offset:%d" % (4 * i))

ACC = 64
NST = 5
STAGE = 32768
FR = 32
NSET = 2


def gen_oproj(a):
    name = "k4_oproj_kernel"
    kernel_header(a, name)
    a("s_cmp_ge_u32 s2, 256")
    a("s_cbranch_scc1 L_k4_done")
    oproj_body(a, False)
    a.label("L_k4_done")
    a("s_endpgm")
    return name, 112


def oproj_body(a, merged):
    stamp(a)
    a("s_load_dwordx2 s[4:5], s[0:1], %d" % KA["wo"])
    a("s_load_dwordx2 s[6:7], s[0:1], %d" % KA["ws"])
    a("s_and_b32 s30, s2, 3")
    a("s_lshr_b32 s28, s2, 2")
    a("s_and_b32 s28, s28, 1")
    a("s_lshl_b32 s28, s28, 3")
    a("s_lshr_b32 s29, s2, 3")
    a("s_and_b32 s29, s29, 7")
    a("s_add_u32 s28, s28, s29")
    a("s_lshr_b32 s29, s2, 6")
    a("v_lshrrev_b32 v4, 6, v0")
    a("v_and_b32 v5, 63, v0")
    a("v_readfirstlane_b32 s31, v4")
    a("v_lshrrev_b32 v6, 5, v5")
    a("v_and_b32 v7, 31, v5")
    a("v_and_b32 v8, 15, v5")
    a("v_lshrrev_b32 v9, 4, v5")
    a("s_waitcnt lgkmcnt(0)")
    a("s_lshl_b32 s32, s28, 20")
    a("s_lshl_b32 s33, s30, 11")
    a("s_add_u32 s32, s32, s33")
    a("s_add_u32 s34, s32, 0x%x" % WS_O)
    a("s_add_u32 s8, s6, s34")
    a("s_addc_u32 s9, s7, 0")
    a("s_sub_u32 s10, %d, s33" % (128 * 8192))
    a("s_mov_b32 s11, 0x00020000")
    a("s_lshl_b32 s32, s30, 20")
    a("s_lshl_b32 s33, s29, 8")
    a("s_add_u32 s32, s32, s33")
    a("s_add_u32 s12, s4, s32")
    a("s_addc_u32 s13, s5, 0")
    a("s_sub_u32 s14, %d, s33" % (1024 * 1024))
    a("s_mov_b32 s15, 0x00020000")
    a("s_lshl_b32 s32, s30, 22")
    a("s_lshl_b32 s33, s28, 18")
    a("s_add_u32 s32, s32, s33")
    a("s_lshl_b32 s33, s29, 9")
    a("s_add_u32 s32, s32, s33")
    a("s_add_u32 s32, s32, 0x%x" % WS_PART)
    a("s_add_u32 s16, s6, s32")
    a("s_addc_u32 s17, s7, 0")
    a("s_sub_u32 s18, %d, s33" % (128 * 2048))
    a("s_mov_b32 s19, 0x00020000")
    a("s_and_b32 s35, s31, 1")
    a("s_lshr_b32 s36, s31, 1")
    a("v_lshrrev_b32 v10, 3, v5")
    a("s_lshl_b32 s37, s31, 4")
    a("v_add_u32 v10, s37, v10")
    a("v_and_b32 v11, 7, v5")
    for ii in range(2):
        a("v_add_u32 v12, %d, v10" % (8 * ii))
        a("v_lshrrev_b32 v13, 1, v12")
        a("v_and_b32 v13, 7, v13")
        a("v_xor_b32 v13, v13, v11")
        a("v_lshlrev_b32 v13, 4, v13")
        a("v_lshl_add_u32 v%d, v12, 13, v13" % (16 + ii))
    a("v_subrev_u32 v17, 1024, v17")
    a("s_lshl_b32 s37, s31, 3")
    a("v_add_u32 v10, s37, v9")
    a("v_lshlrev_b32 v11, 2, v9")
    a("v_xor_b32 v11, v11, v8")
    a("v_lshlrev_b32 v11, 4, v11")
    a("v_lshl_add_u32 v18, v10, 10, v11")
    a("v_add_u32 v19, %d, v18" % (4096 - 1024))
    a("s_lshl_b32 s37, s35, 6")
    a("v_add_u32 v10, s37, v7")
    a("v_lshrrev_b32 v11, 1, v10")
    a("v_and_b32 v11, 7, v11")
    a("v_xor_b32 v11, v11, v6")
    a("v_lshlrev_b32 v11, 4, v11")
    a("v_lshl_add_u32 v20, v10, 7, v11")
    for s in range(1, 4):
        a("v_xor_b32 v%d, %d, v20" % (20 + s, s << 5))
    a("v_lshrrev_b32 v10, 2, v8")
    a("v_lshl_add_u32 v11, v6, 3, v10")
    a("v_lshlrev_b32 v11, 8, v11")
    a("v_and_b32 v12, 1, v9")
    a("v_lshl_add_u32 v11, v12, 5, v11")
    a("v_and_b32 v12, 3, v8")
    a("v_lshl_add_u32 v11, v12, 3, v11")
    a("v_xor_b32 v12, s36, v10")
    a("v_lshl_add_u32 v24, v12, 6, v11")
    a("v_add_u32 v24, 16384, v24")
    for s in range(5):
        a("v_add_u32 v%d, 0x10000, v%d" % (25 + s, 20 + s))
        a("v_add_u32 v%d, 0x20000, v%d" % (104 + s, 20 + s))
    a("s_lshl_b32 s37, s35, 6")
    a("v_add_u32 v10, s37, v7")
    a("v_lshlrev_b32 v10, 11, v10")
    a("s_lshl_b32 s37, s36, 7")
    a("v_add_u32 v10, s37, v10")
    a("v_lshl_add_u32 v30, v6, 4, v10")
    a("v_add_u32 v31, %d, v30" % (32 * 2048))
    a("s_lshl_b32 s38, s31, 11")

    sc = " sc1" if (merged and os.environ.get("ASC1", "1") == "1") else ""
    vmo = []

    def dma_a(kstep):
        sb = (kstep % NST) * STAGE
        vmo.extend([kstep] * 2)
        return ["s_add_u32 s39, s38, %d" % sb,
                "s_mov_b32 m0, s39",
                "s_mov_b32 s40, %d" % (kstep * 128),
                "buffer_load_dwordx4 v16, s[8:11], s40 offen%s lds" % sc,
                "buffer_load_dwordx4 v17, s[8:11], s40 offen offset:1024%s lds" % sc]

    def dma_b(kstep):
        sb = (kstep % NST) * STAGE
        vmo.extend([kstep] * 2)
        return ["s_add_u32 s39, s38, %d" % (sb + 16384),
                "s_mov_b32 m0, s39",
                "s_mov_b32 s41, %d" % (kstep * 65536),
                "buffer_load_dwordx4 v18, s[12:15], s41 offen lds",
                "buffer_load_dwordx4 v19, s[12:15], s41 offen offset:1024 lds"]

    def dma(kstep):
        return dma_a(kstep) + dma_b(kstep)

    def vm_wait(upto):
        last = max(i for i, k in enumerate(vmo) if k <= upto)
        return len(vmo) - 1 - last

    if merged:
        for k in range(4):
            for x in dma_b(k):
                a(x)
        a("s_add_u32 s44, s6, 0x%x" % (WS_FLAG + FLAG_O_OFF))
        a("s_addc_u32 s45, s7, 0")
        a("s_mov_b32 s46, 16384")
        a("s_mov_b32 s47, 0x00020000")
        a("s_cmp_lg_u32 s31, 0")
        a("s_cbranch_scc1 L_k4_polldone")
        a("s_lshr_b32 s42, s28, 1")
        a("s_lshl_b32 s42, s42, 11")
        a("s_lshl_b32 s43, s30, 9")
        a("s_add_u32 s42, s42, s43")
        a("v_and_b32 v33, 7, v5")
        a("v_lshl_add_u32 v33, v33, 6, s42")
        a.label("L_k4_poll")
        a("buffer_load_dword v32, v33, s[44:47], 0 offen sc1")
        a("s_waitcnt vmcnt(0)")
        a("v_cmp_ne_u32 vcc, 1, v32")
        a("s_nop 1")
        a("s_cbranch_vccz L_k4_polldone")
        a("s_sleep 1")
        a("s_branch L_k4_poll")
        a.label("L_k4_polldone")
        a("s_barrier")
        for k in range(4):
            for x in dma_a(k):
                a(x)
    else:
        for k in range(4):
            for x in dma(k):
                a(x)
    NS = 3
    FS = 32
    ACCR = 72

    def reads(u):
        j, s = u >> 2, u & 3
        sb = (j % NST) * STAGE
        ba, aa = 20, 24
        if sb >= 131072:
            sb -= 131072
            ba, aa = 104, 108
        elif sb >= 65536:
            sb -= 65536
            ba, aa = 25, 29
        f = FS + 12 * (u % NS)
        return ["ds_read_b64_tr_b16 v[%d:%d], v%d offset:%d" % (f, f + 1, aa, sb + s * 4096),
                "ds_read_b64_tr_b16 v[%d:%d], v%d offset:%d" % (f + 2, f + 3, aa, sb + s * 4096 + 1024),
                "ds_read_b128 v[%d:%d], v%d offset:%d" % (f + 4, f + 7, ba + s, sb),
                "ds_read_b128 v[%d:%d], v%d offset:%d" % (f + 8, f + 11, ba + s, sb + 4096)]

    stamp(a)
    a("s_waitcnt vmcnt(%d)" % vm_wait(1))
    a("s_barrier")
    stamp(a)
    for r in reads(0) + reads(1):
        a(r)
    for u in range(64):
        j, s = u >> 2, u & 3
        if s == 0 and j > 0:
            a("s_waitcnt vmcnt(%d)" % vm_wait(min(15, j + 1)))
            a("s_barrier")
            if j in (4, 8, 12):
                stamp(a)
        if u + 2 < 64:
            for r in reads(u + 2):
                a(r)
            a("s_waitcnt lgkmcnt(8)")
        elif u + 1 < 64:
            a("s_waitcnt lgkmcnt(4)")
        else:
            a("s_waitcnt lgkmcnt(0)")
        f = FS + 12 * (u % NS)
        for mt2 in range(2):
            d = ACCR + 16 * mt2
            c = "0" if u == 0 else "v[%d:%d]" % (d, d + 15)
            a("v_mfma_f32_32x32x16_bf16 v[%d:%d], v[%d:%d], v[%d:%d], %s" % (
                d, d + 15, f, f + 3, f + 4 + 4 * mt2, f + 7 + 4 * mt2, c))
            if s == 0 and mt2 == 0 and j + 4 < 16:
                for x in dma(j + 4):
                    a(x)
    a("s_nop 15")
    a("s_nop 7")
    stamp(a)
    for mt2 in range(2):
        d = ACCR + 16 * mt2
        for q in range(4):
            a("buffer_store_dwordx4 v[%d:%d], v%d, s[16:19], 0 offen offset:%d %s" % (
                d + 4 * q, d + 4 * q + 3, 30 + mt2, q * 32, os.environ.get("K4ST", "")))
    flush(a)
```

```python
from asmlib import *

LOG2E = "0x3fb8aa3b"
NLOG2E = "0xbfb8aa3b"


def silu_reg(a, x, t):
    a("v_mul_f32 v%d, %s, v%d" % (t, NLOG2E, x))
    a("v_exp_f32 v%d, v%d" % (t, t))
    a("s_nop 0")
    a("v_add_f32 v%d, 1.0, v%d" % (t, t))
    a("v_rcp_f32 v%d, v%d" % (t, t))
    a("s_nop 0")
    a("v_mul_f32 v%d, v%d, v%d" % (x, x, t))


def gen_mod(a):
    name = "k1_mod_kernel"
    kernel_header(a, name)
    a("s_cmp_ge_u32 s2, 48")
    a("s_cbranch_scc1 L_k1_done")
    a("s_load_dwordx4 s[4:7], s[0:1], %d" % KA["c"])
    a("s_load_dwordx2 s[20:21], s[0:1], %d" % KA["ws"])
    a("v_and_b32 v1, 7, v0")
    a("v_lshrrev_b32 v2, 3, v0")
    a("s_waitcnt lgkmcnt(0)")
    srd_from(a, 8, 4, 0, 1024)
    srd_from(a, 12, 6, 0, 512 * 6144)
    srd_from(a, 16, 20, WS_MOD, 3072 * 4)
    a("s_cmp_lg_u32 s2, 0")
    a("s_cbranch_scc1 L_k1_noflag")
    srd_from(a, 28, 20, WS_FLAG, FLAG_BYTES)
    a("v_lshlrev_b32 v3, 6, v0")
    a("v_mov_b32 v4, 0")
    a("buffer_store_dword v4, v3, s[28:31], 0 offen")
    a("s_mov_b32 s22, %d" % FLAG_O_OFF)
    a("buffer_store_dword v4, v3, s[28:31], s22 offen")
    a("v_and_b32 v3, 0xfff, v3")
    a("s_mov_b32 s22, %d" % FLAG_1_OFF)
    a("buffer_store_dword v4, v3, s[28:31], s22 offen")
    a.label("L_k1_noflag")
    a("v_lshlrev_b32 v3, 5, v2")
    a("buffer_load_dwordx4 v[8:11], v3, s[8:11], 0 offen")
    a("buffer_load_dwordx4 v[12:15], v3, s[8:11], 0 offen offset:16")
    a("s_mov_b32 s22, %d" % (16 * 6144))
    a("v_mul_lo_u32 v4, v2, s22")
    a("v_lshlrev_b32 v5, 4, v1")
    a("v_add_u32 v4, v4, v5")
    a("s_lshl_b32 s23, s2, 7")
    a("v_add_u32 v4, s23, v4")
    for i in range(16):
        a("s_mov_b32 s24, %d" % (i * 6144))
        a("buffer_load_dwordx4 v[%d:%d], v4, s[12:15], s24 offen" % (32 + 4 * i, 35 + 4 * i))
    a("s_waitcnt vmcnt(16)")
    for i in range(8):
        unpack_bf16(a, 8 + i, 16 + 2 * i, 17 + 2 * i)
    for i in range(16):
        silu_reg(a, 16 + i, 104)
        round_bf16(a, 16 + i)
    for j in range(8):
        a("v_mov_b32 v%d, 0" % (96 + j))
    for i in range(16):
        a("s_waitcnt vmcnt(%d)" % (15 - i))
        for d in range(4):
            unpack_bf16(a, 32 + 4 * i + d, 104, 105)
            a("v_fmac_f32 v%d, v%d, v104" % (96 + 2 * d, 16 + i))
            a("v_fmac_f32 v%d, v%d, v105" % (97 + 2 * d, 16 + i))
    a("v_lshlrev_b32 v6, 8, v2")
    a("v_lshlrev_b32 v7, 5, v1")
    a("v_add_u32 v6, v6, v7")
    a("ds_write_b128 v6, v[96:99]")
    a("ds_write_b128 v6, v[100:103] offset:16")
    a("s_waitcnt lgkmcnt(0)")
    a("s_barrier")
    a("v_cmp_gt_u32 vcc, 64, v0")
    a("s_and_saveexec_b64 s[26:27], vcc")
    a("s_cbranch_execz L_k1_done")
    a("v_lshlrev_b32 v6, 2, v0")
    for g in range(32):
        a("ds_read_b32 v%d, v6 offset:%d" % (32 + g, g * 256))
    a("s_waitcnt lgkmcnt(0)")
    for g in range(1, 32):
        a("v_add_f32 v32, v32, v%d" % (32 + g))
    round_bf16(a, 32)
    a("s_lshl_b32 s23, s2, 8")
    a("v_add_u32 v6, s23, v6")
    a("buffer_store_dword v32, v6, s[16:19], 0 offen")
    a.label("L_k1_done")
    a("s_endpgm")
    return name, 112


def layernorm8(a, X, T):
    s, t, mean, meanb, den, rc = T, T + 1, T + 2, T + 3, T + 4, T + 5
    D = T + 6
    a("v_add_f32 v%d, v%d, v%d" % (s, X, X + 1))
    for i in range(2, 8):
        a("v_add_f32 v%d, v%d, v%d" % (s, s, X + i))
    wave_allreduce(a, s, t)
    a("v_mul_f32 v%d, 0x3b000000, v%d" % (mean, s))
    a("v_mov_b32 v%d, v%d" % (meanb, mean))
    round_bf16(a, meanb)
    a("v_mov_b32 v%d, 0" % s)
    for i in range(8):
        a("v_sub_f32 v%d, v%d, v%d" % (D, X + i, mean))
        a("v_fmac_f32 v%d, v%d, v%d" % (s, D, D))
    wave_allreduce(a, s, t)
    a("v_mul_f32 v%d, 0x3b000000, v%d" % (den, s))
    round_bf16(a, den)
    a("v_add_f32 v%d, 0x3727c5ac, v%d" % (den, den))
    round_bf16(a, den)
    a("v_sqrt_f32 v%d, v%d" % (den, den))
    a("s_nop 0")
    round_bf16(a, den)
    a("v_rcp_f32 v%d, v%d" % (rc, den))
    a("s_nop 0")
    for i in range(0, 8, 2):
        a("v_sub_f32 v%d, v%d, v%d" % (X + i, X + i, meanb))
        a("v_sub_f32 v%d, v%d, v%d" % (X + i + 1, X + i + 1, meanb))
        round_bf16_pair(a, X + i, X + i + 1, t)
        for e in range(2):
            x = X + i + e
            a("v_mul_f32 v%d, v%d, v%d" % (D, x, rc))
            a("v_fma_f32 v%d, -v%d, v%d, v%d" % (D + 1, D, den, x))
            a("v_fma_f32 v%d, v%d, v%d, v%d" % (x, D + 1, rc, D))
        round_bf16_pair(a, X + i, X + i + 1, t)


def modulate8(a, X, SC, SH, t):
    for i in range(0, 8, 2):
        a("v_add_f32 v%d, 1.0, v%d" % (SC + i, SC + i))
        a("v_add_f32 v%d, 1.0, v%d" % (SC + i + 1, SC + i + 1))
        round_bf16_pair(a, SC + i, SC + i + 1, t)
        a("v_mul_f32 v%d, v%d, v%d" % (X + i, X + i, SC + i))
        a("v_mul_f32 v%d, v%d, v%d" % (X + i + 1, X + i + 1, SC + i + 1))
        round_bf16_pair(a, X + i, X + i + 1, t)
        a("v_add_f32 v%d, v%d, v%d" % (X + i, X + i, SH + i))
        a("v_add_f32 v%d, v%d, v%d" % (X + i + 1, X + i + 1, SH + i + 1))
        round_bf16_pair(a, X + i, X + i + 1, t)


def pack8(a, X, P):
    for i in range(4):
        a("v_cvt_pk_bf16_f32 v%d, v%d, v%d" % (P + i, X + 2 * i, X + 2 * i + 1))


def gen_ln1(a):
    name = "k2_ln1_kernel"
    kernel_header(a, name)
    a("s_cmp_ge_u32 s2, 256")
    a("s_cbranch_scc1 L_k2_done")
    a("s_load_dwordx2 s[4:5], s[0:1], %d" % KA["x"])
    a("s_load_dwordx2 s[20:21], s[0:1], %d" % KA["ws"])
    a("v_and_b32 v1, 63, v0")
    a("v_lshrrev_b32 v2, 6, v0")
    a("s_waitcnt lgkmcnt(0)")
    srd_from(a, 8, 4, 0, 2048 * 1024)
    srd_from(a, 12, 20, WS_MOD, 3072 * 4)
    srd_from(a, 16, 20, WS_H1, 2048 * 1024)
    a("s_lshl_b32 s22, s2, 13")
    a("v_lshlrev_b32 v3, 10, v2")
    a("v_lshlrev_b32 v4, 4, v1")
    a("v_add3_u32 v3, v3, v4, s22")
    a("buffer_load_dwordx4 v[8:11], v3, s[8:11], 0 offen")
    a("v_lshlrev_b32 v5, 5, v1")
    a("buffer_load_dwordx4 v[24:27], v5, s[12:15], 0 offen")
    a("buffer_load_dwordx4 v[28:31], v5, s[12:15], 0 offen offset:16")
    a("buffer_load_dwordx4 v[32:35], v5, s[12:15], 0 offen offset:2048")
    a("buffer_load_dwordx4 v[36:39], v5, s[12:15], 0 offen offset:2064")
    a("s_waitcnt vmcnt(4)")
    for i in range(4):
        unpack_bf16(a, 8 + i, 16 + 2 * i, 17 + 2 * i)
    layernorm8(a, 16, 40)
    a("s_waitcnt vmcnt(0)")
    modulate8(a, 16, 32, 24, 40)
    pack8(a, 16, 8)
    a("s_lshl_b32 s22, s2, 3")
    a("v_add_u32 v40, s22, v2")
    a("v_lshrrev_b32 v41, 5, v40")
    a("v_lshlrev_b32 v41, 15, v41")
    a("v_lshrrev_b32 v42, 2, v1")
    a("v_lshl_add_u32 v41, v42, 11, v41")
    a("v_bfe_u32 v42, v40, 4, 1")
    a("v_lshl_add_u32 v41, v42, 10, v41")
    a("v_and_b32 v42, 1, v1")
    a("v_lshl_add_u32 v41, v42, 9, v41")
    a("v_and_b32 v42, 15, v40")
    a("v_lshl_add_u32 v41, v42, 4, v41")
    a("v_bfe_u32 v42, v1, 1, 1")
    a("v_lshl_add_u32 v41, v42, 3, v41")
    a("buffer_store_dwordx2 v[8:9], v41, s[16:19], 0 offen")
    a("buffer_store_dwordx2 v[10:11], v41, s[16:19], 0 offen offset:256")
    a.label("L_k2_done")
    a("s_endpgm")
    return name, 56


def gen_fin(a, nsplit=4):
    name = "k5_fin_kernel"
    kernel_header(a, name)
    a("s_cmp_ge_u32 s2, 256")
    a("s_cbranch_scc1 L_k5_done")
    a("s_load_dwordx2 s[4:5], s[0:1], %d" % KA["x"])
    a("s_load_dwordx2 s[6:7], s[0:1], %d" % KA["wr"])
    a("s_load_dwordx2 s[40:41], s[0:1], %d" % KA["out"])
    a("s_load_dwordx2 s[20:21], s[0:1], %d" % KA["ws"])
    a("v_and_b32 v1, 63, v0")
    a("v_lshrrev_b32 v2, 6, v0")
    a("s_waitcnt lgkmcnt(0)")
    srd_from(a, 8, 4, 0, 2048 * 1024)
    srd_from(a, 12, 20, WS_MOD, 3072 * 4)
    srd_from(a, 16, 20, WS_PART, nsplit * 2048 * 2048)
    srd_from(a, 24, 6, 0, 1024)
    srd_from(a, 28, 40, 0, 2048 * 1024)
    srd_from(a, 32, 20, WS_X1, 2048 * 1024)
    srd_from(a, 36, 20, WS_H2, 2048 * 1024)
    srd_from(a, 44, 20, WS_R, 2048 * 4)
    a("s_lshl_b32 s22, s2, 13")
    a("v_lshlrev_b32 v3, 10, v2")
    a("v_lshlrev_b32 v4, 4, v1")
    a("v_add3_u32 v3, v3, v4, s22")
    a("v_lshlrev_b32 v6, 1, v3")
    a("buffer_load_dwordx4 v[8:11], v3, s[8:11], 0 offen")
    for p in range(nsplit):
        a("s_mov_b32 s23, 0x%x" % (p * 2048 * 2048))
        a("buffer_load_dwordx4 v[%d:%d], v6, s[16:19], s23 offen" % (64 + 8 * p, 67 + 8 * p))
        a("buffer_load_dwordx4 v[%d:%d], v6, s[16:19], s23 offen offset:16" % (68 + 8 * p, 71 + 8 * p))
    a("v_lshlrev_b32 v5, 5, v1")
    for j, base in ((2, 24), (3, 32), (4, 40), (5, 48)):
        a("s_mov_b32 s23, %d" % (j * 2048))
        a("buffer_load_dwordx4 v[%d:%d], v5, s[12:15], s23 offen" % (base, base + 3))
        a("buffer_load_dwordx4 v[%d:%d], v5, s[12:15], s23 offen offset:16" % (base + 4, base + 7))
    a("buffer_load_dwordx4 v[12:15], v4, s[24:27], 0 offen")
    a("s_waitcnt vmcnt(0)")
    for i in range(4):
        unpack_bf16(a, 8 + i, 16 + 2 * i, 17 + 2 * i)
    for p in range(1, nsplit):
        for i in range(8):
            a("v_add_f32 v%d, v%d, v%d" % (64 + i, 64 + i, 64 + 8 * p + i))
    T = 100
    for i in range(0, 8, 2):
        round_bf16_pair(a, 64 + i, 65 + i, T)
        a("v_mul_f32 v%d, v%d, v%d" % (64 + i, 64 + i, 24 + i))
        a("v_mul_f32 v%d, v%d, v%d" % (65 + i, 65 + i, 25 + i))
        round_bf16_pair(a, 64 + i, 65 + i, T)
        a("v_add_f32 v%d, v%d, v%d" % (16 + i, 16 + i, 64 + i))
        a("v_add_f32 v%d, v%d, v%d" % (17 + i, 17 + i, 65 + i))
        round_bf16_pair(a, 16 + i, 17 + i, T)
    for i in range(8):
        a("v_mov_b32 v%d, v%d" % (72 + i, 16 + i))
    pack8(a, 16, 8)
    a("buffer_store_dwordx4 v[8:11], v3, s[32:35], 0 offen")
    layernorm8(a, 16, T)
    modulate8(a, 16, 40, 32, T)
    pack8(a, 16, 84)
    a("buffer_store_dwordx4 v[84:87], v3, s[36:39], 0 offen")
    for i in range(4):
        unpack_bf16(a, 12 + i, 88 + 2 * i, 89 + 2 * i)
    a("v_mul_f32 v%d, v16, v88" % T)
    for i in range(1, 8):
        a("v_fmac_f32 v%d, v%d, v%d" % (T, 16 + i, 88 + i))
    wave_allreduce(a, T, T + 1)
    round_bf16(a, T)
    a("v_lshrrev_b32 v7, 8, v3")
    a("v_cmp_eq_u32 vcc, 0, v1")
    a("s_and_saveexec_b64 s[48:49], vcc")
    a("buffer_store_dword v%d, v7, s[44:47], 0 offen" % T)
    a("s_mov_b64 exec, s[48:49]")
    for i in range(0, 8, 2):
        a("v_mul_f32 v%d, v%d, v%d" % (16 + i, 16 + i, 48 + i))
        a("v_mul_f32 v%d, v%d, v%d" % (17 + i, 17 + i, 49 + i))
        round_bf16_pair(a, 16 + i, 17 + i, T)
        a("v_add_f32 v%d, v%d, v%d" % (16 + i, 16 + i, 72 + i))
        a("v_add_f32 v%d, v%d, v%d" % (17 + i, 17 + i, 73 + i))
    pack8(a, 16, 92)
    a("buffer_store_dwordx4 v[92:95], v3, s[28:31], 0 offen")
    a.label("L_k5_done")
    a("s_endpgm")
    return name, 112


def topk8(a, srd_r, lds_base, K, T, sidx):
    a("v_lshlrev_b32 v%d, 5, v0" % T)
    a("buffer_load_dwordx4 v[%d:%d], v%d, s[%d:%d], 0 offen" % (K, K + 3, T, srd_r, srd_r + 3))
    a("buffer_load_dwordx4 v[%d:%d], v%d, s[%d:%d], 0 offen offset:16" % (K + 4, K + 7, T, srd_r, srd_r + 3))
    a("v_lshlrev_b32 v%d, 3, v0" % (T + 1))
    a("v_sub_u32 v%d, 2047, v%d" % (T + 1, T + 1))
    a("v_lshrrev_b32 v%d, 6, v0" % (T + 4))
    a("v_lshlrev_b32 v%d, 2, v%d" % (T + 4, T + 4))
    return


def topk8_compute(a, lds_base, K, T, sidx):
    for j in range(8):
        k = K + j
        a("v_ashrrev_i32 v%d, 31, v%d" % (T + 2, k))
        a("v_or_b32 v%d, 0x80000000, v%d" % (T + 2, T + 2))
        a("v_xor_b32 v%d, v%d, v%d" % (k, k, T + 2))
        a("v_and_b32 v%d, 0xffff0000, v%d" % (k, k))
        a("v_subrev_u32 v%d, %d, v%d" % (T + 2, j, T + 1))
        a("v_or_b32 v%d, v%d, v%d" % (k, k, T + 2))
    for rnd in range(8):
        a("v_max_u32 v%d, v%d, v%d" % (T + 2, K, K + 1))
        for j in range(2, 8):
            a("v_max_u32 v%d, v%d, v%d" % (T + 2, T + 2, K + j))
        wave_allreduce(a, T + 2, T + 3, op="v_max_u32")
        a("ds_write_b32 v%d, v%d offset:%d" % (T + 4, T + 2, lds_base + rnd * 16))
        a("s_waitcnt lgkmcnt(0)")
        a("s_barrier")
        a("v_mov_b32 v%d, 0" % (T + 5))
        a("ds_read_b128 v[%d:%d], v%d offset:%d" % (T + 8, T + 11, T + 5, lds_base + rnd * 16))
        a("s_waitcnt lgkmcnt(0)")
        a("v_max_u32 v%d, v%d, v%d" % (T + 2, T + 8, T + 9))
        a("v_max_u32 v%d, v%d, v%d" % (T + 3, T + 10, T + 11))
        a("v_max_u32 v%d, v%d, v%d" % (T + 2, T + 2, T + 3))
        a("s_nop 0")
        a("v_readfirstlane_b32 s%d, v%d" % (sidx + rnd, T + 2))
        if rnd < 7:
            for j in range(8):
                a("v_cmp_eq_u32 vcc, v%d, v%d" % (K + j, T + 2))
                a("s_nop 1")
                a("v_cndmask_b32 v%d, v%d, 0, vcc" % (K + j, K + j))
    for rnd in range(8):
        a("s_and_b32 s%d, s%d, 0xffff" % (sidx + rnd, sidx + rnd))
        a("s_sub_u32 s%d, 2047, s%d" % (sidx + rnd, sidx + rnd))


def gen_gateup(a):
    name = "k6_gu_kernel"
    kernel_header(a, name)
    a("s_cmp_ge_u32 s2, 56")
    a("s_cbranch_scc1 L_k6_done")
    a("s_load_dwordx4 s[4:7], s[0:1], %d" % KA["wg"])
    a("s_load_dwordx2 s[20:21], s[0:1], %d" % KA["ws"])
    a("v_and_b32 v1, 15, v0")
    a("v_lshrrev_b32 v2, 4, v0")
    a("s_waitcnt lgkmcnt(0)")
    srd_from(a, 8, 4, 0, 512 * 3584)
    srd_from(a, 12, 6, 0, 512 * 3584)
    srd_from(a, 16, 20, WS_R, 2048 * 4)
    srd_from(a, 24, 20, WS_H2, 2048 * 1024)
    srd_from(a, 28, 20, WS_GU, 8 * 1792 * 4)
    srd_from(a, 32, 20, WS_IDX, 32)
    K, T = 8, 16
    topk8(a, 16, 0, K, T, 40)
    a("s_mov_b32 s22, %d" % (32 * 3584))
    a("v_mul_lo_u32 v3, v2, s22")
    a("v_lshlrev_b32 v4, 2, v1")
    a("s_lshl_b32 s23, s2, 6")
    a("v_add3_u32 v3, v3, v4, s23")
    for i in range(32):
        a("s_mov_b32 s22, %d" % (i * 3584))
        a("buffer_load_dword v%d, v3, s[8:11], s22 offen" % (64 + i))
    for i in range(24):
        a("s_mov_b32 s22, %d" % (i * 3584))
        a("buffer_load_dword v%d, v3, s[12:15], s22 offen" % (96 + i))
    a("s_waitcnt vmcnt(56)")
    topk8_compute(a, 0, K, T, 40)
    for i in range(24, 32):
        a("s_mov_b32 s22, %d" % (i * 3584))
        a("buffer_load_dword v%d, v3, s[12:15], s22 offen" % (96 + i))
    a("s_cmp_lg_u32 s2, 0")
    a("s_cbranch_scc1 L_k6_noidx")
    for j in range(8):
        a("v_mov_b32 v%d, s%d" % (16 + j, 40 + j))
    a("v_mov_b32 v24, 0")
    a("v_cmp_eq_u32 vcc, 0, v0")
    a("s_and_saveexec_b64 s[48:49], vcc")
    a("buffer_store_dwordx4 v[16:19], v24, s[32:35], 0 offen")
    a("buffer_store_dwordx4 v[20:23], v24, s[32:35], 0 offen offset:16")
    a("s_mov_b64 exec, s[48:49]")
    a.label("L_k6_noidx")
    XB = 1024
    a("v_lshlrev_b32 v5, 2, v0")
    for j in range(8):
        a("s_lshl_b32 s22, s%d, 10" % (40 + j))
        a("buffer_load_dword v%d, v5, s[24:27], s22 offen" % (28 + j))
    a("v_lshlrev_b32 v6, 6, v0")
    a("s_waitcnt vmcnt(0)")
    for j in range(8):
        unpack_bf16(a, 28 + j, 40 + j, 48 + j)
    a("ds_write_b128 v6, v[40:43] offset:%d" % XB)
    a("ds_write_b128 v6, v[44:47] offset:%d" % (XB + 16))
    a("ds_write_b128 v6, v[48:51] offset:%d" % (XB + 32))
    a("ds_write_b128 v6, v[52:55] offset:%d" % (XB + 48))
    a("s_waitcnt lgkmcnt(0)")
    a("s_barrier")
    for i in range(32):
        a("v_mov_b32 v%d, 0" % (128 + i))
    a("v_lshlrev_b32 v6, 10, v2")
    for i in range(32):
        xb = 28 + 8 * (i & 1)
        a("ds_read_b128 v[%d:%d], v6 offset:%d" % (xb, xb + 3, XB + i * 32))
        a("ds_read_b128 v[%d:%d], v6 offset:%d" % (xb + 4, xb + 7, XB + i * 32 + 16))
        unpack_bf16(a, 64 + i, 44, 45)
        unpack_bf16(a, 96 + i, 46, 47)
        a("s_waitcnt lgkmcnt(0)")
        for j in range(8):
            a("v_fmac_f32 v%d, v%d, v44" % (128 + 2 * j, xb + j))
            a("v_fmac_f32 v%d, v%d, v45" % (129 + 2 * j, xb + j))
            a("v_fmac_f32 v%d, v%d, v46" % (144 + 2 * j, xb + j))
            a("v_fmac_f32 v%d, v%d, v47" % (145 + 2 * j, xb + j))
    for i in range(32):
        a("ds_swizzle_b32 v%d, v%d offset:0x401F" % (64 + i, 128 + i))
    a("s_waitcnt lgkmcnt(0)")
    for i in range(32):
        a("v_add_f32 v%d, v%d, v%d" % (128 + i, 128 + i, 64 + i))
    for i in range(32):
        a("v_mov_b32 v%d, v%d" % (64 + i, 128 + i))
    a("s_nop 1")
    for i in range(32):
        a("v_permlane32_swap_b32 v%d, v%d" % (128 + i, 64 + i))
    a("s_nop 1")
    for i in range(32):
        a("v_add_f32 v%d, v%d, v%d" % (128 + i, 128 + i, 64 + i))
    RB = 20480
    a("v_lshrrev_b32 v7, 6, v0")
    a("v_lshlrev_b32 v7, 11, v7")
    a("v_lshlrev_b32 v8, 7, v1")
    a("v_add_u32 v7, v7, v8")
    a("v_and_b32 v9, 63, v0")
    a("v_cmp_gt_u32 vcc, 16, v9")
    a("s_and_saveexec_b64 s[48:49], vcc")
    for q in range(8):
        a("ds_write_b128 v7, v[%d:%d] offset:%d" % (128 + 4 * q, 131 + 4 * q, RB + 16 * q))
    a("s_mov_b64 exec, s[48:49]")
    a("s_waitcnt lgkmcnt(0)")
    a("s_barrier")
    a("v_lshrrev_b32 v10, 5, v0")
    a("v_and_b32 v11, 31, v0")
    a("v_lshrrev_b32 v12, 1, v11")
    a("v_and_b32 v13, 1, v11")
    a("v_lshlrev_b32 v12, 7, v12")
    a("v_lshl_add_u32 v13, v10, 1, v13")
    a("v_lshl_add_u32 v12, v13, 2, v12")
    for w in range(4):
        a("ds_read_b32 v%d, v12 offset:%d" % (16 + w, RB + w * 2048))
        a("ds_read_b32 v%d, v12 offset:%d" % (20 + w, RB + w * 2048 + 64))
    a("s_waitcnt lgkmcnt(0)")
    a("v_add_f32 v16, v16, v17")
    a("v_add_f32 v18, v18, v19")
    a("v_add_f32 v16, v16, v18")
    a("v_add_f32 v20, v20, v21")
    a("v_add_f32 v22, v22, v23")
    a("v_add_f32 v20, v20, v22")
    round_bf16_pair(a, 16, 20, 24)
    silu_reg(a, 16, 24)
    round_bf16(a, 16)
    a("v_mul_f32 v16, v16, v20")
    round_bf16(a, 16)
    a("s_mov_b32 s22, %d" % (1792 * 4))
    a("v_mul_lo_u32 v10, v10, s22")
    a("v_lshl_add_u32 v10, v11, 2, v10")
    a("s_lshl_b32 s23, s2, 7")
    a("v_add_u32 v10, s23, v10")
    a("buffer_store_dword v16, v10, s[28:31], 0 offen")
    a.label("L_k6_done")
    a("s_endpgm")
    return name, 160


def gen_down(a):
    name = "k7_down_kernel"
    kernel_header(a, name)
    a("s_cmp_ge_u32 s2, 32")
    a("s_cbranch_scc1 L_k7_done")
    a("s_load_dwordx2 s[4:5], s[0:1], %d" % KA["wd"])
    a("s_load_dwordx2 s[6:7], s[0:1], %d" % KA["out"])
    a("s_load_dwordx2 s[20:21], s[0:1], %d" % KA["ws"])
    a("v_and_b32 v1, 7, v0")
    a("v_lshrrev_b32 v2, 3, v0")
    a("s_waitcnt lgkmcnt(0)")
    a("s_add_u32 s50, s20, 0x%x" % WS_IDX)
    a("s_addc_u32 s51, s21, 0")
    a("s_load_dwordx8 s[40:47], s[50:51], 0")
    srd_from(a, 8, 4, 0, 1792 * 1024)
    srd_from(a, 12, 6, 0, 2048 * 1024)
    srd_from(a, 16, 20, WS_GU, 8 * 1792 * 4)
    srd_from(a, 24, 20, WS_H2, 2048 * 1024)
    srd_from(a, 28, 20, WS_X1, 2048 * 1024)
    srd_from(a, 32, 20, WS_R, 2048 * 4)
    srd_from(a, 36, 20, WS_MOD, 3072 * 4)
    a("s_mov_b32 s22, %d" % (56 * 1024))
    a("v_mul_lo_u32 v3, v2, s22")
    a("v_lshlrev_b32 v4, 2, v1")
    a("s_lshl_b32 s23, s2, 5")
    a("v_add3_u32 v3, v3, v4, s23")
    a("v_lshlrev_b32 v5, 2, v0")
    for i in range(7):
        for j in range(8):
            a("s_mov_b32 s22, %d" % (j * 1792 * 4 + i * 1024))
            a("buffer_load_dword v%d, v5, s[16:19], s22 offen" % (128 + 8 * i + j))
    a("v_lshlrev_b32 v6, 5, v0")
    a("s_waitcnt vmcnt(0)")
    for i in range(56):
        a("s_mov_b32 s22, %d" % (i * 1024))
        a("buffer_load_dword v%d, v3, s[8:11], s22 offen" % (64 + i))
    for i in range(7):
        a("ds_write_b128 v6, v[%d:%d] offset:%d" % (128 + 8 * i, 131 + 8 * i, i * 8192))
        a("ds_write_b128 v6, v[%d:%d] offset:%d" % (132 + 8 * i, 135 + 8 * i, i * 8192 + 16))
    a("s_waitcnt lgkmcnt(0)")
    a("s_barrier")
    for i in range(16):
        a("v_mov_b32 v%d, 0" % (32 + i))
    a("s_mov_b32 s22, %d" % (56 * 32))
    a("v_mul_lo_u32 v6, v2, s22")
    for i in range(56):
        xb = 16 + 8 * (i & 1)
        a("ds_read_b128 v[%d:%d], v6 offset:%d" % (xb, xb + 3, i * 32))
        a("ds_read_b128 v[%d:%d], v6 offset:%d" % (xb + 4, xb + 7, i * 32 + 16))
        a("s_waitcnt vmcnt(%d)" % (55 - i))
        unpack_bf16(a, 64 + i, 8, 9)
        a("s_waitcnt lgkmcnt(0)")
        for j in range(8):
            a("v_fmac_f32 v%d, v%d, v8" % (32 + 2 * j, xb + j))
            a("v_fmac_f32 v%d, v%d, v9" % (33 + 2 * j, xb + j))
    for off in ("0x201F", "0x401F"):
        for i in range(16):
            a("ds_swizzle_b32 v%d, v%d offset:%s" % (48 + i, 32 + i, off))
        a("s_waitcnt lgkmcnt(0)")
        for i in range(16):
            a("v_add_f32 v%d, v%d, v%d" % (32 + i, 32 + i, 48 + i))
    for i in range(16):
        a("v_mov_b32 v%d, v%d" % (48 + i, 32 + i))
    a("s_nop 1")
    for i in range(16):
        a("v_permlane32_swap_b32 v%d, v%d" % (32 + i, 48 + i))
    a("s_nop 1")
    for i in range(16):
        a("v_add_f32 v%d, v%d, v%d" % (32 + i, 32 + i, 48 + i))
    a("s_barrier")
    a("v_lshrrev_b32 v7, 6, v0")
    a("v_lshlrev_b32 v7, 9, v7")
    a("v_lshlrev_b32 v8, 6, v1")
    a("v_add_u32 v7, v7, v8")
    a("v_and_b32 v9, 63, v0")
    a("v_cmp_gt_u32 vcc, 8, v9")
    a("s_and_saveexec_b64 s[48:49], vcc")
    for q in range(4):
        a("ds_write_b128 v7, v[%d:%d] offset:%d" % (32 + 4 * q, 35 + 4 * q, 16 * q))
    a("s_mov_b64 exec, s[48:49]")
    a("s_waitcnt lgkmcnt(0)")
    a("s_barrier")
    a("v_cmp_gt_u32 vcc, 128, v0")
    a("s_and_saveexec_b64 s[48:49], vcc")
    a("s_cbranch_execz L_k7_done")
    a("v_lshrrev_b32 v10, 4, v0")
    a("v_and_b32 v11, 15, v0")
    a("v_lshrrev_b32 v12, 1, v11")
    a("v_and_b32 v13, 1, v11")
    a("v_lshlrev_b32 v12, 6, v12")
    a("v_lshl_add_u32 v13, v10, 1, v13")
    a("v_lshl_add_u32 v12, v13, 2, v12")
    for w in range(4):
        a("ds_read_b32 v%d, v12 offset:%d" % (16 + w, w * 512))
    a("v_mov_b32 v14, s40")
    for j in range(1, 8):
        a("v_mov_b32 v15, s%d" % (40 + j))
        a("v_cmp_eq_u32 vcc, %d, v10" % j)
        a("s_nop 1")
        a("v_cndmask_b32 v14, v14, v15, vcc")
    a("s_lshl_b32 s23, s2, 4")
    a("v_add_u32 v11, s23, v11")
    a("v_lshlrev_b32 v24, 10, v14")
    a("v_lshl_add_u32 v24, v11, 1, v24")
    a("v_lshlrev_b32 v25, 2, v14")
    a("v_lshlrev_b32 v26, 2, v11")
    a("buffer_load_ushort v27, v24, s[24:27], 0 offen")
    a("buffer_load_ushort v28, v24, s[28:31], 0 offen")
    a("buffer_load_dword v29, v25, s[32:35], 0 offen")
    a("s_mov_b32 s22, %d" % (5 * 2048))
    a("buffer_load_dword v30, v26, s[36:39], s22 offen")
    a("s_waitcnt lgkmcnt(0)")
    a("v_add_f32 v16, v16, v17")
    a("v_add_f32 v18, v18, v19")
    a("v_add_f32 v16, v16, v18")
    round_bf16(a, 16)
    a("s_waitcnt vmcnt(0)")
    a("v_lshlrev_b32 v27, 16, v27")
    a("v_lshlrev_b32 v28, 16, v28")
    a("v_mul_f32 v31, %s, v29" % NLOG2E)
    a("v_exp_f32 v31, v31")
    a("s_nop 0")
    a("v_add_f32 v31, 1.0, v31")
    a("v_rcp_f32 v31, v31")
    a("s_nop 0")
    round_bf16(a, 31)
    a("v_mul_f32 v16, v16, v31")
    round_bf16(a, 16)
    a("v_add_f32 v16, v16, v27")
    round_bf16(a, 16)
    a("v_mul_f32 v16, v16, v30")
    round_bf16(a, 16)
    a("v_add_f32 v16, v16, v28")
    a("v_cvt_pk_bf16_f32 v16, v16, v16")
    a("buffer_store_short v16, v24, s[12:15], 0 offen")
    a.label("L_k7_done")
    a("s_endpgm")
    return name, 192


WS_P6 = WS_PART


def gen_gateup2(a):
    name = "k6_gu_kernel"
    kernel_header(a, name)
    GB, UB, DB, XB = 8192, 40960, 73728, 0
    TK = XB + 4096
    GUB = XB + 6144
    a("s_cmp_ge_u32 s2, 56")
    a("s_cbranch_scc1 L_k6_done")
    a("s_load_dwordx4 s[4:7], s[0:1], %d" % KA["wg"])
    a("s_load_dwordx2 s[50:51], s[0:1], %d" % KA["wd"])
    a("s_load_dwordx2 s[20:21], s[0:1], %d" % KA["ws"])
    a("v_lshrrev_b32 v4, 6, v0")
    a("v_and_b32 v5, 63, v0")
    a("v_readfirstlane_b32 s52, v4")
    a("v_and_b32 v6, 15, v5")
    a("v_lshrrev_b32 v7, 4, v5")
    a("s_waitcnt lgkmcnt(0)")
    srd_from(a, 8, 4, 0, 512 * 3584)
    srd_from(a, 12, 6, 0, 512 * 3584)
    srd_from(a, 16, 20, WS_R, 2048 * 4)
    srd_from(a, 24, 20, WS_H2, 2048 * 1024)
    srd_from(a, 28, 20, WS_P6, 56 * 8 * 512 * 4)
    srd_from(a, 32, 20, WS_IDX, 32)
    srd_from(a, 36, 50, 0, 1792 * 1024)
    K, T = 8, 16
    topk8(a, 16, 0, K, T, 40)
    a("v_lshrrev_b32 v28, 2, v5")
    a("s_lshl_b32 s22, s52, 7")
    a("v_add_u32 v28, s22, v28")
    a("s_mov_b32 s22, 3584")
    a("v_mul_lo_u32 v28, v28, s22")
    a("v_and_b32 v29, 3, v5")
    a("v_lshl_add_u32 v28, v29, 4, v28")
    a("s_lshl_b32 s23, s2, 6")
    a("v_add_u32 v28, s23, v28")
    a("s_lshl_b32 s53, s52, 13")
    for mat, base in ((8, GB), (12, UB)):
        for i in range(8):
            a("s_add_u32 s54, s53, %d" % (base + i * 1024))
            a("s_mov_b32 m0, s54")
            a("s_mov_b32 s55, %d" % (i * 16 * 3584))
            a("buffer_load_dwordx4 v28, s[%d:%d], s55 offen lds" % (mat, mat + 3))
    a("v_lshlrev_b32 v29, 4, v5")
    a("s_lshl_b32 s23, s2, 15")
    a("s_lshl_b32 s54, s52, 13")
    a("s_add_u32 s23, s23, s54")
    a("s_mul_i32 s56, s52, %d" % (8 * 1056))
    for i in range(8):
        a("s_add_u32 s54, s56, %d" % (DB + i * 1056))
        a("s_mov_b32 m0, s54")
        a("s_add_u32 s55, s23, %d" % (i * 1024))
        a("buffer_load_dwordx4 v29, s[36:39], s55 offen lds")
    a("s_waitcnt vmcnt(24)")
    topk8_compute(a, TK, K, T, 40)
    a("s_cmp_lg_u32 s2, 0")
    a("s_cbranch_scc1 L_k6_noidx")
    for j in range(8):
        a("v_mov_b32 v%d, s%d" % (16 + j, 40 + j))
    a("v_mov_b32 v24, 0")
    a("v_cmp_eq_u32 vcc, 0, v0")
    a("s_and_saveexec_b64 s[48:49], vcc")
    a("buffer_store_dwordx4 v[16:19], v24, s[32:35], 0 offen")
    a("buffer_store_dwordx4 v[20:23], v24, s[32:35], 0 offen offset:16")
    a("s_mov_b64 exec, s[48:49]")
    a.label("L_k6_noidx")
    a("v_and_b32 v16, 7, v6")
    a("v_mov_b32 v17, s40")
    for j in range(1, 8):
        a("v_mov_b32 v18, s%d" % (40 + j))
        a("v_cmp_eq_u32 vcc, %d, v16" % j)
        a("s_nop 1")
        a("v_cndmask_b32 v17, v17, v18, vcc")
    a("v_lshlrev_b32 v17, 10, v17")
    a("v_lshl_add_u32 v17, v7, 4, v17")
    XF = 64
    for st in range(16):
        a("buffer_load_dwordx4 v[%d:%d], v17, s[24:27], 0 offen offset:%d" % (XF + 4 * st, XF + 4 * st + 3, 64 * st))
    a("v_lshrrev_b32 v18, 2, v6")
    a("v_lshl_add_u32 v18, v7, 3, v18")
    a("v_lshlrev_b32 v19, 6, v18")
    a("v_and_b32 v20, 3, v6")
    a("v_lshl_add_u32 v19, v20, 3, v19")
    a("s_and_b32 s54, s52, 1")
    a("s_lshl_b32 s54, s54, 5")
    a("s_lshr_b32 s55, s52, 1")
    a("s_lshl_b32 s55, s55, 15")
    a("s_add_u32 s54, s54, s55")
    a("v_add_u32 v19, s54, v19")
    a("s_waitcnt vmcnt(0)")
    a("s_barrier")
    AF = 32
    for half in range(2):
        for st in range(8 * half, 8 * half + 8):
            f = AF + 4 * (st & 7)
            a("ds_read_b64_tr_b16 v[%d:%d], v19 offset:%d" % (f, f + 1, GB + st * 2048))
            a("ds_read_b64_tr_b16 v[%d:%d], v19 offset:%d" % (f + 2, f + 3, GB + st * 2048 + 256))
            if (st & 3) == 3:
                a("s_waitcnt lgkmcnt(0)")
                for s2 in range(st - 3, st + 1):
                    f2 = AF + 4 * (s2 & 7)
                    c = "0" if s2 == 0 else "v[28:31]"
                    a("v_mfma_f32_16x16x32_bf16 v[28:31], v[%d:%d], v[%d:%d], %s" % (
                        f2, f2 + 3, XF + 4 * s2, XF + 4 * s2 + 3, c))
    a("s_nop 15")
    a("v_lshlrev_b32 v20, 7, v6")
    a("v_lshl_add_u32 v20, v7, 4, v20")
    a("s_and_b32 s54, s52, 1")
    a("s_lshl_b32 s54, s54, 6")
    a("s_lshr_b32 s55, s52, 1")
    a("s_lshl_b32 s55, s55, 11")
    a("s_add_u32 s54, s54, s55")
    a("v_add_u32 v20, s54, v20")
    a("ds_write_b128 v20, v[28:31] offset:%d" % XB)
    a("s_waitcnt lgkmcnt(0)")
    a("s_barrier")
    a("v_lshlrev_b32 v20, 2, v0")
    a("ds_read_b32 v21, v20 offset:%d" % XB)
    a("ds_read_b32 v22, v20 offset:%d" % (XB + 2048))
    a("s_waitcnt lgkmcnt(0)")
    round_bf16_pair(a, 21, 22, 24)
    silu_reg(a, 21, 24)
    round_bf16(a, 21)
    a("v_mul_f32 v21, v21, v22")
    a("v_cvt_pk_bf16_f32 v21, v21, v21")
    a("v_lshlrev_b32 v20, 1, v0")
    a("ds_write_b16 v20, v21 offset:%d" % GUB)
    a("s_waitcnt lgkmcnt(0)")
    a("s_barrier")
    a("v_lshlrev_b32 v20, 6, v16")
    a("v_lshl_add_u32 v20, v7, 4, v20")
    a("ds_read_b128 v[24:27], v20 offset:%d" % GUB)
    a("s_mov_b32 s22, 1056")
    a("v_mul_lo_u32 v21, v18, s22")
    a("v_and_b32 v22, 3, v6")
    a("v_lshl_add_u32 v21, v22, 3, v21")
    a("s_lshl_b32 s54, s52, 8")
    a("s_add_u32 s54, s54, %d" % DB)
    a("v_add_u32 v21, s54, v21")
    for tl in range(8):
        f = AF + 4 * tl
        a("ds_read_b64_tr_b16 v[%d:%d], v21 offset:%d" % (f, f + 1, tl * 32))
        a("ds_read_b64_tr_b16 v[%d:%d], v21 offset:%d" % (f + 2, f + 3, tl * 32 + 4 * 1056))
        if tl == 3:
            a("s_waitcnt lgkmcnt(0)")
    a("s_waitcnt lgkmcnt(0)")
    for tl in range(8):
        f = AF + 4 * tl
        d = XF + 4 * tl
        a("v_mfma_f32_16x16x32_bf16 v[%d:%d], v[%d:%d], v[24:27], 0" % (d, d + 3, f, f + 3))
    a("v_lshlrev_b32 v20, 11, v6")
    a("v_lshl_add_u32 v20, v7, 4, v20")
    a("s_lshl_b32 s54, s2, 14")
    a("s_lshl_b32 s55, s52, 9")
    a("s_add_u32 s54, s54, s55")
    a("v_add_u32 v20, s54, v20")
    a("v_cmp_gt_u32 vcc, 8, v6")
    a("s_nop 7")
    a("s_and_saveexec_b64 s[48:49], vcc")
    for tl in range(8):
        d = XF + 4 * tl
        a("buffer_store_dwordx4 v[%d:%d], v20, s[28:31], 0 offen offset:%d" % (d, d + 3, tl * 64))
    a.label("L_k6_done")
    a("s_endpgm")
    return name, 128


def gen_down2(a):
    name = "k7_down_kernel"
    kernel_header(a, name)
    a("s_cmp_ge_u32 s2, 16")
    a("s_cbranch_scc1 L_k7_done")
    a("s_load_dwordx2 s[6:7], s[0:1], %d" % KA["out"])
    a("s_load_dwordx2 s[20:21], s[0:1], %d" % KA["ws"])
    a("s_waitcnt lgkmcnt(0)")
    a("s_lshr_b32 s22, s2, 1")
    a("s_lshl_b32 s23, s22, 2")
    a("s_add_u32 s50, s20, 0x%x" % WS_IDX)
    a("s_addc_u32 s51, s21, 0")
    a("s_load_dword s40, s[50:51], s23")
    srd_from(a, 12, 6, 0, 2048 * 1024)
    srd_from(a, 16, 20, WS_P6, 56 * 8 * 512 * 4)
    srd_from(a, 24, 20, WS_H2, 2048 * 1024)
    srd_from(a, 28, 20, WS_X1, 2048 * 1024)
    srd_from(a, 32, 20, WS_R, 2048 * 4)
    srd_from(a, 36, 20, WS_MOD, 3072 * 4)
    a("s_lshl_b32 s23, s2, 8")
    a("v_add_u32 v1, s23, v0")
    a("v_lshlrev_b32 v2, 2, v1")
    for b in range(56):
        a("s_mov_b32 s23, %d" % (b * 16384))
        a("buffer_load_dword v%d, v2, s[16:19], s23 offen" % (8 + b))
    a("v_and_b32 v3, 511, v1")
    a("s_waitcnt lgkmcnt(0)")
    a("s_lshl_b32 s41, s40, 10")
    a("v_lshl_add_u32 v4, v3, 1, s41")
    a("s_lshl_b32 s42, s40, 2")
    a("v_mov_b32 v5, s42")
    a("v_lshlrev_b32 v6, 2, v3")
    a("buffer_load_ushort v67, v4, s[24:27], 0 offen")
    a("buffer_load_ushort v68, v4, s[28:31], 0 offen")
    a("buffer_load_dword v69, v5, s[32:35], 0 offen")
    a("s_mov_b32 s23, %d" % (5 * 2048))
    a("buffer_load_dword v70, v6, s[36:39], s23 offen")
    a("s_waitcnt vmcnt(4)")
    n = 56
    regs = list(range(8, 64))
    while len(regs) > 1:
        nxt = []
        for i in range(0, len(regs) - 1, 2):
            a("v_add_f32 v%d, v%d, v%d" % (regs[i], regs[i], regs[i + 1]))
            nxt.append(regs[i])
        if len(regs) & 1:
            nxt.append(regs[-1])
        regs = nxt
    y = regs[0]
    round_bf16(a, y)
    a("s_waitcnt vmcnt(0)")
    a("v_lshlrev_b32 v67, 16, v67")
    a("v_lshlrev_b32 v68, 16, v68")
    a("v_mul_f32 v71, %s, v69" % NLOG2E)
    a("v_exp_f32 v71, v71")
    a("s_nop 0")
    a("v_add_f32 v71, 1.0, v71")
    a("v_rcp_f32 v71, v71")
    a("s_nop 0")
    round_bf16(a, 71)
    a("v_mul_f32 v%d, v%d, v71" % (y, y))
    round_bf16(a, y)
    a("v_add_f32 v%d, v%d, v67" % (y, y))
    round_bf16(a, y)
    a("v_mul_f32 v%d, v%d, v70" % (y, y))
    round_bf16(a, y)
    a("v_add_f32 v%d, v%d, v68" % (y, y))
    a("v_cvt_pk_bf16_f32 v%d, v%d, v%d" % (y, y, y))
    a("buffer_store_short v%d, v4, s[12:15], 0 offen" % y)
    a.label("L_k7_done")
    a("s_endpgm")
    return name, 72


def topk8_fast(a, lds_base, K, T, sidx, W):
    for j in range(8):
        k = K + j
        a("v_ashrrev_i32 v%d, 31, v%d" % (T + 2, k))
        a("v_or_b32 v%d, 0x80000000, v%d" % (T + 2, T + 2))
        a("v_xor_b32 v%d, v%d, v%d" % (k, k, T + 2))
        a("v_and_b32 v%d, 0xffff0000, v%d" % (k, k))
        a("v_subrev_u32 v%d, %d, v%d" % (T + 2, j, T + 1))
        a("v_or_b32 v%d, v%d, v%d" % (k, k, T + 2))
    A = [K + j for j in range(8)]
    free = [W + 16 + i for i in range(10)]

    def ce(L, i, j):
        t = free.pop()
        a("v_max_u32 v%d, v%d, v%d" % (t, L[i], L[j]))
        a("v_min_u32 v%d, v%d, v%d" % (L[j], L[i], L[j]))
        free.append(L[i])
        L[i] = t

    for i, j in ((0, 1), (2, 3), (4, 5), (6, 7), (0, 2), (1, 3), (4, 6), (5, 7), (1, 2), (5, 6), (0, 4), (3, 7),
                 (1, 5), (2, 6), (1, 4), (3, 6), (2, 4), (3, 5), (3, 4)):
        ce(A, i, j)

    def merge(A, B):
        for i in range(8):
            a("v_max_u32 v%d, v%d, v%d" % (A[i], A[i], B[7 - i]))
        for d in (4, 2, 1):
            for i in range(8):
                if (i & d) == 0:
                    ce(A, i, i + d)

    B = [W + i for i in range(8)]
    C = [W + 8 + i for i in range(8)]
    for dpp in ("quad_perm:[1,0,3,2]", "quad_perm:[2,3,0,1]", "row_half_mirror", "row_mirror"):
        a("s_nop 1")
        for i in range(8):
            a("v_mov_b32_dpp v%d, v%d %s row_mask:0xf bank_mask:0xf" % (B[i], A[i], dpp))
        merge(A, B)
    for sw in ("v_permlane16_swap_b32", "v_permlane32_swap_b32"):
        for i in range(8):
            a("v_mov_b32 v%d, v%d" % (B[i], A[i]))
        a("s_nop 1")
        for i in range(8):
            a("%s v%d, v%d" % (sw, A[i], B[i]))
        merge(A, B)
    for i in range(8):
        a("v_mov_b32 v%d, v%d" % (B[i], A[i]))
    a("v_lshlrev_b32 v%d, 3, v%d" % (T + 2, T + 4))
    a("ds_write_b128 v%d, v[%d:%d] offset:%d" % (T + 2, B[0], B[3], lds_base))
    a("ds_write_b128 v%d, v[%d:%d] offset:%d" % (T + 2, B[4], B[7], lds_base + 16))
    a("s_waitcnt lgkmcnt(0)")
    a("s_barrier")
    a("v_xor_b32 v%d, 32, v%d" % (T + 3, T + 2))
    a("ds_read_b128 v[%d:%d], v%d offset:%d" % (B[0], B[3], T + 3, lds_base))
    a("ds_read_b128 v[%d:%d], v%d offset:%d" % (B[4], B[7], T + 3, lds_base + 16))
    a("v_xor_b32 v%d, 64, v%d" % (T + 3, T + 2))
    a("ds_read_b128 v[%d:%d], v%d offset:%d" % (C[0], C[3], T + 3, lds_base))
    a("ds_read_b128 v[%d:%d], v%d offset:%d" % (C[4], C[7], T + 3, lds_base + 16))
    a("s_waitcnt lgkmcnt(2)")
    merge(A, B)
    a("v_xor_b32 v%d, 96, v%d" % (T + 3, T + 2))
    a("ds_read_b128 v[%d:%d], v%d offset:%d" % (B[0], B[3], T + 3, lds_base))
    a("ds_read_b128 v[%d:%d], v%d offset:%d" % (B[4], B[7], T + 3, lds_base + 16))
    a("s_waitcnt lgkmcnt(2)")
    merge(A, C)
    a("s_waitcnt lgkmcnt(0)")
    merge(A, B)
    a("s_nop 0")
    for i in range(8):
        a("v_readfirstlane_b32 s%d, v%d" % (sidx + i, A[i]))
    a("s_nop 3")
    for i in range(8):
        a("s_and_b32 s%d, s%d, 0xffff" % (sidx + i, sidx + i))
        a("s_sub_u32 s%d, 2047, s%d" % (sidx + i, sidx + i))
```

```python
from asmlib import *
from small import *
import os
DIAG5 = os.environ.get("DIAG5", "0") == "1"
_n5 = [0]


def st5(a):
    if DIAG5:
        a("s_memrealtime s[%d:%d]" % (96 + 0, 97))
        a("s_waitcnt lgkmcnt(0)")
        a("v_mov_b32 v120, s96")
        a("s_lshl_b32 s98, s2, 3")
        a("s_add_u32 s98, s98, s52")
        a("s_lshl_b32 s98, s98, 6")
        a("s_add_u32 s98, s98, 0x%x" % (0x3000000 - WS_P6B + 4 * _n5[0]))
        a("v_mov_b32 v121, s98")
        a("s_mov_b32 s94, 0x7fffffff")
        a("buffer_store_dword v120, v121, s[92:95], 0 offen")
        _n5[0] += 1


def signal(a, srd, off, tmpv):
    a("s_waitcnt vmcnt(0) lgkmcnt(0)")
    a("s_barrier")
    a("v_mov_b32 v%d, 1" % tmpv)
    a("s_lshl_b32 s58, s2, 6")
    a("s_add_u32 s58, s58, %d" % off)
    a("v_mov_b32 v%d, s58" % (tmpv + 1))
    a("v_cmp_eq_u32 vcc, 0, v0")
    a("s_and_saveexec_b64 s[48:49], vcc")
    a("buffer_store_dword v%d, v%d, s[%d:%d], 0 offen sc1" % (tmpv, tmpv + 1, srd, srd + 3))
    a("s_mov_b64 exec, s[48:49]")


_wl = [0]


def wait_flags(a, srd, off, n, swave, tmpv):
    _wl[0] += 1
    lp, dn = "L_poll%d" % _wl[0], "L_polldone%d" % _wl[0]
    a("s_cmp_lg_u32 s%d, 0" % swave)
    a("s_cbranch_scc1 %s" % dn)
    if n == 256:
        a("v_lshlrev_b32 v%d, 6, v0" % (tmpv + 4))
    else:
        a("v_min_u32 v%d, %d, v0" % (tmpv + 4, n - 1))
        a("v_lshlrev_b32 v%d, 6, v%d" % (tmpv + 4, tmpv + 4))
    a("v_add_u32 v%d, %d, v%d" % (tmpv + 4, off, tmpv + 4))
    a.label(lp)
    if n == 256:
        for i in range(4):
            a("s_mov_b32 s58, %d" % (i * 4096))
            a("buffer_load_dword v%d, v%d, s[%d:%d], s58 offen sc1" % (tmpv + i, tmpv + 4, srd, srd + 3))
        a("s_waitcnt vmcnt(0)")
        a("v_and_b32 v%d, v%d, v%d" % (tmpv, tmpv, tmpv + 1))
        a("v_and_b32 v%d, v%d, v%d" % (tmpv + 2, tmpv + 2, tmpv + 3))
        a("v_and_b32 v%d, v%d, v%d" % (tmpv, tmpv, tmpv + 2))
    else:
        a("buffer_load_dword v%d, v%d, s[%d:%d], 0 offen sc1" % (tmpv, tmpv + 4, srd, srd + 3))
        a("s_waitcnt vmcnt(0)")
    a("v_cmp_ne_u32 vcc, 1, v%d" % tmpv)
    a("s_nop 1")
    a("s_cbranch_vccz %s" % dn)
    a("s_sleep 1")
    a("s_branch %s" % lp)
    a.label(dn)
    a("s_barrier")


def gen_k12(a):
    name = "k1_modln_kernel"
    kernel_header(a, name)
    a("s_cmp_ge_u32 s2, 256")
    a("s_cbranch_scc1 L_k12_done")
    a("s_load_dwordx2 s[50:51], s[0:1], %d" % KA["x"])
    a("s_load_dwordx4 s[4:7], s[0:1], %d" % KA["c"])
    a("s_load_dwordx4 s[20:23], s[0:1], %d" % KA["dbg"])
    a("v_and_b32 v1, 63, v0")
    a("v_lshrrev_b32 v2, 6, v0")
    a("s_nop 0")
    a("v_readfirstlane_b32 s52, v2")
    a("s_waitcnt lgkmcnt(0)")
    srd_from(a, 8, 4, 0, 1024)
    srd_from(a, 12, 6, 0, 512 * 6144)
    srd_from(a, 16, 22, WS_MOD, 3072 * 4)
    srd_from(a, 24, 50, 0, 2048 * 1024)
    srd_from(a, 28, 22, WS_H1, 2048 * 1024)
    srd_from(a, 32, 20, 0, 256)
    a("s_lshl_b32 s53, s2, 13")
    a("v_lshlrev_b32 v3, 10, v2")
    a("v_lshlrev_b32 v4, 4, v1")
    a("v_add3_u32 v3, v3, v4, s53")
    a("buffer_load_dwordx4 v[108:111], v3, s[24:27], 0 offen")
    a("s_cmp_ge_u32 s2, 48")
    a("s_cbranch_scc1 L_k12_ln")
    a("s_cmp_ge_u32 s52, 4")
    a("s_cbranch_scc1 L_k12_gskip")
    a("v_and_b32 v5, 7, v0")
    a("v_lshrrev_b32 v6, 3, v0")
    a("v_lshlrev_b32 v7, 5, v6")
    a("buffer_load_dwordx4 v[8:11], v7, s[8:11], 0 offen")
    a("buffer_load_dwordx4 v[12:15], v7, s[8:11], 0 offen offset:16")
    a("s_mov_b32 s53, %d" % (16 * 6144))
    a("v_mul_lo_u32 v7, v6, s53")
    a("v_lshl_add_u32 v7, v5, 4, v7")
    a("s_lshl_b32 s53, s2, 7")
    a("v_add_u32 v7, s53, v7")
    for i in range(16):
        a("s_mov_b32 s54, %d" % (i * 6144))
        a("buffer_load_dwordx4 v[%d:%d], v7, s[12:15], s54 offen" % (32 + 4 * i, 35 + 4 * i))
    a("s_waitcnt vmcnt(16)")
    for i in range(8):
        unpack_bf16(a, 8 + i, 16 + 2 * i, 17 + 2 * i)
    for i in range(16):
        silu_reg(a, 16 + i, 104)
        round_bf16(a, 16 + i)
    for j in range(8):
        a("v_mov_b32 v%d, 0" % (96 + j))
    for i in range(16):
        a("s_waitcnt vmcnt(%d)" % (15 - i))
        for d in range(4):
            unpack_bf16(a, 32 + 4 * i + d, 104, 105)
            a("v_fmac_f32 v%d, v%d, v104" % (96 + 2 * d, 16 + i))
            a("v_fmac_f32 v%d, v%d, v105" % (97 + 2 * d, 16 + i))
    a("v_lshlrev_b32 v7, 8, v6")
    a("v_lshl_add_u32 v7, v5, 5, v7")
    a("ds_write_b128 v7, v[96:99]")
    a("ds_write_b128 v7, v[100:103] offset:16")
    a("s_waitcnt lgkmcnt(0)")
    a.label("L_k12_gskip")
    a("s_barrier")
    a("s_cmp_lg_u32 s52, 0")
    a("s_cbranch_scc1 L_k12_rskip")
    a("v_lshlrev_b32 v7, 2, v0")
    for g in range(32):
        a("ds_read_b32 v%d, v7 offset:%d" % (32 + g, g * 256))
    a("s_waitcnt lgkmcnt(0)")
    for g in range(1, 32):
        a("v_add_f32 v32, v32, v%d" % (32 + g))
    round_bf16(a, 32)
    a("s_lshl_b32 s53, s2, 8")
    a("v_add_u32 v7, s53, v7")
    a("buffer_store_dword v32, v7, s[16:19], 0 offen sc1")
    a.label("L_k12_rskip")
    signal(a, 32, 0, 5)
    a("s_cmp_lg_u32 s2, 0")
    a("s_cbranch_scc1 L_k12_ln")
    srd_from(a, 36, 22, WS_FLAG, 320 * 4)
    a("v_lshlrev_b32 v5, 2, v0")
    a("v_mov_b32 v6, 0")
    a("buffer_store_dword v6, v5, s[36:39], 0 offen")
    a.label("L_k12_ln")
    a("s_waitcnt vmcnt(0)")
    for i in range(4):
        unpack_bf16(a, 108 + i, 16 + 2 * i, 17 + 2 * i)
    layernorm8(a, 16, 40)
    wait_flags(a, 32, 0, 48, 52, 56)
    a("v_lshlrev_b32 v5, 5, v1")
    a("buffer_load_dwordx4 v[24:27], v5, s[16:19], 0 offen sc1")
    a("buffer_load_dwordx4 v[28:31], v5, s[16:19], 0 offen offset:16 sc1")
    a("buffer_load_dwordx4 v[32:35], v5, s[16:19], 0 offen offset:2048 sc1")
    a("buffer_load_dwordx4 v[36:39], v5, s[16:19], 0 offen offset:2064 sc1")
    a("s_lshl_b32 s53, s2, 3")
    a("v_add_u32 v40, s53, v2")
    a("v_lshrrev_b32 v41, 5, v40")
    a("v_lshlrev_b32 v41, 15, v41")
    a("v_lshrrev_b32 v42, 2, v1")
    a("v_lshl_add_u32 v41, v42, 11, v41")
    a("v_bfe_u32 v42, v40, 4, 1")
    a("v_lshl_add_u32 v41, v42, 10, v41")
    a("v_and_b32 v42, 1, v1")
    a("v_lshl_add_u32 v41, v42, 9, v41")
    a("v_and_b32 v42, 15, v40")
    a("v_lshl_add_u32 v41, v42, 4, v41")
    a("v_bfe_u32 v42, v1, 1, 1")
    a("v_lshl_add_u32 v41, v42, 3, v41")
    a("s_waitcnt vmcnt(0)")
    modulate8(a, 16, 32, 24, 44)
    pack8(a, 16, 8)
    a("buffer_store_dwordx2 v[8:9], v41, s[28:31], 0 offen")
    a("buffer_store_dwordx2 v[10:11], v41, s[28:31], 0 offen offset:256")
    a.label("L_k12_done")
    a("s_endpgm")
    return name, 112


def gen_tail(a, nsplit=4):
    name = "k5_tail_kernel"
    kernel_header(a, name)
    GB, UB, DB, XB = 8192, 40960, 73728, 0
    TK = XB + 4096
    GUB = XB + 6144
    a("s_cmp_ge_u32 s2, 256")
    a("s_cbranch_scc1 L_k5_done")
    a("s_load_dwordx2 s[4:5], s[0:1], %d" % KA["x"])
    a("s_load_dwordx4 s[60:63], s[0:1], %d" % KA["wr"])
    a("s_load_dwordx4 s[64:67], s[0:1], %d" % KA["wu"])
    a("s_load_dwordx2 s[68:69], s[0:1], %d" % KA["out"])
    a("s_load_dwordx4 s[20:23], s[0:1], %d" % KA["dbg"])
    a("v_and_b32 v1, 63, v0")
    a("v_lshrrev_b32 v2, 6, v0")
    a("s_nop 0")
    a("v_readfirstlane_b32 s52, v2")
    a("s_waitcnt lgkmcnt(0)")
    srd_from(a, 8, 4, 0, 2048 * 1024)
    srd_from(a, 12, 22, WS_MOD, 3072 * 4)
    srd_from(a, 16, 22, WS_PART, nsplit * 2048 * 2048)
    srd_from(a, 24, 60, 0, 1024)
    srd_from(a, 28, 68, 0, 2048 * 1024)
    srd_from(a, 32, 22, WS_X1, 2048 * 1024)
    srd_from(a, 36, 22, WS_H2, 2048 * 1024)
    srd_from(a, 72, 22, WS_R, 2048 * 4)
    srd_from(a, 76, 22, WS_FLAG, FLAG_BYTES)
    srd_from(a, 80, 22, WS_GP, 512 * 3584)
    srd_from(a, 84, 22, WS_UP, 512 * 3584)
    srd_from(a, 88, 66, 0, 1792 * 1024)
    srd_from(a, 92, 22, WS_P6B, 56 * 8 * 512 * 4)
    a("s_cmp_lt_u32 s52, 8")
    a("s_cbranch_scc1 L_k5_rows")
    a("s_cmp_ge_u32 s2, 56")
    a("s_cbranch_scc1 L_k5_done")
    a("s_sub_u32 s59, s52, 8")
    a("v_lshlrev_b32 v112, 4, v1")
    a("s_lshl_b32 s56, s59, 14")
    a("s_lshl_b32 s53, s2, 15")
    a("s_add_u32 s53, s53, s56")
    for mat, base in ((80, GB), (84, UB)):
        for i in range(16):
            a("s_add_u32 s54, s56, %d" % (base + i * 1024))
            a("s_mov_b32 m0, s54")
            a("s_add_u32 s55, s53, %d" % (i * 1024))
            a("buffer_load_dwordx4 v112, s[%d:%d], s55 offen lds" % (mat, mat + 3))
    a("s_mul_i32 s57, s59, %d" % (16 * 1056))
    for i in range(16):
        a("s_add_u32 s54, s57, %d" % (DB + i * 1056))
        a("s_mov_b32 m0, s54")
        a("s_add_u32 s55, s53, %d" % (i * 1024))
        a("buffer_load_dwordx4 v112, s[88:91], s55 offen lds")
    a("s_barrier")
    a("s_waitcnt vmcnt(0)")
    a("s_barrier")
    a("s_branch L_k5_done")
    a.label("L_k5_rows")
    st5(a)
    a("s_lshl_b32 s53, s2, 13")
    a("v_lshlrev_b32 v3, 10, v2")
    a("v_lshlrev_b32 v4, 3, v1")
    a("v_add3_u32 v3, v3, v4, s53")
    a("v_lshlrev_b32 v6, 1, v3")
    a("buffer_load_dwordx2 v[8:9], v3, s[8:11], 0 offen")
    a("buffer_load_dwordx2 v[10:11], v3, s[8:11], 0 offen offset:512")
    for p in range(nsplit):
        a("s_mov_b32 s53, 0x%x" % (p * 2048 * 2048))
        a("buffer_load_dwordx4 v[%d:%d], v6, s[16:19], s53 offen" % (64 + 8 * p, 67 + 8 * p))
        a("buffer_load_dwordx4 v[%d:%d], v6, s[16:19], s53 offen offset:1024" % (68 + 8 * p, 71 + 8 * p))
    a("v_lshlrev_b32 v5, 4, v1")
    for j, base in ((2, 24), (3, 32), (4, 40), (5, 48)):
        a("s_mov_b32 s53, %d" % (j * 2048))
        a("buffer_load_dwordx4 v[%d:%d], v5, s[12:15], s53 offen" % (base, base + 3))
        a("buffer_load_dwordx4 v[%d:%d], v5, s[12:15], s53 offen offset:1024" % (base + 4, base + 7))
    a("buffer_load_dwordx2 v[12:13], v4, s[24:27], 0 offen")
    a("buffer_load_dwordx2 v[14:15], v4, s[24:27], 0 offen offset:512")
    a("s_waitcnt vmcnt(0)")
    a.label("L_k5_p1")
    st5(a)
    for i in range(4):
        unpack_bf16(a, 8 + i, 16 + 2 * i, 17 + 2 * i)
    for p in range(1, nsplit):
        for i in range(8):
            a("v_add_f32 v%d, v%d, v%d" % (64 + i, 64 + i, 64 + 8 * p + i))
    T = 100
    for i in range(0, 8, 2):
        round_bf16_pair(a, 64 + i, 65 + i, T)
        a("v_mul_f32 v%d, v%d, v%d" % (64 + i, 64 + i, 24 + i))
        a("v_mul_f32 v%d, v%d, v%d" % (65 + i, 65 + i, 25 + i))
        round_bf16_pair(a, 64 + i, 65 + i, T)
        a("v_add_f32 v%d, v%d, v%d" % (16 + i, 16 + i, 64 + i))
        a("v_add_f32 v%d, v%d, v%d" % (17 + i, 17 + i, 65 + i))
        round_bf16_pair(a, 16 + i, 17 + i, T)
    for i in range(8):
        a("v_mov_b32 v%d, v%d" % (72 + i, 16 + i))
    pack8(a, 16, 8)
    a("buffer_store_dwordx2 v[8:9], v3, s[32:35], 0 offen sc1")
    a("buffer_store_dwordx2 v[10:11], v3, s[32:35], 0 offen offset:512 sc1")
    layernorm8(a, 16, T)
    modulate8(a, 16, 40, 32, T)
    pack8(a, 16, 84)
    a("buffer_store_dwordx2 v[84:85], v3, s[36:39], 0 offen sc1")
    a("buffer_store_dwordx2 v[86:87], v3, s[36:39], 0 offen offset:512 sc1")
    for i in range(4):
        unpack_bf16(a, 12 + i, 88 + 2 * i, 89 + 2 * i)
    a("v_mul_f32 v%d, v16, v88" % T)
    for i in range(1, 8):
        a("v_fmac_f32 v%d, v%d, v%d" % (T, 16 + i, 88 + i))
    wave_allreduce(a, T, T + 1)
    round_bf16(a, T)
    a("v_lshrrev_b32 v7, 8, v3")
    a("v_cmp_eq_u32 vcc, 0, v1")
    a("s_and_saveexec_b64 s[48:49], vcc")
    a("buffer_store_dword v%d, v7, s[72:75], 0 offen sc1" % T)
    a("s_mov_b64 exec, s[48:49]")
    for i in range(0, 8, 2):
        a("v_mul_f32 v%d, v%d, v%d" % (16 + i, 16 + i, 48 + i))
        a("v_mul_f32 v%d, v%d, v%d" % (17 + i, 17 + i, 49 + i))
        round_bf16_pair(a, 16 + i, 17 + i, T)
        a("v_add_f32 v%d, v%d, v%d" % (16 + i, 16 + i, 72 + i))
        a("v_add_f32 v%d, v%d, v%d" % (17 + i, 17 + i, 73 + i))
    pack8(a, 16, 92)
    a("buffer_store_dwordx2 v[92:93], v3, s[28:31], 0 offen sc1")
    a("buffer_store_dwordx2 v[94:95], v3, s[28:31], 0 offen offset:512 sc1")
    st5(a)
    signal(a, 76, 0, 5)
    st5(a)
    a("s_cmp_ge_u32 s2, 56")
    a("s_cbranch_scc1 L_k5_done")
    a("s_cmp_ge_u32 s52, 4")
    a("s_cbranch_scc1 L_k5_done")
    a.label("L_k5_p2")
    a("v_mov_b32 v5, v1")
    a("v_and_b32 v6, 15, v5")
    a("v_lshrrev_b32 v7, 4, v5")
    wait_flags(a, 76, 0, 256, 52, 28)
    st5(a)
    K, T = 8, 16
    a("v_lshlrev_b32 v%d, 5, v0" % T)
    a("buffer_load_dwordx4 v[%d:%d], v%d, s[72:75], 0 offen sc1" % (K, K + 3, T))
    a("buffer_load_dwordx4 v[%d:%d], v%d, s[72:75], 0 offen offset:16 sc1" % (K + 4, K + 7, T))
    a("v_lshlrev_b32 v%d, 3, v0" % (T + 1))
    a("v_sub_u32 v%d, 2047, v%d" % (T + 1, T + 1))
    a("v_lshrrev_b32 v%d, 6, v0" % (T + 4))
    a("v_lshlrev_b32 v%d, 2, v%d" % (T + 4, T + 4))
    a("s_waitcnt vmcnt(0)")
    st5(a)
    topk8_fast(a, TK, K, T, 40, 32)
    st5(a)
    a("v_and_b32 v16, 7, v6")
    a("v_mov_b32 v17, s40")
    for j in range(1, 8):
        a("v_mov_b32 v18, s%d" % (40 + j))
        a("v_cmp_eq_u32 vcc, %d, v16" % j)
        a("s_nop 1")
        a("v_cndmask_b32 v17, v17, v18, vcc")
    a("v_lshlrev_b32 v17, 10, v17")
    a("v_lshl_add_u32 v17, v7, 4, v17")
    XF = 64
    for st in range(16):
        a("buffer_load_dwordx4 v[%d:%d], v17, s[36:39], 0 offen offset:%d sc1" % (XF + 4 * st, XF + 4 * st + 3, 64 * st))
    a("v_lshrrev_b32 v18, 2, v6")
    a("v_lshl_add_u32 v18, v7, 3, v18")
    a("v_lshlrev_b32 v19, 6, v18")
    a("v_and_b32 v20, 3, v6")
    a("v_lshl_add_u32 v19, v20, 3, v19")
    a("s_and_b32 s54, s52, 1")
    a("s_lshl_b32 s54, s54, 5")
    a("s_lshr_b32 s55, s52, 1")
    a("s_lshl_b32 s55, s55, 15")
    a("s_add_u32 s54, s54, s55")
    a("v_add_u32 v19, s54, v19")
    AF = 32
    for st in range(16):
        f = AF + 4 * (st & 7)
        a("ds_read_b64_tr_b16 v[%d:%d], v19 offset:%d" % (f, f + 1, GB + st * 2048))
        a("ds_read_b64_tr_b16 v[%d:%d], v19 offset:%d" % (f + 2, f + 3, GB + st * 2048 + 256))
        if (st & 3) == 3:
            a("s_waitcnt lgkmcnt(0) vmcnt(%d)" % (15 - st))
            for s2 in range(st - 3, st + 1):
                f2 = AF + 4 * (s2 & 7)
                c = "0" if s2 == 0 else "v[28:31]"
                a("v_mfma_f32_16x16x32_bf16 v[28:31], v[%d:%d], v[%d:%d], %s" % (
                    f2, f2 + 3, XF + 4 * s2, XF + 4 * s2 + 3, c))
    a("s_nop 15")
    st5(a)
    a("v_lshlrev_b32 v20, 7, v6")
    a("v_lshl_add_u32 v20, v7, 4, v20")
    a("s_and_b32 s54, s52, 1")
    a("s_lshl_b32 s54, s54, 6")
    a("s_lshr_b32 s55, s52, 1")
    a("s_lshl_b32 s55, s55, 11")
    a("s_add_u32 s54, s54, s55")
    a("v_add_u32 v20, s54, v20")
    a("ds_write_b128 v20, v[28:31] offset:%d" % XB)
    a("s_waitcnt lgkmcnt(0)")
    a("s_barrier")
    a("v_lshlrev_b32 v20, 2, v0")
    a("ds_read_b32 v21, v20 offset:%d" % XB)
    a("ds_read_b32 v22, v20 offset:%d" % (XB + 2048))
    a("s_waitcnt lgkmcnt(0)")
    round_bf16_pair(a, 21, 22, 24)
    silu_reg(a, 21, 24)
    round_bf16(a, 21)
    a("v_mul_f32 v21, v21, v22")
    a("v_cvt_pk_bf16_f32 v21, v21, v21")
    a("v_lshlrev_b32 v20, 1, v0")
    a("ds_write_b16 v20, v21 offset:%d" % GUB)
    a("s_waitcnt lgkmcnt(0)")
    a("s_barrier")
    a("v_lshlrev_b32 v20, 6, v16")
    a("v_lshl_add_u32 v20, v7, 4, v20")
    a("ds_read_b128 v[24:27], v20 offset:%d" % GUB)
    a("s_mov_b32 s53, 1056")
    a("v_mul_lo_u32 v21, v18, s53")
    a("v_and_b32 v22, 3, v6")
    a("v_lshl_add_u32 v21, v22, 3, v21")
    a("s_lshl_b32 s54, s52, 8")
    a("s_add_u32 s54, s54, %d" % DB)
    a("v_add_u32 v21, s54, v21")
    for tl in range(8):
        f = AF + 4 * tl
        a("ds_read_b64_tr_b16 v[%d:%d], v21 offset:%d" % (f, f + 1, tl * 32))
        a("ds_read_b64_tr_b16 v[%d:%d], v21 offset:%d" % (f + 2, f + 3, tl * 32 + 4 * 1056))
        if tl == 3:
            a("s_waitcnt lgkmcnt(0)")
    a("s_waitcnt lgkmcnt(0)")
    for tl in range(8):
        f = AF + 4 * tl
        d = XF + 4 * tl
        a("v_mfma_f32_16x16x32_bf16 v[%d:%d], v[%d:%d], v[24:27], 0" % (d, d + 3, f, f + 3))
    a("v_lshlrev_b32 v20, 11, v6")
    a("v_lshl_add_u32 v20, v7, 4, v20")
    a("s_lshl_b32 s54, s2, 14")
    a("s_lshl_b32 s55, s52, 9")
    a("s_add_u32 s54, s54, s55")
    a("v_add_u32 v20, s54, v20")
    a("v_cmp_gt_u32 vcc, 8, v6")
    a("s_nop 7")
    a("s_and_saveexec_b64 s[48:49], vcc")
    for tl in range(8):
        d = XF + 4 * tl
        a("buffer_store_dwordx4 v[%d:%d], v20, s[92:95], 0 offen offset:%d sc1" % (d, d + 3, tl * 64))
    a("s_mov_b64 exec, s[48:49]")
    st5(a)
    signal(a, 76, FLAG_1_OFF, 5)
    st5(a)
    a("s_cmp_ge_u32 s2, 16")
    a("s_cbranch_scc1 L_k5_done")
    a("s_lshr_b32 s53, s2, 1")
    a("s_mov_b32 s54, s40")
    for j in range(1, 8):
        a("s_cmp_eq_u32 s53, %d" % j)
        a("s_cselect_b32 s54, s%d, s54" % (40 + j))
    a("s_lshl_b32 s53, s2, 8")
    a("v_add_u32 v1, s53, v0")
    a("v_lshlrev_b32 v2, 2, v1")
    a("v_and_b32 v3, 511, v1")
    a("s_lshl_b32 s55, s54, 10")
    a("v_lshl_add_u32 v4, v3, 1, s55")
    a("s_lshl_b32 s55, s54, 2")
    a("v_mov_b32 v5, s55")
    a("v_lshlrev_b32 v6, 2, v3")
    a("v_and_b32 v7, 0xfffffffc, v4")
    a("buffer_load_dword v67, v7, s[36:39], 0 offen sc1")
    a("buffer_load_dword v68, v7, s[32:35], 0 offen sc1")
    a("buffer_load_dword v69, v5, s[72:75], 0 offen sc1")
    a("s_mov_b32 s53, %d" % (5 * 2048))
    a("buffer_load_dword v70, v6, s[12:15], s53 offen")
    wait_flags(a, 76, FLAG_1_OFF, 56, 52, 72)
    st5(a)
    for b in range(56):
        a("s_mov_b32 s53, %d" % (b * 16384))
        a("buffer_load_dword v%d, v2, s[92:95], s53 offen sc1" % (8 + b))
    a("s_waitcnt vmcnt(56)")
    a("v_and_b32 v7, 1, v3")
    a("v_lshlrev_b32 v7, 4, v7")
    a("v_lshrrev_b32 v67, v7, v67")
    a("v_lshrrev_b32 v68, v7, v68")
    a("v_lshlrev_b32 v67, 16, v67")
    a("v_lshlrev_b32 v68, 16, v68")
    a("v_mul_f32 v71, %s, v69" % NLOG2E)
    a("v_exp_f32 v71, v71")
    a("s_nop 0")
    a("v_add_f32 v71, 1.0, v71")
    a("v_rcp_f32 v71, v71")
    a("s_nop 0")
    round_bf16(a, 71)
    a("s_waitcnt vmcnt(0)")
    regs = list(range(8, 64))
    while len(regs) > 1:
        nxt = []
        for i in range(0, len(regs) - 1, 2):
            a("v_add_f32 v%d, v%d, v%d" % (regs[i], regs[i], regs[i + 1]))
            nxt.append(regs[i])
        if len(regs) & 1:
            nxt.append(regs[-1])
        regs = nxt
    y = regs[0]
    round_bf16(a, y)
    a("v_mul_f32 v%d, v%d, v71" % (y, y))
    round_bf16(a, y)
    a("v_add_f32 v%d, v%d, v67" % (y, y))
    round_bf16(a, y)
    a("v_mul_f32 v%d, v%d, v70" % (y, y))
    round_bf16(a, y)
    a("v_add_f32 v%d, v%d, v68" % (y, y))
    a("v_cvt_pk_bf16_f32 v%d, v%d, v%d" % (y, y, y))
    a("buffer_store_short v%d, v4, s[28:31], 0 offen sc1" % y)
    a("s_waitcnt vmcnt(0)")
    st5(a)
    a.label("L_k5_done")
    a("s_endpgm")
    return name, 128
```
